```python
import torch

def _softmax(x, axis=-1):
    return torch.softmax(x, dim=axis)
def _gelu(x):
    return torch.nn.functional.gelu(x, approximate="tanh")
def _silu(x):
    return torch.nn.functional.silu(x)
def _sigmoid(x):
    return torch.sigmoid(x)
def _layernorm(x, axis=-1, eps=1e-5):
    m = x.mean(dim=axis, keepdim=True)
    v = x.var(dim=axis, keepdim=True, unbiased=False)
    return (x - m) / torch.sqrt(v + eps)
def _scatter_add(tgt, idx, src, axis=0):
    return tgt.clone().index_add_(axis, idx, src)
def _segment_sum(src, seg, n):
    out = torch.zeros((n,) + src.shape[1:], dtype=src.dtype)
    return out.index_add_(0, seg, src)
def _pad(x, pw):
    flat = tuple(v for pair in reversed(pw) for v in pair)
    return torch.nn.functional.pad(x, flat)

kernel_name = 'sequential_preLN__sliding_block_cached__dense_activation_relu__decode'

def setup_inputs():

    _w = (lambda a: (lambda t: t.to(torch.bfloat16) if t.is_floating_point() else t)(torch.as_tensor(a)))
    def _A_setup():
        B, Sq, D = 8, 1, 1024
        Hq, Hkv, Sk, Dh = 32, 4, 4096, 128
        assert Hq % Hkv == 0, (Hq, Hkv)
        return {
            "x": _w((lambda *s: torch.randn(*s, dtype=torch.bfloat16) * 0.05)(B, Sq, D)),
            "k_cache": _w((lambda *s: torch.randn(*s, dtype=torch.bfloat16) * 3.2)(B, Hkv, Sk, Dh)),
            "v_cache": _w((lambda *s: torch.randn(*s, dtype=torch.bfloat16) * 0.4)(B, Hkv, Sk, Dh)),
            "wq": _w((lambda *s: torch.randn(*s, dtype=torch.bfloat16) * 3.2)(D, Hq * Dh) * (D ** -0.5)),
            "wo": _w((lambda *s: torch.randn(*s, dtype=torch.bfloat16) * 0.4)(Hq * Dh, D) * ((Hq * Dh) ** -0.5)),
        }
    _A_in = _A_setup()

    def _B_setup():
        B, S, D, Dff = 8, 1, 1024, 3584
        return {
            "x": _w((lambda *s: torch.randn(*s, dtype=torch.bfloat16) * 0.05)(B, S, D)),
            "w1": _w((lambda *s: torch.randn(*s, dtype=torch.bfloat16) * 0.05)(D, Dff)),
            "w2": _w((lambda *s: torch.randn(*s, dtype=torch.bfloat16) * 0.05)(Dff, D)),
        }
    _B_in = _B_setup()

    return {
        "A_x": _A_in["x"],
        "A_k_cache": _A_in["k_cache"],
        "A_v_cache": _A_in["v_cache"],
        "A_wq": _A_in["wq"],
        "A_wo": _A_in["wo"],
        "B_x": _B_in["x"],
        "B_w1": _B_in["w1"],
        "B_w2": _B_in["w2"],
    }

def reference(A_x, A_k_cache, A_v_cache, A_wq, A_wo, B_x, B_w1, B_w2):
    def _A_ref(x, k_cache, v_cache, wq, wo):
        B, Sq, D = x.shape
        Hq, Dh = 32, 128
        Hkv, Sk = k_cache.shape[1], k_cache.shape[2]
        W = min(4096, max(256, Sk // 4))
        rep = Hq // Hkv
        q = (lambda x, *d: x.permute(*d))((x @ wq).reshape(B, Sq, Hq, Dh), 0, 2, 1, 3)
        k = (lambda x, n, axis: torch.repeat_interleave(x, n, dim=axis))(k_cache[:, :, Sk - W:, :], rep, axis=1)
        v = (lambda x, n, axis: torch.repeat_interleave(x, n, dim=axis))(v_cache[:, :, Sk - W:, :], rep, axis=1)
        scores = torch.einsum("bhqd,bhkd->bhqk", q, k) * (Dh ** -0.5)
        p = _softmax(scores, axis=-1)
        o = torch.einsum("bhqk,bhkd->bhqd", p, v)
        return (lambda x, *d: x.permute(*d))(o, 0, 2, 1, 3).reshape(B, Sq, Hq * Dh) @ wo

    def _B_ref(x, w1, w2):
        h = torch.einsum("bsd,df->bsf", x, w1)
        zero = torch.zeros_like(h)
        h = torch.maximum(h, zero)
        return torch.einsum("bsf,fd->bsd", h, w2)

    x = A_x
    h = x + _A_ref(_layernorm(x, axis=-1), A_k_cache, A_v_cache, A_wq, A_wo)
    h2 = h + _B_ref(_layernorm(h, axis=-1), B_w1, B_w2)
    return h2
```

```python
KN = "sequential_preLN__sliding_block_cached__dense_activation_relu__decode_kernel"
HEADER = open("sequential_preLN__sliding_block_cached__dense_activation_relu__decode.s.ref").read().split("; Override launch")[0]

def wrap(body, grid, block, lds, vgpr=256, sgpr=102, accum=None):
    if accum is None: accum = min(256, (vgpr + 3) // 4 * 4)
    return (HEADER + f"; @launch grid=({grid},1,1) block=({block},1,1) lds={lds}\n"
        + '.amdgcn_target "amdgcn-amd-amdhsa--gfx950"\n.text\n'
        + f".globl {KN}\n.p2align 8\n.type {KN},@function\n{KN}:\n" + body + "\n"
        + '.section .rodata,"a"\n.p2align 6\n'
        + f".amdhsa_kernel {KN}\n  .amdhsa_next_free_vgpr {vgpr}\n  .amdhsa_next_free_sgpr {sgpr}\n  .amdhsa_accum_offset {accum}\n"
        + "  .amdhsa_group_segment_fixed_size 0\n  .amdhsa_kernarg_size 88\n  .amdhsa_user_sgpr_count 2\n  .amdhsa_user_sgpr_kernarg_segment_ptr 1\n  .amdhsa_system_sgpr_workgroup_id_x 1\n.end_amdhsa_kernel\n")
```

```python
import sys, argparse
sys.path.insert(0, "bench")
from asmlib import wrap

R0, R1, R2, R3 = 0, 32768, 65536, 98304
FL = 131072
XN = FL + 128
HL = XN + 8 * 544
QL = HL + 8 * 544
OL = QL + 8 * 288
AL = OL + 8 * 288
CB = AL + 8 * 288
LDS_END = CB + 4 * 8 * 528
assert LDS_END <= 163840, LDS_END
F_SYNC = 0
F_LAND = 32
F_FREE0, F_FREE1 = 56, 60
F_PUB2, F_PUB4 = 64, 68
F_HOLD = 72

W_EPOCH = 0
W_QP = 0x100000
W_AP = 0x200000
W_AS = 0x300000
W_OB = 0x310000
W_HB = 0x340000
W_OP = 0x400000
W_UP = 0x500000
W_CS = 0x580000
W_ST = 0x5A0000
W_FP = 0x600000
STAMP_OFF = 128 << 20

class G:
    def __init__(self, cfg):
        self.L = []; self.cfg = cfg; self.nlab = 0; self.nstamp = 0
    def A(self, s): self.L.append("    " + s)
    def lab(self, s): self.L.append(s + ":")
    def newlab(self, p="L"):
        self.nlab += 1; return f"{p}_{self.nlab}"
    def nop(self, n):
        while n > 0:
            k = min(n, 16); self.A(f"s_nop {k-1}"); n -= k
    def setexec(self, m):
        lo, hi = m & 0xffffffff, m >> 32
        if hi == 0 and lo <= 64: self.A(f"s_mov_b64 exec, {lo}")
        else:
            self.A(f"s_mov_b32 exec_lo, {hex(lo)}"); self.A(f"s_mov_b32 exec_hi, {hex(hi)}")
    def stamp(self, idx):
        if self.cfg.stamps: self.A(f"s_memrealtime s[{70+2*idx}:{71+2*idx}]")

def srd(g, d, p, n):
    g.A(f"s_mov_b32 s{d}, s{p}"); g.A(f"s_mov_b32 s{d+1}, s{p+1}"); g.A(f"s_mov_b32 s{d+2}, {n}"); g.A(f"s_mov_b32 s{d+3}, 0x20000")

WS = "s[40:43]"
TAG = "s8"

def vr(b, n): return f"v[{b}:{b+n-1}]"

def gen(cfg):
    g = G(cfg); A = g.A
    g.stamp(0)
    A("s_cmp_ge_u32 s2, 256"); A("s_cbranch_scc1 L_end")
    A("s_load_dwordx16 s[16:31], s[0:1], 0")
    A("s_load_dwordx4 s[32:35], s[0:1], 64")
    A("s_load_dwordx2 s[36:37], s[0:1], 80")
    A("v_lshrrev_b32 v7, 6, v0"); A("v_and_b32 v1, 63, v0")
    A("s_and_b32 s4, s2, 7"); A("s_lshr_b32 s5, s2, 3"); A("s_lshl_b32 s6, s4, 5")
    A("v_readfirstlane_b32 s3, v7")
    A("s_add_u32 s6, s6, s5")
    A("v_and_b32 v2, 15, v1"); A("v_lshrrev_b32 v3, 4, v1")
    A("s_cmp_eq_u32 s3, 4"); A("s_cbranch_scc1 L_loader")
    compute(g)
    loader(g)
    g.lab("L_end"); A("s_endpgm")
    return wrap("\n".join(g.L), 256, 320, LDS_END, vgpr=256, sgpr=102)

def loader(g):
    A = g.A; cfg = g.cfg
    g.lab("L_loader")
    A("v_lshrrev_b32 v10, 3, v1")
    A("v_and_b32 v11, 7, v1")
    A("v_bfe_u32 v12, v1, 4, 1")
    A("v_lshlrev_b32 v12, 1, v12")
    A("v_xor_b32 v11, v11, v12"); A("v_lshlrev_b32 v11, 4, v11")
    A("v_lshlrev_b32 v13, 13, v10"); A("v_add_u32 v20, v13, v11"); A("v_xor_b32 v21, 64, v20")
    A("s_movk_i32 s7, 7168"); A("v_mul_lo_u32 v13, v10, s7"); A("v_add_u32 v22, v13, v11"); A("v_xor_b32 v14, 64, v11"); A("v_add_u32 v23, v13, v14")
    A("v_xor_b32 v10, v2, v3"); A("v_lshlrev_b32 v10, 4, v10"); A("v_lshlrev_b32 v11, 8, v3"); A("v_add_u32 v24, v10, v11")
    for k in range(1, 4): A(f"v_xor_b32 v{24+k}, {k*64}, v24")
    A("v_lshlrev_b32 v10, 1, v3"); A("v_xor_b32 v10, v2, v10"); A("v_lshlrev_b32 v10, 4, v10")
    A("v_add_u32 v28, v10, v11"); A("v_xor_b32 v29, 128, v28")
    A("v_lshlrev_b32 v12, 11, v3"); A("v_add_u32 v30, v10, v12"); A("v_xor_b32 v31, 128, v30")
    A(f"v_mov_b32 v5, {FL}"); A("v_mov_b32 v6, 1")
    A("s_lshr_b32 s9, s6, 6"); A("s_lshl_b32 s9, s9, 21"); A("s_and_b32 s10, s6, 63"); A("s_lshl_b32 s10, s10, 7"); A("s_add_u32 s9, s9, s10")
    A("s_lshr_b32 s10, s6, 3"); A("s_lshl_b32 s10, s10, 20"); A("s_and_b32 s11, s6, 7"); A("s_lshl_b32 s11, s11, 15"); A("s_add_u32 s10, s10, s11"); A("s_add_u32 s10, s10, 0xC0000")
    A("s_lshl_b32 s11, s5, 18"); A("s_lshl_b32 s12, s4, 8"); A("s_add_u32 s11, s11, s12")
    A(f"s_mul_hi_u32 s13, s5, {(2**32+6)//7}"); A("s_mul_i32 s14, s13, 7"); A("s_sub_u32 s14, s5, s14")
    A("s_mul_i32 s12, s4, 7"); A("s_add_u32 s12, s12, s14"); A("s_lshl_b32 s12, s12, 7"); A(f"s_mul_i32 s13, s13, {256*7168}"); A("s_add_u32 s12, s12, s13")
    A("s_lshr_b32 s13, s6, 3"); A(f"s_mul_i32 s13, s13, {112*2048}"); A("s_and_b32 s14, s5, 7"); A("s_lshl_b32 s14, s14, 8"); A("s_add_u32 s13, s13, s14")
    A("s_waitcnt lgkmcnt(0)")
    srd(g, 52, 22, 8 << 20); srd(g, 56, 18, 32 << 20); srd(g, 60, 20, 32 << 20); srd(g, 64, 24, 8 << 20)
    nt = " nt" if cfg.nt else ""
    D = cfg.depth
    segs = [
        ("wq", 52, "s9", 8 * 8192, 32, R0, lambda i: 20 + (i & 1)),
        ("K", 56, "s10", 1024, 32, R1, lambda i: 24 + (i & 3)),
        ("V", 60, "s10", 1024, 32, R2, lambda i: 28 + (i & 1)),
        ("wo", 64, "s11", 4 * 2048, 32, R3, lambda i: 30 + ((i >> 1) & 1)),
        ("w1", 44, "s12", 8 * 7168, 32, R0, lambda i: 22 + (i & 1)),
        ("w2", 48, "s13", 4 * 2048, 28, R1, lambda i: 30 + ((i >> 1) & 1)),
    ]
    state = dict(issued=0, pend=[])
    def land_upto(idx):
        while state["pend"] and state["pend"][0][0] <= idx:
            si = state["pend"].pop(0)[1]
            A(f"ds_write_b32 v5, v6 offset:{F_LAND+4*si}")
            g.stamp(2 + si)
    def seg(si):
        nm, sr, base, step, n, lds, pat = segs[si]
        A(f"s_mov_b32 s15, {base}")
        for i in range(n):
            if state["issued"] == D and si == 0 or (state["issued"] == D and D >= 32):
                pass
            if state["issued"] >= D:
                A(f"s_waitcnt vmcnt({D-1})")
                land_upto(state["issued"] - D)
            A(f"s_mov_b32 m0, {lds + i*1024}")
            if state["issued"] == D - 1 + 0 and not state.get("bar"):
                pass
            A(f"buffer_load_dwordx4 v{pat(i)}, s[{sr}:{sr+3}], s15 offen{nt} lds" if i else "s_nop 0\n    " + f"buffer_load_dwordx4 v{pat(i)}, s[{sr}:{sr+3}], s15 offen{nt} lds")
            if i < n - 1: A(f"s_add_u32 s15, s15, {step}")
            state["issued"] += 1
            if state["issued"] == D and not state.get("bar"):
                state["bar"] = True
                srd(g, 44, 28, 7340032); srd(g, 48, 30, 7340032)
                A("s_barrier")
        state["pend"].append((state["issued"] - 1, si))
    def waitflag(off, val):
        l = g.newlab("L_lw")
        g.lab(l)
        A(f"ds_read_b32 v8, v5 offset:{off}"); A("s_waitcnt lgkmcnt(0)"); A(f"v_cmp_gt_u32 vcc, {val}, v8"); A(f"s_cbranch_vccnz {l}")
    g.stamp(1)
    for si in range(4): seg(si)
    st_save = dict(issued=state["issued"], pend=list(state["pend"]))
    A("s_cmp_ge_u32 s5, 28"); A("s_cbranch_scc1 L_ld_now1")
    waitflag(F_FREE0, 4)
    seg(4)
    waitflag(F_FREE1, 4)
    seg(5)
    for (idx, si) in list(state["pend"]):
        A(f"s_waitcnt vmcnt({state['issued']-1-idx})"); land_upto(idx)
    A("s_branch L_ld_done")
    g.lab("L_ld_now1")
    state["issued"] = st_save["issued"]; state["pend"] = st_save["pend"]
    waitflag(F_FREE1, 4)
    seg(5)
    for (idx, si) in list(state["pend"]):
        A(f"s_waitcnt vmcnt({state['issued']-1-idx})"); land_upto(idx)
    g.lab("L_ld_done")
    if cfg.stamps:
        srd(g, 40, 36, 256 << 20)
        A("s_branch L_stamps")
    A("s_endpgm")

def sync_arrive(g, k):
    g.A("s_mov_b64 exec, 1"); g.A(f"ds_add_u32 v5, v6 offset:{F_SYNC+4*k}"); g.A("s_mov_b64 exec, -1")

def flag_add(g, off):
    g.A("s_mov_b64 exec, 1"); g.A(f"ds_add_u32 v5, v6 offset:{off}"); g.A("s_mov_b64 exec, -1")

def sync_wait(g, k, reads, n=4):
    l = g.newlab("L_sw")
    g.lab(l)
    g.A(f"ds_read_b32 v10, v5 offset:{F_SYNC+4*k}")
    for r in reads: g.A(r)
    g.A("s_waitcnt lgkmcnt(0)")
    g.A(f"v_cmp_gt_u32 vcc, {n}, v10"); g.A(f"s_cbranch_vccnz {l}")

def flag_wait(g, off, val=1, sleep=0):
    l = g.newlab("L_fw")
    g.lab(l)
    if sleep: g.A(f"s_sleep {sleep}")
    g.A(f"ds_read_b32 v10, v5 offset:{off}"); g.A("s_waitcnt lgkmcnt(0)")
    g.A(f"v_cmp_gt_u32 vcc, {val}, v10"); g.A(f"s_cbranch_vccnz {l}")

def gather(g, loads, tagregs):
    l = g.newlab("L_g"); e = g.newlab("L_ge")
    g.A("s_mov_b32 s57, 0")
    g.lab(l)
    for s in loads: g.A(s)
    g.A("s_add_u32 s57, s57, 1")
    g.A("s_cmp_gt_u32 s57, 30000")
    g.A(f"s_cbranch_scc1 {e}")
    g.A("s_waitcnt vmcnt(0)")
    g.A(f"v_xor_b32 v10, {TAG}, v{tagregs[0]}")
    for t in tagregs[1:]: g.A(f"v_bitop3_b32 v10, v10, v{t}, {TAG} bitop3:0xF6")
    g.A("v_cmp_ne_u32 vcc, 0, v10")
    g.A(f"s_cbranch_vccnz {l}")
    g.lab(e)
    g.A("s_waitcnt vmcnt(0)")

def preload_or_later(g, land_idx, body, sreg):
    skip = g.newlab("L_pl")
    g.A(f"ds_read_b32 v10, v5 offset:{F_LAND+4*land_idx}"); g.A(f"s_mov_b32 {sreg}, 0"); g.A("s_waitcnt lgkmcnt(0)")
    g.A("v_cmp_gt_u32 vcc, 1, v10"); g.A(f"s_cbranch_vccnz {skip}")
    body(); g.A(f"s_mov_b32 {sreg}, 1")
    g.lab(skip)

def preload_finish(g, land_idx, body, sreg):
    skip = g.newlab("L_pf")
    g.A(f"s_cmp_eq_u32 {sreg}, 1"); g.A(f"s_cbranch_scc1 {skip}")
    flag_wait(g, F_LAND + 4 * land_idx)
    body()
    g.lab(skip)

def pack24(g, d, a):
    g.A(f"v_perm_b32 v{d}, v{a}, v{a+3}, s52"); g.A(f"v_perm_b32 v{d+1}, v{a+1}, v{a+3}, s53"); g.A(f"v_perm_b32 v{d+2}, v{a+2}, v{a+3}, s54")
    g.A(f"v_mov_b32 v{d+3}, {TAG}")

def unpack24_d(g, b):
    g.A(f"v_perm_b32 v{b+3}, v{b+1}, v{b}, s55"); g.A(f"v_perm_b32 v{b+3}, v{b+2}, v{b+3}, s56")

def bf16_round(g, d, s):
    g.A(f"v_cvt_pk_bf16_f32 v{d}, v{s}, v{s}"); g.A(f"v_lshlrev_b32 v{d}, 16, v{d}")

def xrow_reduce(g, regs, op="v_add_f32", steps=("ror8", "p16", "p32"), tmp=11):
    for st in steps:
        if st.startswith("ror"):
            g.nop(2)
            for r in regs: g.A(f"{op}_dpp v{r}, v{r}, v{r} row_ror:{st[3:]} row_mask:0xf bank_mask:0xf")
        else:
            ins = "v_permlane16_swap_b32" if st == "p16" else "v_permlane32_swap_b32"
            for k, r in enumerate(regs): g.A(f"v_mov_b32 v{tmp+k}, v{r}")
            g.nop(2)
            for k, r in enumerate(regs): g.A(f"{ins} v{r}, v{tmp+k}")
            g.nop(1)
            for k, r in enumerate(regs): g.A(f"{op} v{r}, v{r}, v{tmp+k}")

XF = 32
WF = 64
AC = 128
GD = 160
aXNw, aF544, aF288, aF288h, aT128, aT256a, aT256b, aT2ha, aT2hb, aV, aK = range(208, 219)
gT16, gQpub, gQget, aQw, aCBw, aCBr, gAPc, gASc, gOPw, gL16, aHw, gUPw, gCSr, gSTr, aAw, gOUT, aCBs = range(219, 236)

def compute(g):
    A = g.A; cfg = g.cfg
    ST = cfg.st_cross; STL = cfg.st_local; LD = "sc1"
    A(f"v_mov_b32 v5, {FL}"); A("v_mov_b32 v6, 1")
    A("v_mov_b32 v10, 0"); A("v_lshlrev_b32 v11, 2, v1"); A(f"v_add_u32 v11, {FL}, v11")
    g.setexec(0xffffffff); A("ds_write_b32 v11, v10"); A("s_mov_b64 exec, -1")
    A("v_lshrrev_b32 v12, 5, v0"); A("v_and_b32 v13, 31, v0")
    A("v_lshlrev_b32 v14, 11, v12"); A("v_lshl_add_u32 v14, v13, 4, v14")
    A("s_lshr_b32 s9, s6, 6")
    for i in range(4):
        A(f"s_add_u32 s{58+i}, s9, {i}"); A(f"s_and_b32 s{58+i}, s{58+i}, 3"); A(f"s_lshl_b32 s{58+i}, s{58+i}, 9")
    A("v_and_b32 v15, 7, v1"); A("v_lshlrev_b32 v16, 11, v15"); A("s_lshl_b32 s10, s6, 3")
    A("s_waitcnt lgkmcnt(0)")
    srd(g, 44, 16, 16384)
    for i in range(4): A(f"buffer_load_dwordx4 v[{GD+4*i}:{GD+4*i+3}], v14, s[44:47], s{58+i} offen")
    A("buffer_load_dwordx2 v[8:9], v16, s[44:47], s10 offen")
    A("s_load_dword s8, s[36:37], 0")
    srd(g, 40, 36, 256 << 20); srd(g, 48, 32, 16384)
    A("s_barrier")
    g.stamp(1)
    A("s_mov_b32 s52, 0x07060501"); A("s_mov_b32 s53, 0x07060502"); A("s_mov_b32 s54, 0x07060503"); A("s_mov_b32 s55, 0x0C04000C"); A("s_mov_b32 s56, 0x0402010C")
    A(f"v_mul_u32_u24 v17, 544, v12"); A(f"v_lshl_add_u32 v{aXNw}, v13, 4, v17"); A(f"v_add_u32 v{aXNw}, {XN}, v{aXNw}")
    A("v_and_b32 v17, 7, v2")
    A("v_mul_u32_u24 v18, 544, v17"); A(f"v_lshl_add_u32 v{aF544}, v3, 4, v18"); A(f"v_add_u32 v{aF544}, {XN}, v{aF544}")
    A("v_mul_u32_u24 v18, 288, v17"); A(f"v_add_u32 v18, {QL}, v18"); A(f"v_lshl_add_u32 v{aF288}, v3, 4, v18"); A(f"v_lshl_add_u32 v{aF288h}, v3, 3, v18")
    A("v_bfe_u32 v19, v1, 2, 2")
    A("v_and_b32 v20, 3, v1"); A("v_lshlrev_b32 v20, 3, v20")
    A("v_and_b32 v21, 1, v3")
    A("v_lshl_add_u32 v22, v3, 3, v19")
    A("v_lshrrev_b32 v23, 1, v19"); A("v_lshl_add_u32 v23, v21, 1, v23"); A("v_xor_b32 v23, s3, v23")
    A("v_lshl_add_u32 v23, v23, 5, v20"); A(f"v_lshl_add_u32 v{aT128}, v22, 7, v23")
    A("v_lshl_add_u32 v24, v21, 2, v19")
    A("s_lshl_b32 s11, s3, 1")
    A("v_xor_b32 v23, s11, v24"); A("v_lshl_add_u32 v23, v23, 5, v20"); A(f"v_lshl_add_u32 v{aT256a}, v22, 8, v23"); A(f"v_xor_b32 v{aT256b}, 32, v{aT256a}")
    A("v_lshl_add_u32 v25, v3, 2, v19")
    A("v_lshrrev_b32 v26, 1, v3"); A("v_lshl_add_u32 v26, v26, 2, v19"); A("v_xor_b32 v26, s11, v26"); A("v_lshl_add_u32 v26, v26, 5, v20")
    A(f"v_lshl_add_u32 v{aT2ha}, v25, 8, v26"); A(f"v_xor_b32 v{aT2hb}, 32, v{aT2ha}")
    A("s_lshl_b32 s12, s3, 13")
    A("v_lshl_add_u32 v26, v24, 5, v20"); A(f"v_lshl_add_u32 v{aV}, v25, 8, v26"); A(f"v_add_u32 v{aV}, s12, v{aV}"); A(f"v_add_u32 v{aV}, {R2}, v{aV}")
    A("v_xor_b32 v26, v3, v2"); A("v_lshlrev_b32 v26, 4, v26"); A(f"v_lshl_add_u32 v{aK}, v2, 8, v26"); A(f"v_add_u32 v{aK}, s12, v{aK}"); A(f"v_add_u32 v{aK}, {R1}, v{aK}")
    A(f"v_lshlrev_b32 v{gT16}, 4, v0")
    A(f"v_lshlrev_b32 v{gL16}, 4, v1")
    A("s_lshl_b32 s13, s3, 6"); A("v_lshlrev_b32 v26, 9, v2"); A(f"v_lshl_add_u32 v{gQpub}, v3, 4, v26"); A(f"v_add_u32 v{gQpub}, s13, v{gQpub}")
    A("v_lshrrev_b32 v26, 4, v0"); A("v_lshlrev_b32 v26, 12, v26"); A(f"v_lshl_add_u32 v{gQget}, v2, 4, v26")
    A("v_mul_u32_u24 v26, 288, v12"); A(f"v_lshl_add_u32 v{aQw}, v13, 3, v26"); A(f"v_add_u32 v{aQw}, {QL}, v{aQw}")
    A("s_mul_i32 s13, s3, 4224"); A("v_mul_u32_u24 v26, 528, v2"); A(f"v_lshl_add_u32 v{aCBw}, v3, 4, v26"); A(f"v_add_u32 v{aCBw}, s13, v{aCBw}"); A(f"v_add_u32 v{aCBw}, {CB}, v{aCBw}")
    A("v_mul_u32_u24 v26, 528, v12"); A(f"v_add_u32 v26, {CB}, v26"); A(f"v_lshl_add_u32 v{aCBr}, v13, 4, v26"); A(f"v_add_u32 v{aCBs}, 512, v26")
    A("v_lshrrev_b32 v26, 5, v1"); A("v_lshlrev_b32 v26, 14, v26"); A("v_and_b32 v27, 31, v1"); A(f"v_lshl_add_u32 v{gAPc}, v27, 4, v26")
    A(f"v_lshlrev_b32 v{gASc}, 7, v15")
    A("v_lshrrev_b32 v26, 3, v2"); A("v_add_u32 v26, s11, v26"); A("v_lshl_add_u32 v26, v26, 2, v3"); A("v_lshlrev_b32 v26, 12, v26"); A(f"v_lshl_add_u32 v{gOPw}, v17, 4, v26")
    A("v_mul_u32_u24 v26, 544, v15"); A("v_lshrrev_b32 v27, 3, v0"); A(f"v_lshl_add_u32 v{aHw}, v27, 3, v26"); A(f"v_add_u32 v{aHw}, {HL}, v{aHw}")
    A("s_lshl_b32 s13, s3, 9"); A("v_lshlrev_b32 v26, 7, v3"); A(f"v_lshl_add_u32 v{gUPw}, v2, 4, v26"); A(f"v_add_u32 v{gUPw}, s13, v{gUPw}")
    A(f"v_lshlrev_b32 v{gCSr}, 4, v27"); A(f"v_lshlrev_b32 v{gSTr}, 4, v15")
    A("v_mul_u32_u24 v26, 288, v15"); A(f"v_lshl_add_u32 v{aAw}, v27, 3, v26"); A(f"v_add_u32 v{aAw}, {AL}, v{aAw}")
    A(f"v_mov_b32 v{gOUT}, v16")
    A(f"s_mul_hi_u32 s62, s5, {(2**32+6)//7}"); A("s_mul_i32 s63, s62, 7"); A("s_sub_u32 s63, s5, s63")
    A("s_waitcnt lgkmcnt(0)")
    A("s_mul_i32 s8, s8, 0x9E3779B1"); A("s_add_u32 s8, s8, 0x7F4A7C15")
    U = 96
    A("s_waitcnt vmcnt(1)")
    for d in range(16):
        A(f"v_lshlrev_b32 v{U+2*d}, 16, v{GD+d}"); A(f"v_and_b32 v{U+2*d+1}, 0xffff0000, v{GD+d}")
    for k in range(4): A(f"v_add_f32 v{20+k}, v{U+k}, v{U+4+k}")
    for d in range(8, 32): A(f"v_add_f32 v{20+(d&3)}, v{20+(d&3)}, v{U+d}")
    A("v_add_f32 v20, v20, v21"); A("v_add_f32 v22, v22, v23"); A("v_add_f32 v20, v20, v22")
    xrow_reduce(g, [20], steps=("ror8", "ror4", "ror2", "ror1", "p16"))
    A("v_mul_f32 v20, 0x3a800000, v20")
    for k in range(4): A(f"v_mov_b32 v{24+k}, 0")
    for d in range(32):
        A(f"v_sub_f32 v{21+(d&1)}, v{U+d}, v20"); A(f"v_fmac_f32 v{24+(d&3)}, v{21+(d&1)}, v{21+(d&1)}")
    A("v_add_f32 v24, v24, v25"); A("v_add_f32 v26, v26, v27"); A("v_add_f32 v24, v24, v26")
    xrow_reduce(g, [24], steps=("ror8", "ror4", "ror2", "ror1", "p16"))
    A("v_mul_f32 v24, 0x3a800000, v24")
    bf16_round(g, 20, 20); bf16_round(g, 24, 24)
    A("v_add_f32 v24, 0x3727c5ac, v24"); bf16_round(g, 24, 24)
    A("v_sqrt_f32 v24, v24"); g.nop(1); bf16_round(g, 24, 24)
    A("v_rcp_f32 v25, v24")
    for d in range(8): A(f"v_sub_f32 v{U+d}, v{U+d}, v20")
    for d in range(4): A(f"v_cvt_pk_bf16_f32 v{12+d}, v{U+2*d}, v{U+2*d+1}")
    for d in range(4):
        A(f"v_lshlrev_b32 v{U+2*d}, 16, v{12+d}"); A(f"v_and_b32 v{U+2*d+1}, 0xffff0000, v{12+d}")
    for d in range(8): A(f"v_mul_f32 v{U+8+d}, v{U+d}, v25")
    for d in range(8): A(f"v_fma_f32 v{U+16+d}, -v{U+8+d}, v24, v{U+d}")
    for d in range(8): A(f"v_fmac_f32 v{U+8+d}, v{U+16+d}, v25")
    for d in range(4): A(f"v_cvt_pk_bf16_f32 v{12+d}, v{U+8+2*d}, v{U+8+2*d+1}")
    A(f"ds_write_b128 v{aXNw}, v[12:15]")
    sync_arrive(g, 0)
    g.stamp(2)
    sync_wait(g, 0, [f"ds_read_b128 v[{XF+4*k}:{XF+4*k+3}], v{aF544} offset:{k*64}" for k in range(8)])
    def pre128():
        for k in range(8):
            for q in range(2):
                A(f"ds_read_b64_tr_b16 v[{WF+4*k+2*q}:{WF+4*k+2*q+1}], v{aT128} offset:{R0+k*4096+q*512}")
    flag_wait(g, F_LAND + 0)
    pre128()
    flag_add(g, F_FREE0)
    for k in range(8):
        A(f"s_waitcnt lgkmcnt({min(15, 15-2*k) if k else 15})") if k > 0 or True else None
        A(f"v_mfma_f32_16x16x32_bf16 v[{AC}:{AC+3}], v[{WF+4*k}:{WF+4*k+3}], v[{XF+4*k}:{XF+4*k+3}], {'0' if k == 0 else f'v[{AC}:{AC+3}]'}")
    g.stamp(3)
    A("s_lshl_b32 s9, s6, 12"); A(f"s_add_u32 s9, s9, {W_QP}")
    A(f"v_mov_b32 v14, {TAG}"); A(f"v_mov_b32 v15, {TAG}"); A(f"v_mov_b32 v18, {TAG}"); A(f"v_mov_b32 v19, {TAG}")
    g.setexec(0xff00ff00ff00ff)
    g.nop(4)
    A(f"v_mov_b32 v12, v{AC}"); A(f"v_mov_b32 v13, v{AC+1}"); A(f"v_mov_b32 v16, v{AC+2}"); A(f"v_mov_b32 v17, v{AC+3}")
    A(f"buffer_store_dwordx4 v[12:15], v{gQpub}, {WS}, s9 offen {ST}")
    A(f"buffer_store_dwordx4 v[16:19], v{gQpub}, {WS}, s9 offen offset:256 {ST}")
    A("s_mov_b64 exec, -1")
    def preK():
        for k in range(1, 4): A(f"v_xor_b32 v{20+k}, {k*64}, v{aK}")
        for tl in range(2):
            for k in range(4):
                A(f"ds_read_b128 v[{WF+16*tl+4*k}:{WF+16*tl+4*k+3}], v{aK if k == 0 else 20+k} offset:{tl*4096}")
        flag_add(g, F_FREE1)
    def preV():
        for t in range(1, 8): A(f"v_xor_b32 v{20+t}, {t*32}, v{aV}")
        for t in range(8):
            for q in range(2):
                A(f"ds_read_b64_tr_b16 v[{WF+32+4*t+2*q}:{WF+32+4*t+2*q+1}], v{aV if t == 0 else 20+t} offset:{q*4096}")
    A("s_lshr_b32 s9, s5, 3"); A("s_lshl_b32 s9, s9, 16"); A("s_lshl_b32 s10, s4, 9"); A("s_add_u32 s9, s9, s10"); A(f"s_add_u32 s58, s9, {W_QP}")
    for i in range(1, 4): A(f"s_add_u32 s{58+i}, s58, {i*262144}")
    preload_or_later(g, 1, preK, "s64")
    if cfg.d1: A(f"s_sleep {cfg.d1}")
    gather(g, [f"buffer_load_dwordx4 v[{GD+8*k+4*h}:{GD+8*k+4*h+3}], v{gQget}, {WS}, s{58+k} offen offset:{256*h} {LD}" for k in range(4) for h in range(2)],
           [GD + 4 * j + 2 for j in range(8)] + [GD + 4 * j + 3 for j in range(8)])
    g.stamp(4)
    for h in range(2):
        for e in range(2):
            A(f"v_add_f32 v{12+2*h+e}, v{GD+4*h+e}, v{GD+8+4*h+e}"); A(f"v_add_f32 v{16+2*h+e}, v{GD+16+4*h+e}, v{GD+24+4*h+e}")
    for e in range(4): A(f"v_add_f32 v{12+e}, v{12+e}, v{16+e}")
    A("v_cvt_pk_bf16_f32 v12, v12, v13"); A("v_cvt_pk_bf16_f32 v13, v14, v15")
    A(f"ds_write_b64 v{aQw}, v[12:13]")
    sync_arrive(g, 1)
    preload_finish(g, 1, preK, "s64")
    preload_or_later(g, 2, preV, "s65")
    sync_wait(g, 1, [f"ds_read_b128 v[{XF+4*k}:{XF+4*k+3}], v{aF288} offset:{k*64}" for k in range(4)])
    for k in range(4):
        for tl in range(2):
            A(f"v_mfma_f32_16x16x32_bf16 v[{AC+4*tl}:{AC+4*tl+3}], v[{WF+16*tl+4*k}:{WF+16*tl+4*k+3}], v[{XF+4*k}:{XF+4*k+3}], {'0' if k == 0 else f'v[{AC+4*tl}:{AC+4*tl+3}]'}")
    A("s_mov_b32 s9, 0x3db504f3"); A("s_mov_b32 s10, 0x3fb8aa3b")
    g.nop(7)
    for p in range(4): A(f"v_cvt_pk_bf16_f32 v{12+p}, v{AC+2*p}, v{AC+2*p+1}")
    for p in range(4):
        A(f"v_lshlrev_b32 v{16+2*p}, 16, v{12+p}"); A(f"v_and_b32 v{17+2*p}, 0xffff0000, v{12+p}")
    for e in range(8): A(f"v_mul_f32 v{16+e}, s9, v{16+e}")
    for p in range(4): A(f"v_cvt_pk_bf16_f32 v{12+p}, v{16+2*p}, v{17+2*p}")
    for p in range(4):
        A(f"v_lshlrev_b32 v{16+2*p}, 16, v{12+p}"); A(f"v_and_b32 v{17+2*p}, 0xffff0000, v{12+p}")
    A("v_max3_f32 v24, v16, v17, v18"); A("v_max3_f32 v25, v19, v20, v21"); A("v_max3_f32 v24, v24, v22, v23"); A("v_max_f32 v24, v24, v25")
    xrow_reduce(g, [24], op="v_max_f32", steps=("p16", "p32"))
    for e in range(8): A(f"v_sub_f32 v{16+e}, v{16+e}, v24")
    for e in range(8): A(f"v_mul_f32 v{16+e}, s10, v{16+e}")
    for e in range(8): A(f"v_exp_f32 v{16+e}, v{16+e}")
    A("v_mul_f32 v24, s10, v24")
    for p in range(4): A(f"v_cvt_pk_bf16_f32 v{XF+p}, v{16+2*p}, v{17+2*p}")
    A("v_add_f32 v25, v16, v17"); A("v_add_f32 v26, v18, v19"); A("v_add_f32 v27, v20, v21"); A("v_add_f32 v28, v22, v23")
    A("v_add_f32 v25, v25, v26"); A("v_add_f32 v27, v27, v28"); A("v_add_f32 v25, v25, v27")
    g.stamp(5)
    A(f"v_mov_b32 v{XF+4}, v24"); A(f"v_mov_b32 v{XF+5}, v25")
    preload_finish(g, 2, preV, "s65")
    A("s_waitcnt lgkmcnt(0)")
    for t in range(8):
        A(f"v_mfma_f32_16x16x32_bf16 v[{AC+4*t}:{AC+4*t+3}], v[{WF+32+4*t}:{WF+32+4*t+3}], v[{XF}:{XF+3}], 0")
    xrow_reduce(g, [XF + 5], steps=("p16", "p32"))
    g.setexec(0xff00ff00ff00ff)
    g.nop(2)
    for t in range(8): A(f"ds_write_b128 v{aCBw}, v[{AC+4*t}:{AC+4*t+3}] offset:{t*64}")
    g.setexec(0xff)
    A(f"ds_write_b64 v{aCBw}, v[{XF+4}:{XF+5}] offset:512")
    A("s_mov_b64 exec, -1")
    sync_arrive(g, 2)
    A("s_lshl_b32 s9, s6, 12"); A(f"s_add_u32 s9, s9, {W_AP}"); A("s_lshl_b32 s10, s6, 7"); A(f"s_add_u32 s10, s10, {W_AS}")
    sync_wait(g, 2, [f"ds_read_b64 v[{12+2*w}:{13+2*w}], v{aCBs} offset:{w*4224}" for w in range(4)] +
                    [f"ds_read_b128 v[{GD+4*w}:{GD+4*w+3}], v{aCBr} offset:{w*4224}" for w in range(4)])
    A("v_max3_f32 v20, v12, v14, v16"); A("v_max_f32 v20, v20, v18")
    for w in range(4): A(f"v_sub_f32 v{12+2*w}, v{12+2*w}, v20")
    for w in range(4): A(f"v_exp_f32 v{12+2*w}, v{12+2*w}")
    g.nop(1)
    for e in range(4): A(f"v_mul_f32 v{24+e}, v12, v{GD+e}")
    for w in range(1, 4):
        for e in range(4): A(f"v_fmac_f32 v{24+e}, v{12+2*w}, v{GD+4*w+e}")
    A("v_mul_f32 v21, v12, v13")
    for w in range(1, 4): A(f"v_fmac_f32 v21, v{12+2*w}, v{13+2*w}")
    pack24(g, 28, 24)
    A(f"v_mov_b32 v22, {TAG}"); A(f"v_mov_b32 v23, {TAG}")
    A(f"buffer_store_dwordx4 v[28:31], v{gT16}, {WS}, s9 offen {STL}")
    A("v_lshrrev_b32 v12, 1, v0")
    g.setexec(0x100000001)
    A(f"buffer_store_dwordx4 v[20:23], v12, {WS}, s10 offen {STL}")
    A("s_mov_b64 exec, -1")
    g.stamp(6)
    def pre256(base):
        def f():
            for tl in range(2):
                for k in range(4 if base == R3 else 3):
                    for q in range(2):
                        A(f"ds_read_b64_tr_b16 v[{WF+16*tl+4*k+2*q}:{WF+16*tl+4*k+2*q+1}], v{aT256a+tl} offset:{(base - (R3 if base == R3 else 0)) + k*8192+q*1024}")
                if base != R3:
                    A(f"ds_read_b64_tr_b16 v[{WF+16*tl+12}:{WF+16*tl+13}], v{aT2ha+tl} offset:{base+96*256}")
        return f
    A(f"s_cmp_lg_u32 s3, {cfg.wc}"); A("s_cbranch_scc1 L_nocomb")
    A("s_and_b32 s9, s6, 0xf8"); A("s_lshl_b32 s10, s9, 12"); A("s_and_b32 s11, s6, 7"); A("s_lshl_b32 s12, s11, 9"); A("s_add_u32 s10, s10, s12"); A(f"s_add_u32 s58, s10, {W_AP}")
    for i in range(1, 4): A(f"s_add_u32 s{58+i}, s58, {i*4096}")
    A("s_lshl_b32 s10, s9, 7"); A("s_lshl_b32 s12, s11, 4"); A("s_add_u32 s10, s10, s12"); A(f"s_add_u32 s10, s10, {W_AS}")
    A("s_lshl_b32 s12, s5, 12"); A("s_lshl_b32 s13, s4, 9"); A("s_add_u32 s12, s12, s13"); A(f"s_add_u32 s12, s12, {W_OB}")
    if cfg.d2: A(f"s_sleep {cfg.d2}")
    gather(g, [f"buffer_load_dwordx4 v[{GD+16}:{GD+19}], v{gASc}, {WS}, s10 offen {LD}"] +
              [f"buffer_load_dwordx4 v[{GD+4*k}:{GD+4*k+3}], v{gAPc}, {WS}, s{58+k} offen {LD}" for k in range(4)],
           [GD + 18, GD + 19] + [GD + 4 * k + 3 for k in range(4)])
    M, Lr = GD + 16, GD + 17
    A(f"v_mov_b32 v20, v{M}")
    xrow_reduce(g, [20], op="v_max_f32", steps=("ror4", "ror2", "ror1"))
    A(f"v_sub_f32 v21, v{M}, v20"); A("v_exp_f32 v21, v21")
    for k in range(4): unpack24_d(g, GD + 4 * k)
    A(f"v_mul_f32 v22, v21, v{Lr}")
    xrow_reduce(g, [22], steps=("ror4", "ror2", "ror1"))
    A("v_rcp_f32 v22, v22"); g.nop(1); A("v_mul_f32 v21, v21, v22")
    A("v_mov_b32 v23, v21"); g.nop(2)
    A("v_mov_b32_dpp v21, v23 row_ror:4 row_mask:0xc bank_mask:0xf")
    for e in range(4): A(f"v_mov_b32 v{24+e}, 0")
    g.nop(2)
    for k in range(4):
        for e in range(4): A(f"v_fmac_f32_dpp v{24+e}, v21, v{GD+4*k+e} row_newbcast:{k} row_mask:0xf bank_mask:0xf")
    xrow_reduce(g, [24, 25, 26, 27], steps=("p32",), tmp=12)
    A("v_cvt_pk_bf16_f32 v28, v24, v25"); A("v_cvt_pk_bf16_f32 v29, v26, v27"); A(f"v_mov_b32 v30, {TAG}"); A(f"v_mov_b32 v31, {TAG}")
    g.setexec(0xffffffff)
    A(f"buffer_store_dwordx4 v[28:31], v{gL16}, {WS}, s12 offen {ST}")
    A("s_mov_b64 exec, -1")
    flag_add(g, F_PUB2)
    g.lab("L_nocomb")
    g.stamp(7)
    A(f"v_add_u32 v{aT256a}, {R3}, v{aT256a}"); A(f"v_add_u32 v{aT256b}, {R3}, v{aT256b}")
    preload_or_later(g, 3, pre256(R3), "s64")
    A("s_lshl_b32 s58, s5, 12"); A(f"s_add_u32 s58, s58, {W_OB}")
    flag_wait(g, F_PUB2)
    if cfg.d3: A(f"s_sleep {cfg.d3}")
    gather(g, [f"buffer_load_dwordx4 v[{GD}:{GD+3}], v{gT16}, {WS}, s58 offen {LD}"], [GD + 2, GD + 3])
    A(f"ds_write_b64 v{aQw}, v[{GD}:{GD+1}] offset:{OL-QL}")
    sync_arrive(g, 3)
    g.stamp(8)
    preload_finish(g, 3, pre256(R3), "s64")
    A(f"v_subrev_u32 v{aT256a}, {R3}, v{aT256a}"); A(f"v_subrev_u32 v{aT256b}, {R3}, v{aT256b}")
    A("s_lshl_b32 s9, s4, 17"); A("s_lshl_b32 s10, s5, 7"); A("s_add_u32 s9, s9, s10"); A(f"s_add_u32 s9, s9, {W_OP}")
    A("v_cmp_lt_u32 s[14:15], 7, v2")
    sync_wait(g, 3, [f"ds_read_b128 v[{XF+4*k}:{XF+4*k+3}], v{aF288} offset:{OL-QL+k*64}" for k in range(4)])
    for k in range(4):
        for tl in range(2):
            A(f"v_mfma_f32_16x16x32_bf16 v[{AC+4*tl}:{AC+4*tl+3}], v[{WF+16*tl+4*k}:{WF+16*tl+4*k+3}], v[{XF+4*k}:{XF+4*k+3}], {'0' if k == 0 else f'v[{AC+4*tl}:{AC+4*tl+3}]'}")
    g.nop(8)
    for e in range(4): A(f"v_cndmask_b32 v{24+e}, v{AC+e}, v{AC+4+e}, s[14:15]")
    pack24(g, 28, 24)
    A(f"buffer_store_dwordx4 v[28:31], v{gOPw}, {WS}, s9 offen {STL}")
    g.stamp(9)
    def red32(soff, after):
        for i in range(1, 4): A(f"s_add_u32 s{58+i}, {soff}, {i*1024}")
        gather(g, [f"buffer_load_dwordx4 v[{GD+4*k}:{GD+4*k+3}], v{gL16}, {WS}, {soff if k == 0 else f's{58+k}'} offen {LD}" for k in range(4)], [GD + 4 * k + 3 for k in range(4)])
        for k in range(4): unpack24_d(g, GD + 4 * k)
        for e in range(4):
            A(f"v_add_f32 v{24+e}, v{GD+e}, v{GD+4+e}"); A(f"v_add_f32 v{28+e}, v{GD+8+e}, v{GD+12+e}")
        for e in range(4): A(f"v_add_f32 v{24+e}, v{24+e}, v{28+e}")
        xrow_reduce(g, [24, 25, 26, 27], steps=("ror8", "p16", "p32"), tmp=12)
        A("v_cvt_pk_bf16_f32 v12, v24, v25"); A("v_cvt_pk_bf16_f32 v13, v26, v27")
        for p in range(2):
            A(f"v_lshlrev_b32 v{24+2*p}, 16, v{12+p}"); A(f"v_and_b32 v{25+2*p}, 0xffff0000, v{12+p}")
            A(f"v_lshlrev_b32 v{28+2*p}, 16, v{8+p}"); A(f"v_and_b32 v{29+2*p}, 0xffff0000, v{8+p}")
        for e in range(4): A(f"v_add_f32 v{24+e}, v{24+e}, v{28+e}")
        A("v_cvt_pk_bf16_f32 v8, v24, v25"); A("v_cvt_pk_bf16_f32 v9, v26, v27")
    A(f"s_cmp_lg_u32 s3, {cfg.wr}"); A("s_cbranch_scc1 L_nored")
    A("s_lshl_b32 s58, s6, 12"); A(f"s_add_u32 s58, s58, {W_OP}")
    A("s_lshl_b32 s12, s6, 7"); A(f"s_add_u32 s12, s12, {W_HB}")
    if cfg.d4: A(f"s_sleep {cfg.d4}")
    red32("s58", None)
    A("v_mov_b32 v12, v8"); A("v_mov_b32 v13, v9"); A(f"v_mov_b32 v14, {TAG}"); A(f"v_mov_b32 v15, {TAG}")
    g.setexec(0xff)
    A(f"buffer_store_dwordx4 v[12:15], v{gL16}, {WS}, s12 offen {ST}")
    A("s_mov_b64 exec, -1")
    flag_add(g, F_PUB4)
    g.lab("L_nored")
    g.stamp(10)
    A("s_cmp_ge_u32 s5, 28"); A("s_cselect_b32 s66, 1, 0")
    A("s_sub_u32 s9, s5, 28"); A("s_cselect_b32 s62, s62, s9") if False else None
    A("s_cmp_ge_u32 s5, 28"); A("s_cbranch_scc0 L_f1a"); A("s_sub_u32 s62, s5, 28"); g.lab("L_f1a")
    A("s_lshl_b32 s9, s4, 2"); A("s_add_u32 s9, s9, s62")
    A(f"s_mul_i32 s10, s9, {112*128}"); A("s_lshl_b32 s11, s63, 11"); A("s_add_u32 s10, s10, s11"); A(f"s_add_u32 s67, s10, {W_UP}")
    A(f"s_mul_i32 s10, s9, {112*16}"); A("s_lshl_b32 s11, s63, 8"); A("s_add_u32 s10, s10, s11"); A(f"s_add_u32 s68, s10, {W_CS}")
    A("s_lshl_b32 s10, s9, 7"); A(f"s_add_u32 s69, s10, {W_ST}")
    def pre_w1():
        pre128()
        A("v_mov_b32 v12, 0x3f803f80"); A("v_mov_b32 v13, v12"); A("v_mov_b32 v14, v12"); A("v_mov_b32 v15, v12")
        A("s_waitcnt lgkmcnt(0)"); g.nop(1)
        for k in range(8):
            A(f"v_mfma_f32_16x16x32_bf16 v[{AC+4}:{AC+7}], v[{WF+4*k}:{WF+4*k+3}], v[12:15], {'0' if k == 0 else f'v[{AC+4}:{AC+7}]'}")
        A(f"v_lshrrev_b32 v16, 3, v{gUPw}")
        g.nop(8)
        pack24(g, 28, AC + 4)
        g.setexec(0x1000100010001)
        A(f"buffer_store_dwordx4 v[28:31], v16, {WS}, s68 offen {STL}")
        A("s_mov_b64 exec, -1")
    A("s_mov_b32 s64, 1")
    A("s_cmp_eq_u32 s66, 1"); A("s_cbranch_scc1 L_f1b")
    preload_or_later(g, 4, pre_w1, "s64")
    g.lab("L_f1b")
    A("s_lshl_b32 s58, s62, 13"); A(f"s_add_u32 s58, s58, {W_HB}"); A("s_add_u32 s59, s58, 4096")
    flag_wait(g, F_PUB4)
    if cfg.d5: A(f"s_sleep {cfg.d5}")
    gather(g, [f"buffer_load_dwordx4 v[{GD+4*k}:{GD+4*k+3}], v{gT16}, {WS}, s{58+k} offen {LD}" for k in range(2)], [GD + 2, GD + 3, GD + 6, GD + 7])
    A(f"ds_write_b64 v{aHw}, v[{GD}:{GD+1}]"); A(f"ds_write_b64 v{aHw}, v[{GD+4}:{GD+5}] offset:256")
    sync_arrive(g, 4)
    g.stamp(11)
    preload_finish(g, 4, pre_w1, "s64")
    sync_wait(g, 4, [f"ds_read_b128 v[{XF+4*k}:{XF+4*k+3}], v{aF544} offset:{HL-XN+k*64}" for k in range(8)])
    A("s_cmp_eq_u32 s66, 1"); A("s_cbranch_scc1 L_stat")
    for k in range(8):
        A(f"v_mfma_f32_16x16x32_bf16 v[{AC}:{AC+3}], v[{WF+4*k}:{WF+4*k+3}], v[{XF+4*k}:{XF+4*k+3}], {'0' if k == 0 else f'v[{AC}:{AC+3}]'}")
    g.setexec(0xff00ff00ff00ff)
    g.nop(7)
    pack24(g, 28, AC)
    A(f"buffer_store_dwordx4 v[28:31], v{gUPw}, {WS}, s67 offen {STL}")
    A("s_mov_b64 exec, -1")
    A("s_branch L_f2")
    g.lab("L_stat")
    A("s_cmp_lg_u32 s3, 0"); A("s_cbranch_scc1 L_f2")
    A("v_mov_b32 v12, 0x3f803f80"); A("v_mov_b32 v13, v12"); A("v_mov_b32 v14, v12"); A("v_mov_b32 v15, v12")
    g.nop(2)
    for k in range(8):
        A(f"v_mfma_f32_16x16x32_bf16 v[{AC}:{AC+3}], v[{XF+4*k}:{XF+4*k+3}], v[{XF+4*k}:{XF+4*k+3}], {'0' if k == 0 else f'v[{AC}:{AC+3}]'}")
        A(f"v_mfma_f32_16x16x32_bf16 v[{AC+4}:{AC+7}], v[12:15], v[{XF+4*k}:{XF+4*k+3}], {'0' if k == 0 else f'v[{AC+4}:{AC+7}]'}")
    A("v_and_b32 v16, 3, v2"); A("v_cmp_eq_u32 s[14:15], 1, v16"); A("v_cmp_eq_u32 s[10:11], 2, v16"); A("v_cmp_eq_u32 s[12:13], 3, v16")
    A("v_lshlrev_b32 v17, 4, v2")
    g.nop(6)
    A(f"v_cndmask_b32 v21, v{AC}, v{AC+1}, s[14:15]"); A(f"v_cndmask_b32 v21, v21, v{AC+2}, s[10:11]"); A(f"v_cndmask_b32 v21, v21, v{AC+3}, s[12:13]")
    A(f"v_mov_b32 v20, v{AC+4}"); A(f"v_mov_b32 v22, {TAG}"); A(f"v_mov_b32 v23, {TAG}")
    g.setexec(0xf0000f)
    A(f"buffer_store_dwordx4 v[20:23], v17, {WS}, s69 offen {STL}")
    A("s_mov_b64 exec, -1")
    g.lab("L_f2")
    g.stamp(12)
    preload_or_later(g, 5, pre256(R1), "s64")
    A("s_lshr_b32 s9, s5, 3")
    A(f"s_mul_i32 s10, s4, {4*112*128}"); A(f"s_mul_i32 s11, s9, {28*128}"); A("s_add_u32 s10, s10, s11"); A(f"s_add_u32 s58, s10, {W_UP}")
    for i in range(1, 4): A(f"s_add_u32 s{58+i}, s58, {i*112*128}")
    A(f"s_mul_i32 s10, s4, {4*112*16}"); A(f"s_mul_i32 s11, s9, {28*16}"); A("s_add_u32 s10, s10, s11"); A(f"s_add_u32 s62, s10, {W_CS}"); A(f"s_add_u32 s63, s62, {2*112*16}")
    A("s_lshl_b32 s10, s4, 9"); A(f"s_add_u32 s67, s10, {W_ST}")
    A("s_cmp_eq_u32 s3, 3"); A("s_cselect_b32 s11, 0, -1"); A("s_mov_b32 s10, -1"); A("s_mov_b64 exec, s[10:11]")
    if cfg.d6: A(f"s_sleep {cfg.d6}")
    gather(g, [f"buffer_load_dwordx4 v[{GD+32+4*k}:{GD+35+4*k}], v{gSTr}, {WS}, s67 offen offset:{k*128} {LD}" for k in range(4)] +
              [f"buffer_load_dwordx4 v[{GD+16+4*k}:{GD+19+4*k}], v{gCSr}, {WS}, s{62+(k>>1)} offen offset:{(k&1)*112*16} {LD}" for k in range(4)] +
              [f"buffer_load_dwordx4 v[{GD+4*k}:{GD+4*k+3}], v{gT16}, {WS}, s{58+k} offen {LD}" for k in range(4)],
           [GD + 4 * k + 3 for k in range(12)])
    S = GD + 32
    A(f"v_add_f32 v12, v{S}, v{S+4}"); A(f"v_add_f32 v13, v{S+8}, v{S+12}"); A(f"v_add_f32 v14, v{S+1}, v{S+5}"); A(f"v_add_f32 v15, v{S+9}, v{S+13}")
    A("v_add_f32 v12, v12, v13"); A("v_add_f32 v14, v14, v15")
    A("v_mul_f32 v12, 0x3a800000, v12"); A("v_mul_f32 v14, 0x3a800000, v14")
    A("v_fma_f32 v14, -v12, v12, v14"); A("v_max_f32 v14, 0, v14")
    bf16_round(g, 12, 12); bf16_round(g, 14, 14)
    A("v_add_f32 v14, 0x3727c5ac, v14"); bf16_round(g, 14, 14)
    A("v_sqrt_f32 v14, v14")
    for k in range(8): unpack24_d(g, GD + 4 * k)
    bf16_round(g, 14, 14); A("v_rcp_f32 v14, v14")
    for e in range(4):
        A(f"v_add_f32 v{16+e}, v{GD+e}, v{GD+4+e}"); A(f"v_add_f32 v{20+e}, v{GD+8+e}, v{GD+12+e}")
        A(f"v_add_f32 v{24+e}, v{GD+16+e}, v{GD+20+e}"); A(f"v_add_f32 v{28+e}, v{GD+24+e}, v{GD+28+e}")
    for e in range(4):
        A(f"v_add_f32 v{16+e}, v{16+e}, v{20+e}"); A(f"v_add_f32 v{24+e}, v{24+e}, v{28+e}")
    for e in range(4): A(f"v_fma_f32 v{16+e}, -v12, v{24+e}, v{16+e}")
    for e in range(4): A(f"v_mul_f32 v{16+e}, v{16+e}, v14")
    for e in range(4): A(f"v_max_f32 v{16+e}, 0, v{16+e}")
    A("v_cvt_pk_bf16_f32 v12, v16, v17"); A("v_cvt_pk_bf16_f32 v13, v18, v19")
    A(f"ds_write_b64 v{aAw}, v[12:13]")
    A("s_mov_b64 exec, -1")
    sync_arrive(g, 5)
    g.stamp(13)
    preload_finish(g, 5, pre256(R1), "s64")
    A("s_and_b32 s10, s5, 7"); A("s_lshl_b32 s10, s10, 17"); A("s_lshr_b32 s11, s6, 3"); A("s_lshl_b32 s11, s11, 7"); A("s_add_u32 s10, s10, s11"); A(f"s_add_u32 s9, s10, {W_FP}")
    A("v_cmp_lt_u32 s[14:15], 7, v2")
    sync_wait(g, 5, [f"ds_read_b128 v[{XF+4*k}:{XF+4*k+3}], v{aF288} offset:{AL-QL+k*64}" for k in range(3)] + [f"ds_read_b64 v[{XF+12}:{XF+13}], v{aF288h} offset:{AL-QL+192}"])
    for k in range(3):
        for tl in range(2):
            A(f"v_mfma_f32_16x16x32_bf16 v[{AC+4*tl}:{AC+4*tl+3}], v[{WF+16*tl+4*k}:{WF+16*tl+4*k+3}], v[{XF+4*k}:{XF+4*k+3}], {'0' if k == 0 else f'v[{AC+4*tl}:{AC+4*tl+3}]'}")
    for tl in range(2):
        A(f"v_mfma_f32_16x16x16_bf16 v[{AC+4*tl}:{AC+4*tl+3}], v[{WF+16*tl+12}:{WF+16*tl+13}], v[{XF+12}:{XF+13}], v[{AC+4*tl}:{AC+4*tl+3}]")
    g.nop(8)
    for e in range(4): A(f"v_cndmask_b32 v{24+e}, v{AC+e}, v{AC+4+e}, s[14:15]")
    pack24(g, 28, 24)
    A(f"buffer_store_dwordx4 v[28:31], v{gOPw}, {WS}, s9 offen {ST}")
    g.stamp(14)
    A(f"s_cmp_lg_u32 s3, {cfg.wr}"); A("s_cbranch_scc1 L_fin_done")
    A("s_lshl_b32 s58, s6, 12"); A(f"s_add_u32 s58, s58, {W_FP}"); A("s_lshl_b32 s12, s6, 3")
    if cfg.d7: A(f"s_sleep {cfg.d7}")
    red32("s58", None)
    g.setexec(0xff)
    A(f"buffer_store_dwordx2 v[8:9], v{gOUT}, s[48:51], s12 offen")
    A("s_mov_b64 exec, 1")
    A("s_cmp_lg_u32 s2, 0"); A("s_cbranch_scc1 L_fin_done")
    A(f"v_mov_b32 v12, {TAG}"); A("v_mov_b32 v13, 0")
    A(f"buffer_store_dword v12, v13, {WS}, 0 offen sc1")
    g.lab("L_fin_done")
    g.stamp(15)
    if cfg.stamps:
        g.lab("L_stamps")
        A("s_mov_b64 exec, -1")
        A("s_waitcnt lgkmcnt(0)")
        for i in range(16): A(f"v_writelane_b32 v10, s{70+2*i}, {i}")
        A("s_lshl_b32 s9, s2, 4"); A("s_add_u32 s9, s9, s3"); A("s_lshl_b32 s9, s9, 6"); A(f"s_add_u32 s9, s9, {STAMP_OFF}")
        A("v_lshlrev_b32 v11, 2, v1")
        g.setexec(0xffff)
        A(f"buffer_store_dword v10, v11, {WS}, s9 offen")
    A("s_endpgm")

def parse(argv=None):
    ap = argparse.ArgumentParser()
    ap.add_argument("-o", default="sequential_preLN__sliding_block_cached__dense_activation_relu__decode.s")
    ap.add_argument("--stamps", type=int, default=0)
    ap.add_argument("--nt", type=int, default=1)
    ap.add_argument("--depth", type=int, default=24)
    ap.add_argument("--st_cross", default="sc1"); ap.add_argument("--st_local", default="sc1")
    ap.add_argument("--wc", type=int, default=1); ap.add_argument("--wr", type=int, default=2)
    for k, d in dict(d1=12, d2=12, d3=12, d4=12, d5=12, d6=12, d7=12).items(): ap.add_argument(f"--{k}", type=int, default=d)
    return ap.parse_args(argv)

if __name__ == "__main__":
    cfg = parse()
    open(cfg.o, "w").write(gen(cfg))
    print("LDS", LDS_END)
```

```python
import sys, argparse
sys.path.insert(0, "bench")
from asmlib import wrap

R0, R1, R2, R3 = 0, 32768, 65536, 98304
FL = 131072
XN = FL + 128
HL = XN + 8 * 544
QL = HL + 8 * 544
OL = QL + 8 * 288
AL = OL + 8 * 288
CB = AL + 8 * 288
LDS_END = CB + 4 * 8 * 528
assert LDS_END <= 163840, LDS_END
F_SYNC = 0
F_LAND = 32
F_FREE0, F_FREE1 = 56, 60
F_PUB2, F_PUB4 = 64, 68
F_HOLD = 72

W_EPOCH = 0
W_QP = 0x100000
W_AP = 0x200000
W_AS = 0x300000
W_OB = 0x310000
W_HB = 0x340000
W_OP = 0x400000
W_UP = 0x500000
W_CS = 0x580000
W_ST = 0x5A0000
W_FP = 0x600000
STAMP_OFF = 128 << 20

class G:
    def __init__(self, cfg):
        self.L = []; self.cfg = cfg; self.nlab = 0; self.nstamp = 0
    def A(self, s): self.L.append("    " + s)
    def lab(self, s): self.L.append(s + ":")
    def newlab(self, p="L"):
        self.nlab += 1; return f"{p}_{self.nlab}"
    def nop(self, n):
        while n > 0:
            k = min(n, 16); self.A(f"s_nop {k-1}"); n -= k
    def setexec(self, m):
        lo, hi = m & 0xffffffff, m >> 32
        if hi == 0 and lo <= 64: self.A(f"s_mov_b64 exec, {lo}")
        else:
            self.A(f"s_mov_b32 exec_lo, {hex(lo)}"); self.A(f"s_mov_b32 exec_hi, {hex(hi)}")
    def stamp(self, idx):
        if self.cfg.stamps: self.A(f"s_memrealtime s[{70+2*idx}:{71+2*idx}]")

def srd(g, d, p, n):
    g.A(f"s_mov_b32 s{d}, s{p}"); g.A(f"s_mov_b32 s{d+1}, s{p+1}"); g.A(f"s_mov_b32 s{d+2}, {n}"); g.A(f"s_mov_b32 s{d+3}, 0x20000")

WS = "s[40:43]"
TAG = "s8"

def vr(b, n): return f"v[{b}:{b+n-1}]"

def gen(cfg):
    g = G(cfg); A = g.A
    g.stamp(0)
    A("s_cmp_ge_u32 s2, 256"); A("s_cbranch_scc1 L_end")
    A("s_load_dwordx16 s[16:31], s[0:1], 0")
    A("s_load_dwordx4 s[32:35], s[0:1], 64")
    A("s_load_dwordx2 s[36:37], s[0:1], 80")
    A("v_lshrrev_b32 v7, 6, v0"); A("v_and_b32 v1, 63, v0")
    A("s_and_b32 s4, s2, 7"); A("s_lshr_b32 s5, s2, 3"); A("s_lshl_b32 s6, s4, 5")
    A("v_readfirstlane_b32 s3, v7")
    A("s_add_u32 s6, s6, s5")
    A("v_and_b32 v2, 15, v1"); A("v_lshrrev_b32 v3, 4, v1")
    A("s_cmp_eq_u32 s3, 4"); A("s_cbranch_scc1 L_loader")
    compute(g)
    loader(g)
    g.lab("L_end"); A("s_endpgm")
    return wrap("\n".join(g.L), 256, 320, LDS_END, vgpr=256, sgpr=102)

def loader(g):
    A = g.A; cfg = g.cfg
    g.lab("L_loader")
    A("v_lshrrev_b32 v10, 3, v1")
    A("v_and_b32 v11, 7, v1")
    A("v_bfe_u32 v12, v1, 4, 1")
    A("v_lshlrev_b32 v12, 1, v12")
    A("v_xor_b32 v11, v11, v12"); A("v_lshlrev_b32 v11, 4, v11")
    A("v_lshlrev_b32 v13, 13, v10"); A("v_add_u32 v20, v13, v11"); A("v_xor_b32 v21, 64, v20")
    A("s_movk_i32 s7, 7168"); A("v_mul_lo_u32 v13, v10, s7"); A("v_add_u32 v22, v13, v11"); A("v_xor_b32 v14, 64, v11"); A("v_add_u32 v23, v13, v14")
    A("v_xor_b32 v10, v2, v3"); A("v_lshlrev_b32 v10, 4, v10"); A("v_lshlrev_b32 v11, 8, v3"); A("v_add_u32 v24, v10, v11")
    for k in range(1, 4): A(f"v_xor_b32 v{24+k}, {k*64}, v24")
    A("v_lshlrev_b32 v10, 1, v3"); A("v_xor_b32 v10, v2, v10"); A("v_lshlrev_b32 v10, 4, v10")
    A("v_add_u32 v28, v10, v11"); A("v_xor_b32 v29, 128, v28")
    A("v_lshlrev_b32 v12, 11, v3"); A("v_add_u32 v30, v10, v12"); A("v_xor_b32 v31, 128, v30")
    A(f"v_mov_b32 v5, {FL}"); A("v_mov_b32 v6, 1")
    A("s_lshr_b32 s9, s6, 6"); A("s_lshl_b32 s9, s9, 21"); A("s_and_b32 s10, s6, 63"); A("s_lshl_b32 s10, s10, 7"); A("s_add_u32 s9, s9, s10")
    A("s_lshr_b32 s10, s6, 3"); A("s_lshl_b32 s10, s10, 20"); A("s_and_b32 s11, s6, 7"); A("s_lshl_b32 s11, s11, 15"); A("s_add_u32 s10, s10, s11"); A("s_add_u32 s10, s10, 0xC0000")
    A("s_lshl_b32 s11, s5, 18"); A("s_lshl_b32 s12, s4, 8"); A("s_add_u32 s11, s11, s12")
    A(f"s_mul_hi_u32 s13, s5, {(2**32+6)//7}"); A("s_mul_i32 s14, s13, 7"); A("s_sub_u32 s14, s5, s14")
    A("s_mul_i32 s12, s4, 7"); A("s_add_u32 s12, s12, s14"); A("s_lshl_b32 s12, s12, 7"); A(f"s_mul_i32 s13, s13, {256*7168}"); A("s_add_u32 s12, s12, s13")
    A("s_lshr_b32 s13, s6, 3"); A(f"s_mul_i32 s13, s13, {112*2048}"); A("s_and_b32 s14, s5, 7"); A("s_lshl_b32 s14, s14, 8"); A("s_add_u32 s13, s13, s14")
    A("s_waitcnt lgkmcnt(0)")
    srd(g, 52, 22, 8 << 20); srd(g, 56, 18, 32 << 20); srd(g, 60, 20, 32 << 20); srd(g, 64, 24, 8 << 20)
    nt = " nt" if cfg.nt else ""
    D = cfg.depth
    segs = [
        ("wq", 52, "s9", 8 * 8192, 32, R0, lambda i: 20 + (i & 1)),
        ("K", 56, "s10", 1024, 32, R1, lambda i: 24 + (i & 3)),
        ("V", 60, "s10", 1024, 32, R2, lambda i: 28 + (i & 1)),
        ("wo", 64, "s11", 4 * 2048, 32, R3, lambda i: 30 + ((i >> 1) & 1)),
        ("w1", 44, "s12", 8 * 7168, 32, R0, lambda i: 22 + (i & 1)),
        ("w2", 48, "s13", 4 * 2048, 28, R1, lambda i: 30 + ((i >> 1) & 1)),
    ]
    state = dict(issued=0, pend=[])
    def land_upto(idx):
        while state["pend"] and state["pend"][0][0] <= idx:
            si = state["pend"].pop(0)[1]
            A(f"ds_write_b32 v5, v6 offset:{F_LAND+4*si}")
            g.stamp(2 + si)
    def seg(si):
        nm, sr, base, step, n, lds, pat = segs[si]
        A(f"s_mov_b32 s15, {base}")
        for i in range(n):
            if state["issued"] == D and si == 0 or (state["issued"] == D and D >= 32):
                pass
            if state["issued"] >= D:
                A(f"s_waitcnt vmcnt({D-1})")
                land_upto(state["issued"] - D)
            A(f"s_mov_b32 m0, {lds + i*1024}")
            if state["issued"] == D - 1 + 0 and not state.get("bar"):
                pass
            A(f"buffer_load_dwordx4 v{pat(i)}, s[{sr}:{sr+3}], s15 offen{nt} lds" if i else "s_nop 0\n    " + f"buffer_load_dwordx4 v{pat(i)}, s[{sr}:{sr+3}], s15 offen{nt} lds")
            if i < n - 1: A(f"s_add_u32 s15, s15, {step}")
            state["issued"] += 1
            if state["issued"] == D and not state.get("bar"):
                state["bar"] = True
                srd(g, 44, 28, 7340032); srd(g, 48, 30, 7340032)
                A("s_barrier")
        state["pend"].append((state["issued"] - 1, si))
    def waitflag(off, val):
        l = g.newlab("L_lw")
        g.lab(l)
        A(f"ds_read_b32 v8, v5 offset:{off}"); A("s_waitcnt lgkmcnt(0)"); A(f"v_cmp_gt_u32 vcc, {val}, v8"); A(f"s_cbranch_vccnz {l}")
    g.stamp(1)
    for si in range(4): seg(si)
    st_save = dict(issued=state["issued"], pend=list(state["pend"]))
    A("s_cmp_ge_u32 s5, 28"); A("s_cbranch_scc1 L_ld_now1")
    waitflag(F_FREE0, 4)
    seg(4)
    waitflag(F_FREE1, 4)
    seg(5)
    for (idx, si) in list(state["pend"]):
        A(f"s_waitcnt vmcnt({state['issued']-1-idx})"); land_upto(idx)
    A("s_branch L_ld_done")
    g.lab("L_ld_now1")
    state["issued"] = st_save["issued"]; state["pend"] = st_save["pend"]
    waitflag(F_FREE1, 4)
    seg(5)
    for (idx, si) in list(state["pend"]):
        A(f"s_waitcnt vmcnt({state['issued']-1-idx})"); land_upto(idx)
    g.lab("L_ld_done")
    if cfg.stamps == 1:
        srd(g, 40, 36, 256 << 20)
        A("s_branch L_stamps")
    A("s_endpgm")

def sync_arrive(g, k):
    g.A("s_mov_b64 exec, 1"); g.A(f"ds_add_u32 v5, v6 offset:{F_SYNC+4*k}"); g.A("s_mov_b64 exec, -1")

def flag_add(g, off):
    g.A("s_mov_b64 exec, 1"); g.A(f"ds_add_u32 v5, v6 offset:{off}"); g.A("s_mov_b64 exec, -1")

def sync_wait(g, k, reads, n=4):
    l = g.newlab("L_sw")
    g.lab(l)
    g.A(f"ds_read_b32 v10, v5 offset:{F_SYNC+4*k}")
    for r in reads: g.A(r)
    g.A("s_waitcnt lgkmcnt(0)")
    g.A(f"v_cmp_gt_u32 vcc, {n}, v10"); g.A(f"s_cbranch_vccnz {l}")

def flag_wait(g, off, val=1, sleep=0):
    l = g.newlab("L_fw")
    g.lab(l)
    if sleep: g.A(f"s_sleep {sleep}")
    g.A(f"ds_read_b32 v10, v5 offset:{off}"); g.A("s_waitcnt lgkmcnt(0)")
    g.A(f"v_cmp_gt_u32 vcc, {val}, v10"); g.A(f"s_cbranch_vccnz {l}")

def gather(g, loads, tagregs):
    l = g.newlab("L_g"); e = g.newlab("L_ge")
    g.A("s_mov_b32 s57, 0")
    g.lab(l)
    for s in loads: g.A(s)
    g.A("s_add_u32 s57, s57, 1")
    g.A("s_cmp_gt_u32 s57, 30000")
    g.A(f"s_cbranch_scc1 {e}")
    g.A("s_waitcnt vmcnt(0)")
    g.A(f"v_xor_b32 v10, {TAG}, v{tagregs[0]}")
    for t in tagregs[1:]: g.A(f"v_bitop3_b32 v10, v10, v{t}, {TAG} bitop3:0xF6")
    g.A("v_cmp_ne_u32 vcc, 0, v10")
    g.A(f"s_cbranch_vccnz {l}")
    g.lab(e)
    g.A("s_waitcnt vmcnt(0)")

def preload_or_later(g, land_idx, body, sreg):
    skip = g.newlab("L_pl")
    g.A(f"ds_read_b32 v10, v5 offset:{F_LAND+4*land_idx}"); g.A(f"s_mov_b32 {sreg}, 0"); g.A("s_waitcnt lgkmcnt(0)")
    g.A("v_cmp_gt_u32 vcc, 1, v10"); g.A(f"s_cbranch_vccnz {skip}")
    body(); g.A(f"s_mov_b32 {sreg}, 1")
    g.lab(skip)

def preload_finish(g, land_idx, body, sreg):
    skip = g.newlab("L_pf")
    g.A(f"s_cmp_eq_u32 {sreg}, 1"); g.A(f"s_cbranch_scc1 {skip}")
    flag_wait(g, F_LAND + 4 * land_idx)
    body()
    g.lab(skip)

def pack24(g, d, a):
    g.A(f"v_perm_b32 v{d}, v{a}, v{a+3}, s52"); g.A(f"v_perm_b32 v{d+1}, v{a+1}, v{a+3}, s53"); g.A(f"v_perm_b32 v{d+2}, v{a+2}, v{a+3}, s54")
    g.A(f"v_mov_b32 v{d+3}, {TAG}")

def unpack24_d(g, b):
    g.A(f"v_perm_b32 v{b+3}, v{b+1}, v{b}, s55"); g.A(f"v_perm_b32 v{b+3}, v{b+2}, v{b+3}, s56")

def bf16_round(g, d, s):
    g.A(f"v_cvt_pk_bf16_f32 v{d}, v{s}, v{s}"); g.A(f"v_lshlrev_b32 v{d}, 16, v{d}")

def xrow_reduce(g, regs, op="v_add_f32", steps=("ror8", "p16", "p32"), tmp=11):
    for st in steps:
        if st.startswith("ror"):
            g.nop(2)
            for r in regs: g.A(f"{op}_dpp v{r}, v{r}, v{r} row_ror:{st[3:]} row_mask:0xf bank_mask:0xf")
        else:
            ins = "v_permlane16_swap_b32" if st == "p16" else "v_permlane32_swap_b32"
            for k, r in enumerate(regs): g.A(f"v_mov_b32 v{tmp+k}, v{r}")
            g.nop(2)
            for k, r in enumerate(regs): g.A(f"{ins} v{r}, v{tmp+k}")
            g.nop(1)
            for k, r in enumerate(regs): g.A(f"{op} v{r}, v{r}, v{tmp+k}")

XF = 32
WF = 64
AC = 128
GD = 160
aXNw, aF544, aF288, aF288h, aT128, aT256a, aT256b, aT2ha, aT2hb, aV, aK = range(208, 219)
gT16, gQpub, gQget, aQw, aCBw, aCBr, gAPc, gASc, gOPw, gL16, aHw, gUPw, gCSr, gSTr, aAw, gOUT, aCBs = range(219, 236)

def compute(g):
    A = g.A; cfg = g.cfg
    ST = cfg.st_cross; STL = cfg.st_local; LD = "sc1"
    A(f"v_mov_b32 v5, {FL}"); A("v_mov_b32 v6, 1")
    A("v_mov_b32 v10, 0"); A("v_lshlrev_b32 v11, 2, v1"); A(f"v_add_u32 v11, {FL}, v11")
    g.setexec(0xffffffff); A("ds_write_b32 v11, v10"); A("s_mov_b64 exec, -1")
    A("v_lshrrev_b32 v12, 5, v0"); A("v_and_b32 v13, 31, v0")
    A("v_lshlrev_b32 v14, 11, v12"); A("v_lshl_add_u32 v14, v13, 4, v14")
    A("s_lshr_b32 s9, s6, 6")
    for i in range(4):
        A(f"s_add_u32 s{58+i}, s9, {i}"); A(f"s_and_b32 s{58+i}, s{58+i}, 3"); A(f"s_lshl_b32 s{58+i}, s{58+i}, 9")
    A("v_and_b32 v15, 7, v1"); A("v_lshlrev_b32 v16, 11, v15"); A("s_lshl_b32 s10, s6, 3")
    A("s_waitcnt lgkmcnt(0)")
    srd(g, 44, 16, 16384)
    for i in range(4): A(f"buffer_load_dwordx4 v[{GD+4*i}:{GD+4*i+3}], v14, s[44:47], s{58+i} offen")
    A("buffer_load_dwordx2 v[8:9], v16, s[44:47], s10 offen")
    A("s_load_dword s8, s[36:37], 0")
    srd(g, 40, 36, 256 << 20); srd(g, 48, 32, 16384)
    A("s_barrier")
    g.stamp(1)
    A("s_mov_b32 s52, 0x07060501"); A("s_mov_b32 s53, 0x07060502"); A("s_mov_b32 s54, 0x07060503"); A("s_mov_b32 s55, 0x0C04000C"); A("s_mov_b32 s56, 0x0402010C")
    A(f"v_mul_u32_u24 v17, 544, v12"); A(f"v_lshl_add_u32 v{aXNw}, v13, 4, v17"); A(f"v_add_u32 v{aXNw}, {XN}, v{aXNw}")
    A("v_and_b32 v17, 7, v2")
    A("v_mul_u32_u24 v18, 544, v17"); A(f"v_lshl_add_u32 v{aF544}, v3, 4, v18"); A(f"v_add_u32 v{aF544}, {XN}, v{aF544}")
    A("v_mul_u32_u24 v18, 288, v17"); A(f"v_add_u32 v18, {QL}, v18"); A(f"v_lshl_add_u32 v{aF288}, v3, 4, v18"); A(f"v_lshl_add_u32 v{aF288h}, v3, 3, v18")
    A("v_bfe_u32 v19, v1, 2, 2")
    A("v_and_b32 v20, 3, v1"); A("v_lshlrev_b32 v20, 3, v20")
    A("v_and_b32 v21, 1, v3")
    A("v_lshl_add_u32 v22, v3, 3, v19")
    A("v_lshrrev_b32 v23, 1, v19"); A("v_lshl_add_u32 v23, v21, 1, v23"); A("v_xor_b32 v23, s3, v23")
    A("v_lshl_add_u32 v23, v23, 5, v20"); A(f"v_lshl_add_u32 v{aT128}, v22, 7, v23")
    A("v_lshl_add_u32 v24, v21, 2, v19")
    A("s_lshl_b32 s11, s3, 1")
    A("v_xor_b32 v23, s11, v24"); A("v_lshl_add_u32 v23, v23, 5, v20"); A(f"v_lshl_add_u32 v{aT256a}, v22, 8, v23"); A(f"v_xor_b32 v{aT256b}, 32, v{aT256a}")
    A("v_lshl_add_u32 v25, v3, 2, v19")
    A("v_lshrrev_b32 v26, 1, v3"); A("v_lshl_add_u32 v26, v26, 2, v19"); A("v_xor_b32 v26, s11, v26"); A("v_lshl_add_u32 v26, v26, 5, v20")
    A(f"v_lshl_add_u32 v{aT2ha}, v25, 8, v26"); A(f"v_xor_b32 v{aT2hb}, 32, v{aT2ha}")
    A("s_lshl_b32 s12, s3, 13")
    A("v_lshl_add_u32 v26, v24, 5, v20"); A(f"v_lshl_add_u32 v{aV}, v25, 8, v26"); A(f"v_add_u32 v{aV}, s12, v{aV}"); A(f"v_add_u32 v{aV}, {R2}, v{aV}")
    A("v_xor_b32 v26, v3, v2"); A("v_lshlrev_b32 v26, 4, v26"); A(f"v_lshl_add_u32 v{aK}, v2, 8, v26"); A(f"v_add_u32 v{aK}, s12, v{aK}"); A(f"v_add_u32 v{aK}, {R1}, v{aK}")
    A(f"v_lshlrev_b32 v{gT16}, 4, v0")
    A(f"v_lshlrev_b32 v{gL16}, 4, v1")
    A("s_lshl_b32 s13, s3, 6"); A("v_lshlrev_b32 v26, 9, v2"); A(f"v_lshl_add_u32 v{gQpub}, v3, 4, v26"); A(f"v_add_u32 v{gQpub}, s13, v{gQpub}")
    A("v_lshrrev_b32 v26, 4, v0"); A("v_lshlrev_b32 v26, 12, v26"); A(f"v_lshl_add_u32 v{gQget}, v2, 4, v26")
    A("v_mul_u32_u24 v26, 288, v12"); A(f"v_lshl_add_u32 v{aQw}, v13, 3, v26"); A(f"v_add_u32 v{aQw}, {QL}, v{aQw}")
    A("s_mul_i32 s13, s3, 4224"); A("v_mul_u32_u24 v26, 528, v2"); A(f"v_lshl_add_u32 v{aCBw}, v3, 4, v26"); A(f"v_add_u32 v{aCBw}, s13, v{aCBw}"); A(f"v_add_u32 v{aCBw}, {CB}, v{aCBw}")
    A("v_mul_u32_u24 v26, 528, v12"); A(f"v_add_u32 v26, {CB}, v26"); A(f"v_lshl_add_u32 v{aCBr}, v13, 4, v26"); A(f"v_add_u32 v{aCBs}, 512, v26")
    A("v_lshrrev_b32 v26, 5, v1"); A("v_lshlrev_b32 v26, 14, v26"); A("v_and_b32 v27, 31, v1"); A(f"v_lshl_add_u32 v{gAPc}, v27, 4, v26")
    A(f"v_lshlrev_b32 v{gASc}, 7, v15")
    A("v_lshrrev_b32 v26, 3, v2"); A("v_add_u32 v26, s11, v26"); A("v_lshl_add_u32 v26, v26, 2, v3"); A("v_lshlrev_b32 v26, 12, v26"); A(f"v_lshl_add_u32 v{gOPw}, v17, 4, v26")
    A("v_mul_u32_u24 v26, 544, v15"); A("v_lshrrev_b32 v27, 3, v0"); A(f"v_lshl_add_u32 v{aHw}, v27, 3, v26"); A(f"v_add_u32 v{aHw}, {HL}, v{aHw}")
    A("s_lshl_b32 s13, s3, 9"); A("v_lshlrev_b32 v26, 7, v3"); A(f"v_lshl_add_u32 v{gUPw}, v2, 4, v26"); A(f"v_add_u32 v{gUPw}, s13, v{gUPw}")
    A(f"v_lshlrev_b32 v{gCSr}, 4, v27"); A(f"v_lshlrev_b32 v{gSTr}, 4, v15")
    A("v_mul_u32_u24 v26, 288, v15"); A(f"v_lshl_add_u32 v{aAw}, v27, 3, v26"); A(f"v_add_u32 v{aAw}, {AL}, v{aAw}")
    A(f"v_mov_b32 v{gOUT}, v16")
    A(f"s_mul_hi_u32 s62, s5, {(2**32+6)//7}"); A("s_mul_i32 s63, s62, 7"); A("s_sub_u32 s63, s5, s63")
    A("s_waitcnt lgkmcnt(0)")
    A("s_mul_i32 s8, s8, 0x9E3779B1"); A("s_add_u32 s8, s8, 0x7F4A7C15")
    U = 96
    A("s_waitcnt vmcnt(1)")
    for d in range(16):
        A(f"v_lshlrev_b32 v{U+2*d}, 16, v{GD+d}"); A(f"v_and_b32 v{U+2*d+1}, 0xffff0000, v{GD+d}")
    for k in range(4): A(f"v_add_f32 v{20+k}, v{U+k}, v{U+4+k}")
    for d in range(8, 32): A(f"v_add_f32 v{20+(d&3)}, v{20+(d&3)}, v{U+d}")
    A("v_add_f32 v20, v20, v21"); A("v_add_f32 v22, v22, v23"); A("v_add_f32 v20, v20, v22")
    xrow_reduce(g, [20], steps=("ror8", "ror4", "ror2", "ror1", "p16"))
    A("v_mul_f32 v20, 0x3a800000, v20")
    for k in range(4): A(f"v_mov_b32 v{24+k}, 0")
    for d in range(32):
        A(f"v_sub_f32 v{21+(d&1)}, v{U+d}, v20"); A(f"v_fmac_f32 v{24+(d&3)}, v{21+(d&1)}, v{21+(d&1)}")
    A("v_add_f32 v24, v24, v25"); A("v_add_f32 v26, v26, v27"); A("v_add_f32 v24, v24, v26")
    xrow_reduce(g, [24], steps=("ror8", "ror4", "ror2", "ror1", "p16"))
    A("v_mul_f32 v24, 0x3a800000, v24")
    bf16_round(g, 20, 20); bf16_round(g, 24, 24)
    A("v_add_f32 v24, 0x3727c5ac, v24"); bf16_round(g, 24, 24)
    A("v_sqrt_f32 v24, v24"); g.nop(1); bf16_round(g, 24, 24)
    A("v_rcp_f32 v25, v24")
    for d in range(8): A(f"v_sub_f32 v{U+d}, v{U+d}, v20")
    for d in range(4): A(f"v_cvt_pk_bf16_f32 v{12+d}, v{U+2*d}, v{U+2*d+1}")
    for d in range(4):
        A(f"v_lshlrev_b32 v{U+2*d}, 16, v{12+d}"); A(f"v_and_b32 v{U+2*d+1}, 0xffff0000, v{12+d}")
    for d in range(8): A(f"v_mul_f32 v{U+8+d}, v{U+d}, v25")
    for d in range(8): A(f"v_fma_f32 v{U+16+d}, -v{U+8+d}, v24, v{U+d}")
    for d in range(8): A(f"v_fmac_f32 v{U+8+d}, v{U+16+d}, v25")
    for d in range(4): A(f"v_cvt_pk_bf16_f32 v{12+d}, v{U+8+2*d}, v{U+8+2*d+1}")
    A(f"ds_write_b128 v{aXNw}, v[12:15]")
    sync_arrive(g, 0)
    g.stamp(2)
    sync_wait(g, 0, [f"ds_read_b128 v[{XF+4*k}:{XF+4*k+3}], v{aF544} offset:{k*64}" for k in range(8)])
    def pre128():
        for k in range(8):
            for q in range(2):
                A(f"ds_read_b64_tr_b16 v[{WF+4*k+2*q}:{WF+4*k+2*q+1}], v{aT128} offset:{R0+k*4096+q*512}")
    flag_wait(g, F_LAND + 0)
    pre128()
    flag_add(g, F_FREE0)
    for k in range(8):
        A(f"s_waitcnt lgkmcnt({min(15, 15-2*k) if k else 15})") if k > 0 or True else None
        A(f"v_mfma_f32_16x16x32_bf16 v[{AC}:{AC+3}], v[{WF+4*k}:{WF+4*k+3}], v[{XF+4*k}:{XF+4*k+3}], {'0' if k == 0 else f'v[{AC}:{AC+3}]'}")
    g.stamp(3)
    A("s_lshl_b32 s9, s6, 12"); A(f"s_add_u32 s9, s9, {W_QP}")
    A(f"v_mov_b32 v14, {TAG}"); A(f"v_mov_b32 v15, {TAG}"); A(f"v_mov_b32 v18, {TAG}"); A(f"v_mov_b32 v19, {TAG}")
    g.setexec(0xff00ff00ff00ff)
    g.nop(4)
    A(f"v_mov_b32 v12, v{AC}"); A(f"v_mov_b32 v13, v{AC+1}"); A(f"v_mov_b32 v16, v{AC+2}"); A(f"v_mov_b32 v17, v{AC+3}")
    A(f"buffer_store_dwordx4 v[12:15], v{gQpub}, {WS}, s9 offen {ST}")
    A(f"buffer_store_dwordx4 v[16:19], v{gQpub}, {WS}, s9 offen offset:256 {ST}")
    A("s_mov_b64 exec, -1")
    def preK():
        for k in range(1, 4): A(f"v_xor_b32 v{20+k}, {k*64}, v{aK}")
        for tl in range(2):
            for k in range(4):
                A(f"ds_read_b128 v[{WF+16*tl+4*k}:{WF+16*tl+4*k+3}], v{aK if k == 0 else 20+k} offset:{tl*4096}")
        flag_add(g, F_FREE1)
    def preV():
        for t in range(1, 8): A(f"v_xor_b32 v{20+t}, {t*32}, v{aV}")
        for t in range(8):
            for q in range(2):
                A(f"ds_read_b64_tr_b16 v[{WF+32+4*t+2*q}:{WF+32+4*t+2*q+1}], v{aV if t == 0 else 20+t} offset:{q*4096}")
    A("s_lshr_b32 s9, s5, 3"); A("s_lshl_b32 s9, s9, 16"); A("s_lshl_b32 s10, s4, 9"); A("s_add_u32 s9, s9, s10"); A(f"s_add_u32 s58, s9, {W_QP}")
    for i in range(1, 4): A(f"s_add_u32 s{58+i}, s58, {i*262144}")
    preload_or_later(g, 1, preK, "s64")
    if cfg.d1: A(f"s_sleep {cfg.d1}")
    gather(g, [f"buffer_load_dwordx4 v[{GD+8*k+4*h}:{GD+8*k+4*h+3}], v{gQget}, {WS}, s{58+k} offen offset:{256*h} {LD}" for k in range(4) for h in range(2)],
           [GD + 4 * j + 2 for j in range(8)] + [GD + 4 * j + 3 for j in range(8)])
    g.stamp(4)
    for h in range(2):
        for e in range(2):
            A(f"v_add_f32 v{12+2*h+e}, v{GD+4*h+e}, v{GD+8+4*h+e}"); A(f"v_add_f32 v{16+2*h+e}, v{GD+16+4*h+e}, v{GD+24+4*h+e}")
    for e in range(4): A(f"v_add_f32 v{12+e}, v{12+e}, v{16+e}")
    A("v_cvt_pk_bf16_f32 v12, v12, v13"); A("v_cvt_pk_bf16_f32 v13, v14, v15")
    A(f"ds_write_b64 v{aQw}, v[12:13]")
    sync_arrive(g, 1)
    preload_finish(g, 1, preK, "s64")
    preload_or_later(g, 2, preV, "s65")
    sync_wait(g, 1, [f"ds_read_b128 v[{XF+4*k}:{XF+4*k+3}], v{aF288} offset:{k*64}" for k in range(4)])
    for k in range(4):
        for tl in range(2):
            A(f"v_mfma_f32_16x16x32_bf16 v[{AC+4*tl}:{AC+4*tl+3}], v[{WF+16*tl+4*k}:{WF+16*tl+4*k+3}], v[{XF+4*k}:{XF+4*k+3}], {'0' if k == 0 else f'v[{AC+4*tl}:{AC+4*tl+3}]'}")
    A("s_mov_b32 s9, 0x3db504f3"); A("s_mov_b32 s10, 0x3fb8aa3b")
    g.nop(7)
    for p in range(4): A(f"v_cvt_pk_bf16_f32 v{12+p}, v{AC+2*p}, v{AC+2*p+1}")
    for p in range(4):
        A(f"v_lshlrev_b32 v{16+2*p}, 16, v{12+p}"); A(f"v_and_b32 v{17+2*p}, 0xffff0000, v{12+p}")
    for e in range(8): A(f"v_mul_f32 v{16+e}, s9, v{16+e}")
    for p in range(4): A(f"v_cvt_pk_bf16_f32 v{12+p}, v{16+2*p}, v{17+2*p}")
    for p in range(4):
        A(f"v_lshlrev_b32 v{16+2*p}, 16, v{12+p}"); A(f"v_and_b32 v{17+2*p}, 0xffff0000, v{12+p}")
    A("v_max3_f32 v24, v16, v17, v18"); A("v_max3_f32 v25, v19, v20, v21"); A("v_max3_f32 v24, v24, v22, v23"); A("v_max_f32 v24, v24, v25")
    xrow_reduce(g, [24], op="v_max_f32", steps=("p16", "p32"))
    for e in range(8): A(f"v_sub_f32 v{16+e}, v{16+e}, v24")
    for e in range(8): A(f"v_mul_f32 v{16+e}, s10, v{16+e}")
    for e in range(8): A(f"v_exp_f32 v{16+e}, v{16+e}")
    A("v_mul_f32 v24, s10, v24")
    for p in range(4): A(f"v_cvt_pk_bf16_f32 v{XF+p}, v{16+2*p}, v{17+2*p}")
    A("v_add_f32 v25, v16, v17"); A("v_add_f32 v26, v18, v19"); A("v_add_f32 v27, v20, v21"); A("v_add_f32 v28, v22, v23")
    A("v_add_f32 v25, v25, v26"); A("v_add_f32 v27, v27, v28"); A("v_add_f32 v25, v25, v27")
    g.stamp(5)
    A(f"v_mov_b32 v{XF+4}, v24"); A(f"v_mov_b32 v{XF+5}, v25")
    preload_finish(g, 2, preV, "s65")
    A("s_waitcnt lgkmcnt(0)")
    for t in range(8):
        A(f"v_mfma_f32_16x16x32_bf16 v[{AC+4*t}:{AC+4*t+3}], v[{WF+32+4*t}:{WF+32+4*t+3}], v[{XF}:{XF+3}], 0")
    xrow_reduce(g, [XF + 5], steps=("p16", "p32"))
    g.setexec(0xff00ff00ff00ff)
    g.nop(2)
    for t in range(8): A(f"ds_write_b128 v{aCBw}, v[{AC+4*t}:{AC+4*t+3}] offset:{t*64}")
    g.setexec(0xff)
    A(f"ds_write_b64 v{aCBw}, v[{XF+4}:{XF+5}] offset:512")
    A("s_mov_b64 exec, -1")
    sync_arrive(g, 2)
    A("s_lshl_b32 s9, s6, 12"); A(f"s_add_u32 s9, s9, {W_AP}"); A("s_lshl_b32 s10, s6, 7"); A(f"s_add_u32 s10, s10, {W_AS}")
    sync_wait(g, 2, [f"ds_read_b64 v[{12+2*w}:{13+2*w}], v{aCBs} offset:{w*4224}" for w in range(4)] +
                    [f"ds_read_b128 v[{GD+4*w}:{GD+4*w+3}], v{aCBr} offset:{w*4224}" for w in range(4)])
    A("v_max3_f32 v20, v12, v14, v16"); A("v_max_f32 v20, v20, v18")
    for w in range(4): A(f"v_sub_f32 v{12+2*w}, v{12+2*w}, v20")
    for w in range(4): A(f"v_exp_f32 v{12+2*w}, v{12+2*w}")
    g.nop(1)
    for e in range(4): A(f"v_mul_f32 v{24+e}, v12, v{GD+e}")
    for w in range(1, 4):
        for e in range(4): A(f"v_fmac_f32 v{24+e}, v{12+2*w}, v{GD+4*w+e}")
    A("v_mul_f32 v21, v12, v13")
    for w in range(1, 4): A(f"v_fmac_f32 v21, v{12+2*w}, v{13+2*w}")
    pack24(g, 28, 24)
    A(f"v_mov_b32 v22, {TAG}"); A(f"v_mov_b32 v23, {TAG}")
    A(f"buffer_store_dwordx4 v[28:31], v{gT16}, {WS}, s9 offen {STL}")
    A("v_lshrrev_b32 v12, 1, v0")
    g.setexec(0x100000001)
    A(f"buffer_store_dwordx4 v[20:23], v12, {WS}, s10 offen {STL}")
    A("s_mov_b64 exec, -1")
    g.stamp(6)
    def pre256(base):
        def f():
            for tl in range(2):
                for k in range(4 if base == R3 else 3):
                    for q in range(2):
                        A(f"ds_read_b64_tr_b16 v[{WF+16*tl+4*k+2*q}:{WF+16*tl+4*k+2*q+1}], v{aT256a+tl} offset:{(base - (R3 if base == R3 else 0)) + k*8192+q*1024}")
                if base != R3:
                    A(f"ds_read_b64_tr_b16 v[{WF+16*tl+12}:{WF+16*tl+13}], v{aT2ha+tl} offset:{base+96*256}")
        return f
    A(f"s_cmp_lg_u32 s3, {cfg.wc}"); A("s_cbranch_scc1 L_nocomb")
    A("s_and_b32 s9, s6, 0xf8"); A("s_lshl_b32 s10, s9, 12"); A("s_and_b32 s11, s6, 7"); A("s_lshl_b32 s12, s11, 9"); A("s_add_u32 s10, s10, s12"); A(f"s_add_u32 s58, s10, {W_AP}")
    for i in range(1, 4): A(f"s_add_u32 s{58+i}, s58, {i*4096}")
    A("s_lshl_b32 s10, s9, 7"); A("s_lshl_b32 s12, s11, 4"); A("s_add_u32 s10, s10, s12"); A(f"s_add_u32 s10, s10, {W_AS}")
    A("s_lshl_b32 s12, s5, 12"); A("s_lshl_b32 s13, s4, 9"); A("s_add_u32 s12, s12, s13"); A(f"s_add_u32 s12, s12, {W_OB}")
    if cfg.d2: A(f"s_sleep {cfg.d2}")
    gather(g, [f"buffer_load_dwordx4 v[{GD+16}:{GD+19}], v{gASc}, {WS}, s10 offen {LD}"] +
              [f"buffer_load_dwordx4 v[{GD+4*k}:{GD+4*k+3}], v{gAPc}, {WS}, s{58+k} offen {LD}" for k in range(4)],
           [GD + 18, GD + 19] + [GD + 4 * k + 3 for k in range(4)])
    M, Lr = GD + 16, GD + 17
    A(f"v_mov_b32 v20, v{M}")
    xrow_reduce(g, [20], op="v_max_f32", steps=("ror4", "ror2", "ror1"))
    A(f"v_sub_f32 v21, v{M}, v20"); A("v_exp_f32 v21, v21")
    for k in range(4): unpack24_d(g, GD + 4 * k)
    A(f"v_mul_f32 v22, v21, v{Lr}")
    xrow_reduce(g, [22], steps=("ror4", "ror2", "ror1"))
    A("v_rcp_f32 v22, v22"); g.nop(1); A("v_mul_f32 v21, v21, v22")
    A("v_mov_b32 v23, v21"); g.nop(2)
    A("v_mov_b32_dpp v21, v23 row_ror:4 row_mask:0xc bank_mask:0xf")
    for e in range(4): A(f"v_mov_b32 v{24+e}, 0")
    g.nop(2)
    for k in range(4):
        for e in range(4): A(f"v_fmac_f32_dpp v{24+e}, v21, v{GD+4*k+e} row_newbcast:{k} row_mask:0xf bank_mask:0xf")
    xrow_reduce(g, [24, 25, 26, 27], steps=("p32",), tmp=12)
    A("v_cvt_pk_bf16_f32 v28, v24, v25"); A("v_cvt_pk_bf16_f32 v29, v26, v27"); A(f"v_mov_b32 v30, {TAG}"); A(f"v_mov_b32 v31, {TAG}")
    g.setexec(0xffffffff)
    A(f"buffer_store_dwordx4 v[28:31], v{gL16}, {WS}, s12 offen {ST}")
    A("s_mov_b64 exec, -1")
    flag_add(g, F_PUB2)
    g.lab("L_nocomb")
    g.stamp(7)
    A(f"v_add_u32 v{aT256a}, {R3}, v{aT256a}"); A(f"v_add_u32 v{aT256b}, {R3}, v{aT256b}")
    preload_or_later(g, 3, pre256(R3), "s64")
    A("s_lshl_b32 s58, s5, 12"); A(f"s_add_u32 s58, s58, {W_OB}")
    flag_wait(g, F_PUB2)
    if cfg.d3: A(f"s_sleep {cfg.d3}")
    gather(g, [f"buffer_load_dwordx4 v[{GD}:{GD+3}], v{gT16}, {WS}, s58 offen {LD}"], [GD + 2, GD + 3])
    A(f"ds_write_b64 v{aQw}, v[{GD}:{GD+1}] offset:{OL-QL}")
    sync_arrive(g, 3)
    g.stamp(8)
    preload_finish(g, 3, pre256(R3), "s64")
    A(f"v_subrev_u32 v{aT256a}, {R3}, v{aT256a}"); A(f"v_subrev_u32 v{aT256b}, {R3}, v{aT256b}")
    A("s_lshl_b32 s9, s4, 17"); A("s_lshl_b32 s10, s5, 7"); A("s_add_u32 s9, s9, s10"); A(f"s_add_u32 s9, s9, {W_OP}")
    A("v_cmp_lt_u32 s[14:15], 7, v2")
    sync_wait(g, 3, [f"ds_read_b128 v[{XF+4*k}:{XF+4*k+3}], v{aF288} offset:{OL-QL+k*64}" for k in range(4)])
    for k in range(4):
        for tl in range(2):
            A(f"v_mfma_f32_16x16x32_bf16 v[{AC+4*tl}:{AC+4*tl+3}], v[{WF+16*tl+4*k}:{WF+16*tl+4*k+3}], v[{XF+4*k}:{XF+4*k+3}], {'0' if k == 0 else f'v[{AC+4*tl}:{AC+4*tl+3}]'}")
    g.nop(8)
    for e in range(4): A(f"v_cndmask_b32 v{24+e}, v{AC+e}, v{AC+4+e}, s[14:15]")
    pack24(g, 28, 24)
    A(f"buffer_store_dwordx4 v[28:31], v{gOPw}, {WS}, s9 offen {STL}")
    g.stamp(9)
    def red32(soff, after):
        for i in range(1, 4): A(f"s_add_u32 s{58+i}, {soff}, {i*1024}")
        gather(g, [f"buffer_load_dwordx4 v[{GD+4*k}:{GD+4*k+3}], v{gL16}, {WS}, {soff if k == 0 else f's{58+k}'} offen {LD}" for k in range(4)], [GD + 4 * k + 3 for k in range(4)])
        for k in range(4): unpack24_d(g, GD + 4 * k)
        for e in range(4):
            A(f"v_add_f32 v{24+e}, v{GD+e}, v{GD+4+e}"); A(f"v_add_f32 v{28+e}, v{GD+8+e}, v{GD+12+e}")
        for e in range(4): A(f"v_add_f32 v{24+e}, v{24+e}, v{28+e}")
        xrow_reduce(g, [24, 25, 26, 27], steps=("ror8", "p16", "p32"), tmp=12)
        A("v_cvt_pk_bf16_f32 v12, v24, v25"); A("v_cvt_pk_bf16_f32 v13, v26, v27")
        for p in range(2):
            A(f"v_lshlrev_b32 v{24+2*p}, 16, v{12+p}"); A(f"v_and_b32 v{25+2*p}, 0xffff0000, v{12+p}")
            A(f"v_lshlrev_b32 v{28+2*p}, 16, v{8+p}"); A(f"v_and_b32 v{29+2*p}, 0xffff0000, v{8+p}")
        for e in range(4): A(f"v_add_f32 v{24+e}, v{24+e}, v{28+e}")
        A("v_cvt_pk_bf16_f32 v8, v24, v25"); A("v_cvt_pk_bf16_f32 v9, v26, v27")
    A(f"s_cmp_lg_u32 s3, {cfg.wr}"); A("s_cbranch_scc1 L_nored")
    A("s_lshl_b32 s58, s6, 12"); A(f"s_add_u32 s58, s58, {W_OP}")
    A("s_lshl_b32 s12, s6, 7"); A(f"s_add_u32 s12, s12, {W_HB}")
    if cfg.d4: A(f"s_sleep {cfg.d4}")
    red32("s58", None)
    A("v_mov_b32 v12, v8"); A("v_mov_b32 v13, v9"); A(f"v_mov_b32 v14, {TAG}"); A(f"v_mov_b32 v15, {TAG}")
    g.setexec(0xff)
    A(f"buffer_store_dwordx4 v[12:15], v{gL16}, {WS}, s12 offen {ST}")
    A("s_mov_b64 exec, -1")
    flag_add(g, F_PUB4)
    g.lab("L_nored")
    g.stamp(10)
    A("s_cmp_ge_u32 s5, 28"); A("s_cselect_b32 s66, 1, 0")
    A("s_sub_u32 s9, s5, 28"); A("s_cselect_b32 s62, s62, s9") if False else None
    A("s_cmp_ge_u32 s5, 28"); A("s_cbranch_scc0 L_f1a"); A("s_sub_u32 s62, s5, 28"); g.lab("L_f1a")
    A("s_lshl_b32 s9, s4, 2"); A("s_add_u32 s9, s9, s62")
    A(f"s_mul_i32 s10, s9, {112*128}"); A("s_lshl_b32 s11, s63, 11"); A("s_add_u32 s10, s10, s11"); A(f"s_add_u32 s67, s10, {W_UP}")
    A(f"s_mul_i32 s10, s9, {112*16}"); A("s_lshl_b32 s11, s63, 8"); A("s_add_u32 s10, s10, s11"); A(f"s_add_u32 s68, s10, {W_CS}")
    A("s_lshl_b32 s10, s9, 7"); A(f"s_add_u32 s69, s10, {W_ST}")
    def pre_w1():
        pre128()
        A("v_mov_b32 v12, 0x3f803f80"); A("v_mov_b32 v13, v12"); A("v_mov_b32 v14, v12"); A("v_mov_b32 v15, v12")
        A("s_waitcnt lgkmcnt(0)"); g.nop(1)
        for k in range(8):
            A(f"v_mfma_f32_16x16x32_bf16 v[{AC+4}:{AC+7}], v[{WF+4*k}:{WF+4*k+3}], v[12:15], {'0' if k == 0 else f'v[{AC+4}:{AC+7}]'}")
        A(f"v_lshrrev_b32 v16, 3, v{gUPw}")
        g.nop(8)
        pack24(g, 28, AC + 4)
        g.setexec(0x1000100010001)
        A(f"buffer_store_dwordx4 v[28:31], v16, {WS}, s68 offen {STL}")
        A("s_mov_b64 exec, -1")
    A("s_mov_b32 s64, 1")
    A("s_cmp_eq_u32 s66, 1"); A("s_cbranch_scc1 L_f1b")
    preload_or_later(g, 4, pre_w1, "s64")
    g.lab("L_f1b")
    A("s_lshl_b32 s58, s62, 13"); A(f"s_add_u32 s58, s58, {W_HB}"); A("s_add_u32 s59, s58, 4096")
    flag_wait(g, F_PUB4)
    if cfg.d5: A(f"s_sleep {cfg.d5}")
    gather(g, [f"buffer_load_dwordx4 v[{GD+4*k}:{GD+4*k+3}], v{gT16}, {WS}, s{58+k} offen {LD}" for k in range(2)], [GD + 2, GD + 3, GD + 6, GD + 7])
    A(f"ds_write_b64 v{aHw}, v[{GD}:{GD+1}]"); A(f"ds_write_b64 v{aHw}, v[{GD+4}:{GD+5}] offset:256")
    sync_arrive(g, 4)
    g.stamp(11)
    preload_finish(g, 4, pre_w1, "s64")
    sync_wait(g, 4, [f"ds_read_b128 v[{XF+4*k}:{XF+4*k+3}], v{aF544} offset:{HL-XN+k*64}" for k in range(8)])
    A("s_cmp_eq_u32 s66, 1"); A("s_cbranch_scc1 L_stat")
    for k in range(8):
        A(f"v_mfma_f32_16x16x32_bf16 v[{AC}:{AC+3}], v[{WF+4*k}:{WF+4*k+3}], v[{XF+4*k}:{XF+4*k+3}], {'0' if k == 0 else f'v[{AC}:{AC+3}]'}")
    g.setexec(0xff00ff00ff00ff)
    g.nop(7)
    pack24(g, 28, AC)
    A(f"buffer_store_dwordx4 v[28:31], v{gUPw}, {WS}, s67 offen {STL}")
    A("s_mov_b64 exec, -1")
    A("s_branch L_f2")
    g.lab("L_stat")
    A("s_cmp_lg_u32 s3, 0"); A("s_cbranch_scc1 L_f2")
    A("v_mov_b32 v12, 0x3f803f80"); A("v_mov_b32 v13, v12"); A("v_mov_b32 v14, v12"); A("v_mov_b32 v15, v12")
    g.nop(2)
    for k in range(8):
        A(f"v_mfma_f32_16x16x32_bf16 v[{AC}:{AC+3}], v[{XF+4*k}:{XF+4*k+3}], v[{XF+4*k}:{XF+4*k+3}], {'0' if k == 0 else f'v[{AC}:{AC+3}]'}")
        A(f"v_mfma_f32_16x16x32_bf16 v[{AC+4}:{AC+7}], v[12:15], v[{XF+4*k}:{XF+4*k+3}], {'0' if k == 0 else f'v[{AC+4}:{AC+7}]'}")
    A("v_and_b32 v16, 3, v2"); A("v_cmp_eq_u32 s[14:15], 1, v16"); A("v_cmp_eq_u32 s[10:11], 2, v16"); A("v_cmp_eq_u32 s[12:13], 3, v16")
    A("v_lshlrev_b32 v17, 4, v2")
    g.nop(6)
    A(f"v_cndmask_b32 v21, v{AC}, v{AC+1}, s[14:15]"); A(f"v_cndmask_b32 v21, v21, v{AC+2}, s[10:11]"); A(f"v_cndmask_b32 v21, v21, v{AC+3}, s[12:13]")
    A(f"v_mov_b32 v20, v{AC+4}"); A(f"v_mov_b32 v22, {TAG}"); A(f"v_mov_b32 v23, {TAG}")
    g.setexec(0xf0000f)
    A(f"buffer_store_dwordx4 v[20:23], v17, {WS}, s69 offen {STL}")
    A("s_mov_b64 exec, -1")
    g.lab("L_f2")
    g.stamp(12)
    preload_or_later(g, 5, pre256(R1), "s64")
    A("s_lshr_b32 s9, s5, 3")
    A(f"s_mul_i32 s10, s4, {4*112*128}"); A(f"s_mul_i32 s11, s9, {28*128}"); A("s_add_u32 s10, s10, s11"); A(f"s_add_u32 s58, s10, {W_UP}")
    for i in range(1, 4): A(f"s_add_u32 s{58+i}, s58, {i*112*128}")
    A(f"s_mul_i32 s10, s4, {4*112*16}"); A(f"s_mul_i32 s11, s9, {28*16}"); A("s_add_u32 s10, s10, s11"); A(f"s_add_u32 s62, s10, {W_CS}"); A(f"s_add_u32 s63, s62, {2*112*16}")
    A("s_lshl_b32 s10, s4, 9"); A(f"s_add_u32 s67, s10, {W_ST}")
    A("s_cmp_eq_u32 s3, 3"); A("s_cselect_b32 s11, 0, -1"); A("s_mov_b32 s10, -1"); A("s_mov_b64 exec, s[10:11]")
    if cfg.d6: A(f"s_sleep {cfg.d6}")
    gather(g, [f"buffer_load_dwordx4 v[{GD+32+4*k}:{GD+35+4*k}], v{gSTr}, {WS}, s67 offen offset:{k*128} {LD}" for k in range(4)] +
              [f"buffer_load_dwordx4 v[{GD+16+4*k}:{GD+19+4*k}], v{gCSr}, {WS}, s{62+(k>>1)} offen offset:{(k&1)*112*16} {LD}" for k in range(4)] +
              [f"buffer_load_dwordx4 v[{GD+4*k}:{GD+4*k+3}], v{gT16}, {WS}, s{58+k} offen {LD}" for k in range(4)],
           [GD + 4 * k + 3 for k in range(12)])
    S = GD + 32
    A(f"v_add_f32 v12, v{S}, v{S+4}"); A(f"v_add_f32 v13, v{S+8}, v{S+12}"); A(f"v_add_f32 v14, v{S+1}, v{S+5}"); A(f"v_add_f32 v15, v{S+9}, v{S+13}")
    A("v_add_f32 v12, v12, v13"); A("v_add_f32 v14, v14, v15")
    A("v_mul_f32 v12, 0x3a800000, v12"); A("v_mul_f32 v14, 0x3a800000, v14")
    A("v_fma_f32 v14, -v12, v12, v14"); A("v_max_f32 v14, 0, v14")
    bf16_round(g, 12, 12); bf16_round(g, 14, 14)
    A("v_add_f32 v14, 0x3727c5ac, v14"); bf16_round(g, 14, 14)
    A("v_sqrt_f32 v14, v14")
    for k in range(8): unpack24_d(g, GD + 4 * k)
    bf16_round(g, 14, 14); A("v_rcp_f32 v14, v14")
    for e in range(4):
        A(f"v_add_f32 v{16+e}, v{GD+e}, v{GD+4+e}"); A(f"v_add_f32 v{20+e}, v{GD+8+e}, v{GD+12+e}")
        A(f"v_add_f32 v{24+e}, v{GD+16+e}, v{GD+20+e}"); A(f"v_add_f32 v{28+e}, v{GD+24+e}, v{GD+28+e}")
    for e in range(4):
        A(f"v_add_f32 v{16+e}, v{16+e}, v{20+e}"); A(f"v_add_f32 v{24+e}, v{24+e}, v{28+e}")
    for e in range(4): A(f"v_fma_f32 v{16+e}, -v12, v{24+e}, v{16+e}")
    for e in range(4): A(f"v_mul_f32 v{16+e}, v{16+e}, v14")
    for e in range(4): A(f"v_max_f32 v{16+e}, 0, v{16+e}")
    A("v_cvt_pk_bf16_f32 v12, v16, v17"); A("v_cvt_pk_bf16_f32 v13, v18, v19")
    A(f"ds_write_b64 v{aAw}, v[12:13]")
    A("s_mov_b64 exec, -1")
    sync_arrive(g, 5)
    g.stamp(13)
    preload_finish(g, 5, pre256(R1), "s64")
    A("s_and_b32 s10, s5, 7"); A("s_lshl_b32 s10, s10, 17"); A("s_lshr_b32 s11, s6, 3"); A("s_lshl_b32 s11, s11, 7"); A("s_add_u32 s10, s10, s11"); A(f"s_add_u32 s9, s10, {W_FP}")
    A("v_cmp_lt_u32 s[14:15], 7, v2")
    sync_wait(g, 5, [f"ds_read_b128 v[{XF+4*k}:{XF+4*k+3}], v{aF288} offset:{AL-QL+k*64}" for k in range(3)] + [f"ds_read_b64 v[{XF+12}:{XF+13}], v{aF288h} offset:{AL-QL+192}"])
    for k in range(3):
        for tl in range(2):
            A(f"v_mfma_f32_16x16x32_bf16 v[{AC+4*tl}:{AC+4*tl+3}], v[{WF+16*tl+4*k}:{WF+16*tl+4*k+3}], v[{XF+4*k}:{XF+4*k+3}], {'0' if k == 0 else f'v[{AC+4*tl}:{AC+4*tl+3}]'}")
    for tl in range(2):
        A(f"v_mfma_f32_16x16x16_bf16 v[{AC+4*tl}:{AC+4*tl+3}], v[{WF+16*tl+12}:{WF+16*tl+13}], v[{XF+12}:{XF+13}], v[{AC+4*tl}:{AC+4*tl+3}]")
    g.nop(8)
    for e in range(4): A(f"v_cndmask_b32 v{24+e}, v{AC+e}, v{AC+4+e}, s[14:15]")
    pack24(g, 28, 24)
    A(f"buffer_store_dwordx4 v[28:31], v{gOPw}, {WS}, s9 offen {ST}")
    g.stamp(14)
    A(f"s_cmp_lg_u32 s3, {cfg.wr}"); A("s_cbranch_scc1 L_fin_done")
    A("s_lshl_b32 s58, s6, 12"); A(f"s_add_u32 s58, s58, {W_FP}"); A("s_lshl_b32 s12, s6, 3")
    if cfg.d7: A(f"s_sleep {cfg.d7}")
    red32("s58", None)
    g.setexec(0xff)
    A(f"buffer_store_dwordx2 v[8:9], v{gOUT}, s[48:51], s12 offen")
    A("s_mov_b64 exec, 1")
    A("s_cmp_lg_u32 s2, 0"); A("s_cbranch_scc1 L_fin_done")
    A(f"v_mov_b32 v12, {TAG}"); A("v_mov_b32 v13, 0")
    A(f"buffer_store_dword v12, v13, {WS}, 0 offen sc1")
    g.lab("L_fin_done")
    g.stamp(15)
    if cfg.stamps == 2:
        A("s_mov_b64 exec, -1")
        A(f"s_cmp_lg_u32 s3, {cfg.wr}"); A("s_cbranch_scc1 L_nodbg")
        A("s_waitcnt lgkmcnt(0)")
        A("s_not_b32 s70, s70")
        for i in range(16): A(f"v_writelane_b32 v10, s{70+2*i}, {i}")
        srd(g, 44, 34, 256)
        A("v_lshlrev_b32 v11, 2, v1")
        g.setexec(0xffff)
        A("buffer_atomic_umax v10, v11, s[44:47], 0 offen sc1")
        g.lab("L_nodbg")
    if cfg.stamps == 1:
        g.lab("L_stamps")
        A("s_mov_b64 exec, -1")
        A("s_waitcnt lgkmcnt(0)")
        for i in range(16): A(f"v_writelane_b32 v10, s{70+2*i}, {i}")
        A("s_lshl_b32 s9, s2, 4"); A("s_add_u32 s9, s9, s3"); A("s_lshl_b32 s9, s9, 6"); A(f"s_add_u32 s9, s9, {STAMP_OFF}")
        A("v_lshlrev_b32 v11, 2, v1")
        g.setexec(0xffff)
        A(f"buffer_store_dword v10, v11, {WS}, s9 offen")
    A("s_endpgm")

def parse(argv=None):
    ap = argparse.ArgumentParser()
    ap.add_argument("-o", default="sequential_preLN__sliding_block_cached__dense_activation_relu__decode.s")
    ap.add_argument("--stamps", type=int, default=0)
    ap.add_argument("--nt", type=int, default=1)
    ap.add_argument("--depth", type=int, default=24)
    ap.add_argument("--st_cross", default="sc1"); ap.add_argument("--st_local", default="sc1")
    ap.add_argument("--wc", type=int, default=1); ap.add_argument("--wr", type=int, default=2)
    for k, d in dict(d1=12, d2=12, d3=12, d4=12, d5=12, d6=12, d7=12).items(): ap.add_argument(f"--{k}", type=int, default=d)
    return ap.parse_args(argv)

if __name__ == "__main__":
    cfg = parse()
    open(cfg.o, "w").write(gen(cfg))
    print("LDS", LDS_END)
```

```python
import sys, argparse
sys.path.insert(0, "bench")
from asmlib import wrap

R0, R1, R2, R3 = 0, 32768, 65536, 98304
XN = 131072
HL = XN + 8 * 544
QL = HL + 8 * 544
OL = QL + 8 * 288
AL = OL + 8 * 288
CB = AL + 8 * 288
LDS_END = CB + 4 * 8 * 528
assert LDS_END <= 163840, LDS_END

W_QP, W_AP, W_AS, W_OB, W_HB, W_OP, W_UP, W_CS, W_ST, W_FP = 0x100000, 0x200000, 0x300000, 0x310000, 0x340000, 0x400000, 0x500000, 0x580000, 0x5A0000, 0x600000
STAMP_OFF = 128 << 20

WS, XO, SWQ, SK, SV, SWO, SW1, SW2 = [f"s[{36+4*i}:{39+4*i}]" for i in range(8)]
TAG = "s8"
PK0, PK1, PK2, UP0, UP1, PCNT = "s16", "s17", "s18", "s19", "s20", "s21"
SO = ["s22", "s23", "s24", "s25"]
bQ, bKV, bO, b1, b2, b2h = "s26", "s27", "s28", "s29", "s30", "s31"
mW = "s68"

class G:
    def __init__(self, cfg):
        self.L = []; self.cfg = cfg; self.nlab = 0; self.sp = 0; self.stage = 0
    def A(self, s): self.L.append("    " + s)
    def lab(self, s): self.L.append(s + ":")
    def newlab(self, p="L"):
        self.nlab += 1; return f"{p}_{self.nlab}"
    def nop(self, n):
        while n > 0:
            k = min(n, 16); self.A(f"s_nop {k-1}"); n -= k
    def setexec(self, m):
        lo, hi = m & 0xffffffff, m >> 32
        if hi == 0 and lo <= 64: self.A(f"s_mov_b64 exec, {lo}")
        else:
            self.A(f"s_mov_b32 exec_lo, {hex(lo)}"); self.A(f"s_mov_b32 exec_hi, {hex(hi)}")
    def full(self): self.A("s_mov_b64 exec, -1")
    def stamp(self, idx):
        if self.cfg.stamps: self.A(f"s_memrealtime s[{70+2*idx}:{71+2*idx}]")
    def sleep(self, n):
        if n: self.A(f"s_sleep {n}")

def srd(g, d, p, n):
    if d != p: g.A(f"s_mov_b32 s{d}, s{p}"); g.A(f"s_mov_b32 s{d+1}, s{p+1}")
    g.A(f"s_mov_b32 s{d+2}, {n}"); g.A(f"s_mov_b32 s{d+3}, 0x20000")

XF, WF, AC, GD = 32, 64, 128, 160
(aXNw, aF544, aF288, aT128, aT256a, aT256b, aV, aK, gT16, gQpub, gQget, aQw, aCBw, aCBr, gAPc, gASc, gOPw, gL16, aHw, gUPw,
 gCSr, gSTr, aAw, gOUT, aCBs, gASw) = range(208, 234)
pQ0, pQ1, p10, p11, pK0, pK1, pK2, pK3, pV0, pV1, pO0, pO1 = range(234, 246)
RS = 246

SEG = dict(
    wq=(SWQ, bQ, 8 * 8192, R0, lambda j: pQ0 + (j & 1)),
    K=(SK, bKV, 1024, R1, lambda j: pK0 + (j & 3)),
    V=(SV, bKV, 1024, R2, lambda j: pV0 + (j & 1)),
    wo=(SWO, bO, 4 * 2048, R3, lambda j: pO0 + ((j >> 1) & 1)),
    w1=(SW1, b1, 8 * 7168, R0, lambda j: p10 + (j & 1)),
    w2=(SW2, b2, 4 * 2048, R1, lambda j: pO0 + ((j >> 1) & 1)),
)

def dma(g, name, j):
    sr, base, step, reg, pat = SEG[name]
    nt = " nt" if g.cfg.nt else ""
    jj = j & 3
    g.A(f"s_add_u32 m0, {mW}, {reg + (j >> 2) * 4096}")
    if name == "w2" and j >= 4: g.A(f"s_add_u32 s15, {b2h}, {(j-4)*step - jj*1024}" if (j-4)*step - jj*1024 else f"s_mov_b32 s15, {b2h}")
    else:
        off = j * step - jj * 1024
        g.A(f"s_add_u32 s15, {base}, {off}" if off else f"s_mov_b32 s15, {base}")
    g.A(f"buffer_load_dwordx4 v{pat(j)}, {sr}, s15 offen offset:{jj*1024}{nt} lds")

def burst(g, spec):
    n = 0
    for name, lo, hi in spec:
        for j in range(lo, hi): dma(g, name, j); n += 1
    return n

STREAM = [(n, j) for n in ("wo", "w1", "w2") for j in range(8)]
def take(g, n):
    k = 0
    while k < n and g.sp < len(STREAM):
        dma(g, *STREAM[g.sp]); g.sp += 1; k += 1
    return k
def upto(g, name):
    end = {"wo": 8, "w1": 16, "w2": 24}[name]
    return take(g, max(0, end - g.sp))

def tagcheck(g, tagregs):
    g.A(f"v_xor_b32 v10, {TAG}, v{tagregs[0]}")
    for t in tagregs[1:]: g.A(f"v_bitop3_b32 v10, v10, v{t}, {TAG} bitop3:0xF6")
    g.A("v_cmp_ne_u32 vcc, 0, v10")

def gather_finish(g, loads, tagregs, newer, pre=None, late=None):
    l = g.newlab("L_g"); e = g.newlab("L_ge")
    g.A(f"s_waitcnt vmcnt({newer})")
    if pre: pre()
    tagcheck(g, tagregs)
    g.A(f"s_cbranch_vccz {e}")
    g.A(f"s_mov_b32 {PCNT}, 0")
    g.lab(l)
    for s in loads: g.A(s)
    g.A(f"s_add_u32 {PCNT}, {PCNT}, 1")
    if g.cfg.stamps: g.A(f"s_add_u32 s69, s69, {1 << (4*g.stage)}")
    g.A("s_waitcnt vmcnt(0)")
    tagcheck(g, tagregs)
    g.A(f"s_cbranch_vccz {e}")
    if late and g.cfg.local:
        sk = g.newlab("L_gl")
        g.A(f"s_cmp_lg_u32 {PCNT}, 4"); g.A(f"s_cbranch_scc1 {sk}")
        late()
        g.lab(sk)
    g.A(f"s_cmp_lt_u32 {PCNT}, 30000")
    g.A(f"s_cbranch_scc1 {l}")
    g.lab(e)
    g.stage += 1

def pack24(g, d, a):
    g.A(f"v_perm_b32 v{d}, v{a}, v{a+3}, {PK0}"); g.A(f"v_perm_b32 v{d+1}, v{a+1}, v{a+3}, {PK1}"); g.A(f"v_perm_b32 v{d+2}, v{a+2}, v{a+3}, {PK2}")

def unpack24_d(g, b):
    g.A(f"v_perm_b32 v{b+3}, v{b+1}, v{b}, {UP0}"); g.A(f"v_perm_b32 v{b+3}, v{b+2}, v{b+3}, {UP1}")

def bf16_round(g, d, s):
    g.A(f"v_cvt_pk_bf16_f32 v{d}, v{s}, v{s}"); g.A(f"v_lshlrev_b32 v{d}, 16, v{d}")

def xrow_reduce(g, regs, op="v_add_f32", steps=("ror8", "p16", "p32"), tmp=11):
    n = len(regs)
    for st in steps:
        if st.startswith("ror"):
            g.nop(max(0, 3 - n))
            for r in regs: g.A(f"{op}_dpp v{r}, v{r}, v{r} row_ror:{st[3:]} row_mask:0xf bank_mask:0xf")
        else:
            ins = "v_permlane16_swap_b32" if st == "p16" else "v_permlane32_swap_b32"
            for k, r in enumerate(regs): g.A(f"v_mov_b32 v{tmp+k}, v{r}")
            g.nop(max(0, 3 - n))
            for k, r in enumerate(regs): g.A(f"{ins} v{r}, v{tmp+k}")
            g.nop(max(0, 2 - n))
            for k, r in enumerate(regs): g.A(f"{op} v{r}, v{r}, v{tmp+k}")

def mfma(g, d, a, b, first):
    g.A(f"v_mfma_f32_16x16x32_bf16 v[{d}:{d+3}], v[{a}:{a+3}], v[{b}:{b+3}], {'0' if first else f'v[{d}:{d+3}]'}")

def gen(cfg):
    g = G(cfg); A = g.A
    ST = "sc1"; STL = "" if cfg.local else "sc1"; LD = "sc1"
    g.stamp(0)
    A("s_load_dwordx16 s[16:31], s[0:1], 0")
    A("s_load_dwordx4 s[32:35], s[0:1], 64")
    A("s_load_dwordx2 s[36:37], s[0:1], 80")
    A("s_cmp_ge_u32 s2, 256"); A("s_cbranch_scc1 L_end")
    A("v_lshrrev_b32 v7, 6, v0"); A("v_and_b32 v1, 63, v0")
    A("s_lshr_b32 s5, s2, 3")
    if cfg.pref:
        A("s_getpc_b64 s[10:11]")
        A("s_lshl_b32 s9, s5, 8"); A("v_add_u32 v10, s9, v0"); A("v_and_b32 v10, 1023, v10"); A("v_lshlrev_b32 v10, 4, v10")
        A("v_min_u32 v10, L_end - L_pc - 16, v10") if False else None
        A("s_mov_b32 s9, CODE_SPAN"); A("v_min_u32 v10, s9, v10")
        A("global_load_dwordx4 v[12:15], v10, s[10:11]")
    A("v_readfirstlane_b32 s3, v7")
    A("s_and_b32 s4, s2, 7"); A("s_lshl_b32 s6, s4, 5"); A("s_add_u32 s6, s6, s5")
    A("v_and_b32 v2, 15, v1"); A("v_lshrrev_b32 v3, 4, v1")
    A("v_lshrrev_b32 v16, 5, v0"); A("v_and_b32 v17, 31, v0")
    A("v_lshlrev_b32 v18, 11, v16"); A("v_lshl_add_u32 v18, v17, 4, v18")
    A("s_lshr_b32 s9, s6, 6")
    A("v_lshrrev_b32 v20, 3, v1"); A("v_and_b32 v19, 7, v1")
    A("v_bfe_u32 v21, v1, 4, 1"); A("v_lshlrev_b32 v21, 1, v21"); A("v_xor_b32 v21, v19, v21"); A("v_lshlrev_b32 v21, 4, v21")
    A(f"v_lshl_add_u32 v{pQ0}, v20, 13, v21"); A(f"v_xor_b32 v{pQ1}, 64, v{pQ0}")
    A(f"s_lshl_b32 {mW}, s3, 13")
    A("s_lshl_b32 s12, s9, 21"); A("s_and_b32 s13, s6, 63"); A("s_lshl_b32 s13, s13, 7"); A("s_add_u32 s12, s12, s13"); A("s_lshl_b32 s13, s3, 19"); A("s_add_u32 s12, s12, s13")
    for i in range(4):
        A(f"s_add_u32 s{70+28+i if False else 13}, s9, {i}") if False else None
    A("s_lshl_b32 s13, s9, 9"); A("s_add_u32 s14, s13, 512"); A("s_and_b32 s14, s14, 0x600"); A("s_add_u32 s7, s13, 1024"); A("s_and_b32 s7, s7, 0x600"); A("s_add_u32 s9, s13, 1536"); A("s_and_b32 s9, s9, 0x600")
    A("v_lshlrev_b32 v22, 11, v19"); A("s_lshl_b32 s10, s6, 3")
    A("s_waitcnt lgkmcnt(0)")
    srd(g, 40, 16, 16384)
    for i, s in enumerate(["s13", "s14", "s7", "s9"]): A(f"buffer_load_dwordx4 v[{GD+4*i}:{GD+4*i+3}], v18, {XO}, {s} offen")
    srd(g, 44, 22, 8 << 20)
    A("s_load_dword s8, s[36:37], 0")
    A(f"s_mov_b32 s22, s26") if False else None
    A(f"s_mov_b32 {bQ}, s12")
    burst(g, [("wq", 0, 8)])
    A(f"buffer_load_dwordx2 v[8:9], v22, {XO}, s10 offen")
    g.stamp(1)
    srd(g, 36, 36, 256 << 20); srd(g, 48, 18, 32 << 20); srd(g, 52, 20, 32 << 20); srd(g, 56, 24, 8 << 20); srd(g, 60, 28, 7340032); srd(g, 64, 30, 7340032)
    A(f"v_mov_b32 v{gOUT}, v22")
    A("s_movk_i32 s7, 7168"); A("v_mul_lo_u32 v23, v20, s7"); A(f"v_add_u32 v{p10}, v23, v21"); A("v_xor_b32 v21, 64, v21"); A(f"v_add_u32 v{p11}, v23, v21")
    A("v_xor_b32 v20, v2, v3"); A("v_lshlrev_b32 v20, 4, v20"); A(f"v_lshl_add_u32 v{pK0}, v3, 8, v20")
    for k in range(1, 4): A(f"v_xor_b32 v{pK0+k}, {k*64}, v{pK0}")
    A("v_lshlrev_b32 v20, 1, v3"); A("v_xor_b32 v20, v2, v20"); A("v_lshlrev_b32 v20, 4, v20")
    A(f"v_lshl_add_u32 v{pV0}, v3, 8, v20"); A(f"v_xor_b32 v{pV1}, 128, v{pV0}")
    A(f"v_lshl_add_u32 v{pO0}, v3, 11, v20"); A(f"v_xor_b32 v{pO1}, 128, v{pO0}")
    A("s_lshr_b32 s10, s6, 3"); A("s_lshl_b32 s11, s10, 20"); A("s_and_b32 s12, s6, 7"); A("s_lshl_b32 s13, s12, 15"); A("s_add_u32 s11, s11, s13"); A(f"s_add_u32 s11, s11, {mW}"); A(f"s_add_u32 {bKV}, s11, 0xC0000")
    A("s_lshl_b32 s11, s5, 18"); A("s_lshl_b32 s13, s4, 8"); A("s_add_u32 s11, s11, s13"); A("s_lshl_b32 s14, s3, 16"); A(f"s_add_u32 {bO}, s11, s14")
    A(f"s_mul_i32 s11, s10, {112*2048}"); A("s_lshl_b32 s13, s12, 8"); A("s_add_u32 s11, s11, s13"); A(f"s_add_u32 {b2}, s11, s14")
    A(f"s_add_u32 s11, {b2}, {4*4*2048}"); A("s_cmp_eq_u32 s3, 3"); A(f"s_cselect_b32 {b2h}, 0x40000000, s11")
    A(f"s_mul_hi_u32 s10, s5, {(2**32+6)//7}"); A("s_mul_i32 s11, s10, 7"); A("s_sub_u32 s11, s5, s11")
    A("s_mul_i32 s12, s4, 7"); A("s_add_u32 s12, s12, s11"); A("s_lshl_b32 s12, s12, 7"); A("s_lshl_b32 s13, s10, 2"); A("s_add_u32 s13, s13, s3"); A(f"s_mul_i32 s13, s13, {64*7168}"); A(f"s_add_u32 {b1}, s12, s13")
    A(f"s_mov_b32 {PK0}, 0x07060501"); A(f"s_mov_b32 {PK1}, 0x07060502"); A(f"s_mov_b32 {PK2}, 0x07060503"); A(f"s_mov_b32 {UP0}, 0x0C04000C"); A(f"s_mov_b32 {UP1}, 0x0402010C")
    if cfg.stamps: A("s_mov_b32 s69, 0")
    A("v_mul_u32_u24 v20, 544, v16"); A(f"v_lshl_add_u32 v{aXNw}, v17, 4, v20"); A(f"v_add_u32 v{aXNw}, {XN}, v{aXNw}")
    A("v_mul_u32_u24 v20, 544, v19"); A(f"v_lshl_add_u32 v{aF544}, v3, 4, v20"); A(f"v_add_u32 v{aF544}, {XN}, v{aF544}")
    A("v_lshrrev_b32 v27, 3, v0"); A(f"v_lshl_add_u32 v{aHw}, v27, 3, v20"); A(f"v_add_u32 v{aHw}, {HL}, v{aHw}")
    A("v_mul_u32_u24 v20, 288, v19"); A(f"v_add_u32 v20, {QL}, v20"); A(f"v_lshl_add_u32 v{aF288}, v3, 4, v20")
    A(f"v_lshl_add_u32 v{aAw}, v27, 3, v20")
    A("v_bfe_u32 v21, v1, 2, 2")
    A("v_and_b32 v22, 3, v1"); A("v_lshlrev_b32 v22, 3, v22")
    A("v_and_b32 v23, 1, v3")
    A("v_lshl_add_u32 v24, v3, 3, v21")
    A("v_lshrrev_b32 v25, 1, v21"); A("v_lshl_add_u32 v25, v23, 1, v25"); A("v_xor_b32 v25, s3, v25")
    A("v_lshl_add_u32 v25, v25, 5, v22"); A(f"v_lshl_add_u32 v{aT128}, v24, 7, v25")
    A("v_lshl_add_u32 v26, v23, 2, v21")
    A("s_lshl_b32 s11, s3, 1")
    A("v_xor_b32 v25, s11, v26"); A("v_lshl_add_u32 v25, v25, 5, v22"); A(f"v_lshl_add_u32 v{aT256a}, v24, 8, v25"); A(f"v_add_u32 v{aT256a}, {R3}, v{aT256a}"); A(f"v_xor_b32 v{aT256b}, 32, v{aT256a}")
    A("v_lshl_add_u32 v25, v3, 2, v21")
    A("v_lshl_add_u32 v26, v26, 5, v22"); A(f"v_lshl_add_u32 v{aV}, v25, 8, v26"); A(f"v_add_u32 v{aV}, {mW}, v{aV}"); A(f"v_add_u32 v{aV}, {R2}, v{aV}")
    A("v_xor_b32 v26, v3, v2"); A("v_lshlrev_b32 v26, 4, v26"); A(f"v_lshl_add_u32 v{aK}, v2, 8, v26"); A(f"v_add_u32 v{aK}, {mW}, v{aK}")
    A(f"v_lshlrev_b32 v{gT16}, 4, v0"); A(f"v_lshlrev_b32 v{gL16}, 4, v1")
    A("s_lshl_b32 s13, s3, 6"); A("v_lshlrev_b32 v26, 9, v2"); A(f"v_lshl_add_u32 v{gQpub}, v3, 4, v26"); A(f"v_add_u32 v{gQpub}, s13, v{gQpub}")
    A("v_lshrrev_b32 v26, 4, v0"); A("v_lshlrev_b32 v26, 12, v26"); A(f"v_lshl_add_u32 v{gQget}, v2, 4, v26")
    A("v_mul_u32_u24 v26, 288, v16"); A(f"v_lshl_add_u32 v{aQw}, v17, 3, v26"); A(f"v_add_u32 v{aQw}, {QL}, v{aQw}")
    A("s_mul_i32 s13, s3, 4224"); A("v_mul_u32_u24 v26, 528, v2"); A(f"v_lshl_add_u32 v{aCBw}, v3, 4, v26"); A(f"v_add_u32 v{aCBw}, s13, v{aCBw}"); A(f"v_add_u32 v{aCBw}, {CB}, v{aCBw}")
    A("v_mul_u32_u24 v26, 528, v16"); A(f"v_add_u32 v26, {CB}, v26"); A(f"v_lshl_add_u32 v{aCBr}, v17, 4, v26"); A(f"v_add_u32 v{aCBs}, 512, v26")
    A("v_lshrrev_b32 v26, 5, v1"); A("v_lshlrev_b32 v26, 14, v26"); A(f"v_lshl_add_u32 v{gAPc}, v17, 4, v26")
    A(f"v_lshlrev_b32 v{gASc}, 7, v19"); A(f"v_lshrrev_b32 v{gASw}, 1, v0")
    A("v_lshrrev_b32 v26, 3, v2"); A("v_add_u32 v26, s11, v26"); A("v_lshl_add_u32 v26, v26, 2, v3"); A("v_lshlrev_b32 v26, 12, v26"); A(f"v_lshl_add_u32 v{gOPw}, v19, 4, v26")
    A("s_lshl_b32 s13, s3, 9"); A("v_lshlrev_b32 v26, 7, v3"); A(f"v_lshl_add_u32 v{gUPw}, v2, 4, v26"); A(f"v_add_u32 v{gUPw}, s13, v{gUPw}")
    A(f"v_lshlrev_b32 v{gCSr}, 4, v27"); A(f"v_lshlrev_b32 v{gSTr}, 4, v19")
    A("v_mov_b32 v20, 0"); A("v_mov_b32 v21, 0")
    A("s_cmp_eq_u32 s3, 3"); A("s_cbranch_scc0 L_nz")
    A("s_mov_b32 exec_lo, 0"); A(f"ds_write_b64 v{aAw}, v[20:21] offset:{AL-QL}"); g.full()
    g.lab("L_nz")
    A("s_waitcnt lgkmcnt(0)")
    A("s_mul_i32 s8, s8, 0x9E3779B1"); A("s_add_u32 s8, s8, 0x7F4A7C15")
    A(f"v_mov_b32 v{RS+3}, {TAG}"); A(f"v_mov_b32 v{RS+6}, {TAG}"); A(f"v_mov_b32 v{RS+7}, {TAG}")
    U = 96
    A("s_waitcnt vmcnt(9)")
    for d in range(16):
        A(f"v_lshlrev_b32 v{U+2*d}, 16, v{GD+d}"); A(f"v_and_b32 v{U+2*d+1}, 0xffff0000, v{GD+d}")
    A(f"v_pk_add_f32 v[20:21], v[{U}:{U+1}], v[{U+2}:{U+3}]"); A(f"v_pk_add_f32 v[22:23], v[{U+4}:{U+5}], v[{U+6}:{U+7}]")
    for d in range(4, 16): A(f"v_pk_add_f32 v[{20+2*(d&1)}:{21+2*(d&1)}], v[{20+2*(d&1)}:{21+2*(d&1)}], v[{U+2*d}:{U+2*d+1}]")
    A("v_pk_add_f32 v[20:21], v[20:21], v[22:23]"); A("v_add_f32 v20, v20, v21")
    xrow_reduce(g, [20], steps=("ror8", "ror4", "ror2", "ror1", "p16"))
    A("v_mul_f32 v20, 0xba800000, v20"); A("v_mov_b32 v21, v20")
    for d in range(16):
        A(f"v_pk_add_f32 v[{WF+2*(d&7)}:{WF+2*(d&7)+1}], v[{U+2*d}:{U+2*d+1}], v[20:21]")
        if d == 0: A(f"v_pk_mul_f32 v[24:25], v[{WF}:{WF+1}], v[{WF}:{WF+1}]")
        elif d == 1: A(f"v_pk_mul_f32 v[26:27], v[{WF+2}:{WF+3}], v[{WF+2}:{WF+3}]")
        else: A(f"v_pk_fma_f32 v[{24+2*(d&1)}:{25+2*(d&1)}], v[{WF+2*(d&7)}:{WF+2*(d&7)+1}], v[{WF+2*(d&7)}:{WF+2*(d&7)+1}], v[{24+2*(d&1)}:{25+2*(d&1)}]")
    A("v_pk_add_f32 v[24:25], v[24:25], v[26:27]"); A("v_add_f32 v24, v24, v25")
    xrow_reduce(g, [24], steps=("ror8", "ror4", "ror2", "ror1", "p16"))
    A("v_mul_f32 v24, 0x3a800000, v24")
    bf16_round(g, 20, 20); bf16_round(g, 24, 24)
    A("v_add_f32 v24, 0x3727c5ac, v24"); bf16_round(g, 24, 24)
    A("v_sqrt_f32 v24, v24")
    for d in range(8): A(f"v_add_f32 v{U+d}, v{U+d}, v20")
    bf16_round(g, 24, 24)
    A("v_rcp_f32 v25, v24")
    for d in range(4): A(f"v_cvt_pk_bf16_f32 v{12+d}, v{U+2*d}, v{U+2*d+1}")
    for d in range(4):
        A(f"v_lshlrev_b32 v{U+2*d}, 16, v{12+d}"); A(f"v_and_b32 v{U+2*d+1}, 0xffff0000, v{12+d}")
    for d in range(8): A(f"v_mul_f32 v{U+8+d}, v{U+d}, v25")
    for d in range(8): A(f"v_fma_f32 v{U+16+d}, -v{U+8+d}, v24, v{U+d}")
    for d in range(8): A(f"v_fmac_f32 v{U+8+d}, v{U+16+d}, v25")
    for d in range(4): A(f"v_cvt_pk_bf16_f32 v{12+d}, v{U+8+2*d}, v{U+8+2*d+1}")
    A(f"ds_write_b128 v{aXNw}, v[12:15]")
    g.stamp(2)
    kw = cfg.kwin
    for j in range(8):
        idx = min(7, j + kw)
        A(f"s_waitcnt vmcnt({7-idx+1+j})")
        dma(g, "K", j)
    A("s_waitcnt vmcnt(9) lgkmcnt(0)")
    A("s_barrier")
    def pre128():
        for k in range(8):
            for q in range(2):
                A(f"ds_read_b64_tr_b16 v[{WF+4*k+2*q}:{WF+4*k+2*q+1}], v{aT128} offset:{R0+k*4096+q*512}")
    for k in range(8):
        A(f"ds_read_b128 v[{XF+4*k}:{XF+4*k+3}], v{aF544} offset:{k*64}")
        for q in range(2): A(f"ds_read_b64_tr_b16 v[{WF+4*k+2*q}:{WF+4*k+2*q+1}], v{aT128} offset:{R0+k*4096+q*512}")
        if k >= 4:
            A(f"s_waitcnt lgkmcnt(12)"); mfma(g, AC, WF + 4 * (k-4), XF + 4 * (k-4), k == 4)
    for k in range(4, 8):
        A(f"s_waitcnt lgkmcnt({3*(7-k)})"); mfma(g, AC, WF + 4 * k, XF + 4 * k, False)
    g.stamp(3)
    A("s_lshl_b32 s9, s6, 12"); A(f"s_add_u32 s9, s9, {W_QP}")
    A(f"v_mov_b32 v14, {TAG}"); A(f"v_mov_b32 v15, {TAG}"); A(f"v_mov_b32 v18, {TAG}"); A(f"v_mov_b32 v19, {TAG}")
    g.setexec(0x00ff00ff00ff00ff)
    A(f"v_mov_b32 v12, v{AC}"); A(f"v_mov_b32 v13, v{AC+1}"); A(f"v_mov_b32 v16, v{AC+2}"); A(f"v_mov_b32 v17, v{AC+3}")
    A(f"buffer_store_dwordx4 v[12:15], v{gQpub}, {WS}, s9 offen {ST}")
    A(f"buffer_store_dwordx4 v[16:19], v{gQpub}, {WS}, s9 offen offset:256 {ST}")
    g.full()
    A("s_lshr_b32 s9, s5, 3"); A("s_lshl_b32 s9, s9, 16"); A("s_lshl_b32 s10, s4, 9"); A("s_add_u32 s9, s9, s10"); A(f"s_add_u32 {SO[0]}, s9, {W_QP}")
    for i in range(1, 4): A(f"s_add_u32 {SO[i]}, {SO[0]}, {i*262144}")
    for k in range(1, 4): A(f"v_xor_b32 v{20+k}, {k*64}, v{aK}")
    qloads = [f"buffer_load_dwordx4 v[{GD+8*k+4*h}:{GD+8*k+4*h+3}], v{gQget}, {WS}, {SO[k]} offen offset:{256*h} {LD}" for k in range(4) for h in range(2)]
    nq = 0
    for j in range(8):
        if j == cfg.qv:
            for s in qloads: A(s)
            nq = 8
        idx = min(7, j + cfg.vwin)
        A(f"s_waitcnt vmcnt({7-idx+2+j+nq})")
        dma(g, "V", j)
    if cfg.qv >= 8:
        for s in qloads: A(s)
        newer_q = 0
    else: newer_q = 8 - cfg.qv
    A(f"s_waitcnt vmcnt({2+8+8})")
    for tl in range(2):
        for k in range(4): A(f"ds_read_b128 v[{WF+16*tl+4*k}:{WF+16*tl+4*k+3}], v{aK if k == 0 else 20+k} offset:{R1+tl*4096}")
    gather_finish(g, qloads, [GD + 4 * j + 2 for j in range(8)] + [GD + 4 * j + 3 for j in range(8)], newer_q)
    g.stamp(4)
    for h in range(2):
        A(f"v_pk_add_f32 v[{12+2*h}:{13+2*h}], v[{GD+4*h}:{GD+4*h+1}], v[{GD+8+4*h}:{GD+8+4*h+1}]"); A(f"v_pk_add_f32 v[{16+2*h}:{17+2*h}], v[{GD+16+4*h}:{GD+16+4*h+1}], v[{GD+24+4*h}:{GD+24+4*h+1}]")
    for h in range(2): A(f"v_pk_add_f32 v[{12+2*h}:{13+2*h}], v[{12+2*h}:{13+2*h}], v[{16+2*h}:{17+2*h}]")
    A("v_cvt_pk_bf16_f32 v12, v12, v13"); A("v_cvt_pk_bf16_f32 v13, v14, v15")
    A(f"ds_write_b64 v{aQw}, v[12:13]")
    for t in range(1, 8): A(f"v_xor_b32 v{XF+16+t}, {t*32}, v{aV}")
    A("s_waitcnt lgkmcnt(0)")
    A("s_barrier")
    for k in range(4): A(f"ds_read_b128 v[{XF+4*k}:{XF+4*k+3}], v{aF288} offset:{k*64}")
    n_woA = take(g, cfg.p[0])
    for k in range(4):
        A(f"s_waitcnt lgkmcnt({3-k})")
        for tl in range(2): mfma(g, AC + 4 * tl, WF + 16 * tl + 4 * k, XF + 4 * k, k == 0)
    A("s_mov_b32 s9, 0x3db504f3"); A("s_mov_b32 s10, 0x3fb8aa3b")
    g.nop(6)
    for p in range(4): A(f"v_cvt_pk_bf16_f32 v{12+p}, v{AC+2*p}, v{AC+2*p+1}")
    for p in range(4):
        A(f"v_lshlrev_b32 v{16+2*p}, 16, v{12+p}"); A(f"v_and_b32 v{17+2*p}, 0xffff0000, v{12+p}")
    for e in range(8): A(f"v_mul_f32 v{16+e}, s9, v{16+e}")
    for p in range(4): A(f"v_cvt_pk_bf16_f32 v{12+p}, v{16+2*p}, v{17+2*p}")
    for p in range(4):
        A(f"v_lshlrev_b32 v{16+2*p}, 16, v{12+p}"); A(f"v_and_b32 v{17+2*p}, 0xffff0000, v{12+p}")
    A("v_max3_f32 v24, v16, v17, v18"); A("v_max3_f32 v25, v19, v20, v21"); A("v_max3_f32 v24, v24, v22, v23"); A("v_max_f32 v24, v24, v25")
    xrow_reduce(g, [24], op="v_max_f32", steps=("p16", "p32"))
    A("v_mul_f32 v24, s10, v24")
    for e in range(8): A(f"v_fma_f32 v{16+e}, v{16+e}, s10, -v24")
    for e in range(8): A(f"v_exp_f32 v{16+e}, v{16+e}")
    g.stamp(5)
    A(f"s_waitcnt vmcnt({n_woA})")
    for t in range(8):
        for q in range(2):
            A(f"ds_read_b64_tr_b16 v[{WF+32+4*t+2*q}:{WF+32+4*t+2*q+1}], v{aV if t == 0 else XF+16+t} offset:{q*4096}")
    for p in range(4): A(f"v_cvt_pk_bf16_f32 v{XF+p}, v{16+2*p}, v{17+2*p}")
    A("v_add_f32 v25, v16, v17"); A("v_add_f32 v26, v18, v19"); A("v_add_f32 v27, v20, v21"); A("v_add_f32 v28, v22, v23")
    A("v_add_f32 v25, v25, v26"); A("v_add_f32 v27, v27, v28"); A("v_add_f32 v25, v25, v27")
    for t in range(8):
        A(f"s_waitcnt lgkmcnt({14-2*t})")
        mfma(g, AC + 4 * t, WF + 32 + 4 * t, XF, True)
    n_woB = take(g, cfg.p[1])
    xrow_reduce(g, [25], steps=("p16", "p32"))
    g.setexec(0x00ff00ff00ff00ff)
    for t in range(8): A(f"ds_write_b128 v{aCBw}, v[{AC+4*t}:{AC+4*t+3}] offset:{t*64}")
    g.setexec(0xff)
    A(f"ds_write_b64 v{aCBw}, v[24:25] offset:512")
    g.full()
    A("s_lshl_b32 s9, s6, 12"); A(f"s_add_u32 s9, s9, {W_AP}"); A("s_lshl_b32 s10, s6, 7"); A(f"s_add_u32 s10, s10, {W_AS}")
    A("s_waitcnt lgkmcnt(0)")
    A("s_barrier")
    for w in range(4): A(f"ds_read_b64 v[{12+2*w}:{13+2*w}], v{aCBs} offset:{w*4224}")
    for w in range(4): A(f"ds_read_b128 v[{GD+4*w}:{GD+4*w+3}], v{aCBr} offset:{w*4224}")
    A("s_waitcnt lgkmcnt(4)")
    M4, L4 = RS + 4, RS + 5
    A(f"v_max3_f32 v{M4}, v12, v14, v16"); A(f"v_max_f32 v{M4}, v{M4}, v18")
    for w in range(4): A(f"v_sub_f32 v{12+2*w}, v{12+2*w}, v{M4}")
    for w in range(4): A(f"v_exp_f32 v{12+2*w}, v{12+2*w}")
    A("s_waitcnt lgkmcnt(0)")
    for e in range(4): A(f"v_mul_f32 v{24+e}, v12, v{GD+e}")
    for w in range(1, 4):
        for e in range(4): A(f"v_fmac_f32 v{24+e}, v{12+2*w}, v{GD+4*w+e}")
    pack24(g, RS, 24)
    A(f"buffer_store_dwordx4 v[{RS}:{RS+3}], v{gT16}, {WS}, s9 offen {STL}")
    A(f"v_mul_f32 v{L4}, v12, v13")
    for w in range(1, 4): A(f"v_fmac_f32 v{L4}, v{12+2*w}, v{13+2*w}")
    g.setexec(0x0000000100000001)
    A(f"buffer_store_dwordx4 v[{RS+4}:{RS+7}], v{gASw}, {WS}, s10 offen {STL}")
    g.full()
    g.stamp(6)
    take(g, cfg.p[2])
    def restoreA():
        if cfg.local:
            A(f"buffer_store_dwordx4 v[{RS}:{RS+3}], v{gT16}, {WS}, s9 offen sc1")
            g.setexec(0x0000000100000001)
            A(f"buffer_store_dwordx4 v[{RS+4}:{RS+7}], v{gASw}, {WS}, s10 offen sc1")
            g.full()
    A(f"s_cmp_lg_u32 s3, {cfg.wc}"); A("s_cbranch_scc1 L_nocomb")
    A("s_and_b32 s11, s6, 0xf8"); A("s_lshl_b32 s12, s11, 12"); A("s_and_b32 s13, s6, 7"); A("s_lshl_b32 s14, s13, 9"); A("s_add_u32 s12, s12, s14"); A(f"s_add_u32 {SO[0]}, s12, {W_AP}")
    for i in range(1, 4): A(f"s_add_u32 {SO[i]}, {SO[0]}, {i*4096}")
    A("s_lshl_b32 s11, s11, 7"); A("s_lshl_b32 s13, s13, 4"); A("s_add_u32 s11, s11, s13"); A(f"s_add_u32 s11, s11, {W_AS}")
    A("s_lshl_b32 s12, s5, 12"); A("s_lshl_b32 s13, s4, 9"); A("s_add_u32 s12, s12, s13"); A(f"s_add_u32 s12, s12, {W_OB}")
    g.sleep(cfg.d2)
    cl = [f"buffer_load_dwordx4 v[{GD+16}:{GD+19}], v{gASc}, {WS}, s11 offen {LD}"] + [f"buffer_load_dwordx4 v[{GD+4*k}:{GD+4*k+3}], v{gAPc}, {WS}, {SO[k]} offen {LD}" for k in range(4)]
    for s in cl: A(s)
    A("s_barrier")
    sp0 = g.sp
    n = take(g, cfg.p[3])
    gather_finish(g, cl, [GD + 18, GD + 19] + [GD + 4 * k + 3 for k in range(4)], n, late=restoreA)
    M, Lr = GD + 16, GD + 17
    A(f"v_max_f32_dpp v20, v{M}, v{M} row_ror:4 row_mask:0xf bank_mask:0xf")
    unpack24_d(g, GD)
    A("v_max_f32_dpp v20, v20, v20 row_ror:2 row_mask:0xf bank_mask:0xf")
    unpack24_d(g, GD + 4)
    A("v_max_f32_dpp v20, v20, v20 row_ror:1 row_mask:0xf bank_mask:0xf")
    A(f"v_sub_f32 v21, v{M}, v20"); A("v_exp_f32 v21, v21")
    unpack24_d(g, GD + 8)
    A(f"v_mul_f32 v22, v21, v{Lr}")
    unpack24_d(g, GD + 12)
    A("v_add_f32_dpp v22, v22, v22 row_ror:4 row_mask:0xf bank_mask:0xf")
    A("v_mov_b32_dpp v21, v21 row_ror:4 row_mask:0xc bank_mask:0xf")
    g.nop(1)
    A("v_add_f32_dpp v22, v22, v22 row_ror:2 row_mask:0xf bank_mask:0xf")
    for e in range(2): A(f"v_mul_f32_dpp v{24+e}, v21, v{GD+e} row_newbcast:0 row_mask:0xf bank_mask:0xf")
    A("v_add_f32_dpp v22, v22, v22 row_ror:1 row_mask:0xf bank_mask:0xf")
    for e in range(2, 4): A(f"v_mul_f32_dpp v{24+e}, v21, v{GD+e} row_newbcast:0 row_mask:0xf bank_mask:0xf")
    A("v_rcp_f32 v22, v22")
    for k in range(1, 4):
        for e in range(4): A(f"v_fmac_f32_dpp v{24+e}, v21, v{GD+4*k+e} row_newbcast:{k} row_mask:0xf bank_mask:0xf")
    xrow_reduce(g, [24, 25, 26, 27], steps=("p32",), tmp=12)
    for e in range(4): A(f"v_mul_f32 v{24+e}, v{24+e}, v22")
    A("v_cvt_pk_bf16_f32 v28, v24, v25"); A("v_cvt_pk_bf16_f32 v29, v26, v27"); A(f"v_mov_b32 v30, {TAG}"); A(f"v_mov_b32 v31, {TAG}")
    A("s_mov_b32 exec_hi, 0")
    A(f"buffer_store_dwordx4 v[28:31], v{gL16}, {WS}, s12 offen {ST}")
    g.full()
    restoreA()
    take(g, cfg.p[4]); upto(g, "wo")
    A("s_branch L_comb_done")
    g.lab("L_nocomb")
    g.sp = sp0
    A("s_barrier")
    take(g, cfg.p[3])
    g.sleep(cfg.dr); restoreA()
    take(g, cfg.p[4]); upto(g, "wo")
    g.lab("L_comb_done")
    g.stamp(7)
    A(f"s_lshl_b32 {SO[0]}, s5, 12"); A(f"s_add_u32 {SO[0]}, {SO[0]}, {W_OB}")
    A("s_lshl_b32 s9, s4, 17"); A("s_lshl_b32 s10, s5, 7"); A("s_add_u32 s9, s9, s10"); A(f"s_add_u32 s9, s9, {W_OP}")
    A("v_cmp_lt_u32 s[12:13], 7, v2")
    A("s_barrier")
    g.sleep(cfg.d3)
    ol = [f"buffer_load_dwordx4 v[{GD}:{GD+3}], v{gT16}, {WS}, {SO[0]} offen {LD}"]
    A(ol[0])
    n = take(g, cfg.p[5])
    A(f"s_waitcnt vmcnt({n+1})")
    A("s_barrier")
    def pre256(base):
        for tl in range(2):
            for k in range(4):
                for q in range(2):
                    A(f"ds_read_b64_tr_b16 v[{WF+16*tl+4*k+2*q}:{WF+16*tl+4*k+2*q+1}], v{aT256a+tl} offset:{base+k*8192+q*1024}")
    pre256(0)
    gather_finish(g, ol, [GD + 2, GD + 3], n)
    A(f"ds_write_b64 v{aQw}, v[{GD}:{GD+1}] offset:{OL-QL}")
    take(g, cfg.p[6])
    g.stamp(8)
    def gemv256(aoff, soff, st):
        A("s_waitcnt lgkmcnt(0)")
        A("s_barrier")
        for k in range(4): A(f"ds_read_b128 v[{XF+4*k}:{XF+4*k+3}], v{aF288} offset:{aoff+k*64}")
        for k in range(4):
            A(f"s_waitcnt lgkmcnt({3-k})")
            for tl in range(2): mfma(g, AC + 4 * tl, WF + 16 * tl + 4 * k, XF + 4 * k, k == 0)
        g.nop(8)
        for e in range(4): A(f"v_cndmask_b32 v{24+e}, v{AC+e}, v{AC+4+e}, s[12:13]")
        pack24(g, RS, 24)
        A(f"buffer_store_dwordx4 v[{RS}:{RS+3}], v{gOPw}, {WS}, {soff} offen {st}")
    gemv256(OL - QL, "s9", STL)
    g.stamp(9)
    take(g, cfg.p[7])
    def restoreO():
        if cfg.local: A(f"buffer_store_dwordx4 v[{RS}:{RS+3}], v{gOPw}, {WS}, s9 offen sc1")
    A(f"v_subrev_u32 v{aT256a}, {R3-R1}, v{aT256a}"); A(f"v_subrev_u32 v{aT256b}, {R3-R1}, v{aT256b}")
    rl = [f"buffer_load_dwordx4 v[{GD+4*k}:{GD+4*k+3}], v{gL16}, {WS}, {SO[0]} offen offset:{k*1024} {LD}" for k in range(4)]
    def red32_tail():
        for k in range(4): unpack24_d(g, GD + 4 * k)
        for h in range(2):
            A(f"v_pk_add_f32 v[{24+2*h}:{25+2*h}], v[{GD+2*h}:{GD+2*h+1}], v[{GD+4+2*h}:{GD+5+2*h}]"); A(f"v_pk_add_f32 v[{28+2*h}:{29+2*h}], v[{GD+8+2*h}:{GD+9+2*h}], v[{GD+12+2*h}:{GD+13+2*h}]")
        for h in range(2): A(f"v_pk_add_f32 v[{24+2*h}:{25+2*h}], v[{24+2*h}:{25+2*h}], v[{28+2*h}:{29+2*h}]")
        g.nop(1)
        xrow_reduce(g, [24, 25, 26, 27], steps=("ror8", "p16", "p32"), tmp=12)
        A("v_cvt_pk_bf16_f32 v12, v24, v25"); A("v_cvt_pk_bf16_f32 v13, v26, v27")
        for p in range(2):
            A(f"v_lshlrev_b32 v{24+2*p}, 16, v{12+p}"); A(f"v_and_b32 v{25+2*p}, 0xffff0000, v{12+p}")
        for h in range(2): A(f"v_pk_add_f32 v[{24+2*h}:{25+2*h}], v[{24+2*h}:{25+2*h}], v[{4+2*h}:{5+2*h}]")
        A("v_cvt_pk_bf16_f32 v28, v24, v25"); A("v_cvt_pk_bf16_f32 v29, v26, v27")
    A(f"s_cmp_lg_u32 s3, {cfg.wr}"); A("s_cbranch_scc1 L_nored")
    A(f"s_lshl_b32 {SO[0]}, s6, 12"); A(f"s_add_u32 {SO[0]}, {SO[0]}, {W_OP}")
    A("s_lshl_b32 s12, s6, 7"); A(f"s_add_u32 s12, s12, {W_HB}")
    for p in range(2):
        A(f"v_lshlrev_b32 v{4+2*p}, 16, v{8+p}"); A(f"v_and_b32 v{5+2*p}, 0xffff0000, v{8+p}")
    A(f"v_mov_b32 v30, {TAG}"); A(f"v_mov_b32 v31, {TAG}")
    g.sleep(cfg.d4)
    for s in rl: A(s)
    A("s_barrier")
    sp0 = g.sp
    n = take(g, cfg.p[8])
    gather_finish(g, rl, [GD + 4 * k + 3 for k in range(4)], n, late=restoreO)
    A(f"v_mov_b32 v30, {TAG}") if False else None
    red32_tail()
    A(f"v_mov_b32 v30, {TAG}"); A(f"v_mov_b32 v31, {TAG}")
    g.setexec(0xff)
    A(f"buffer_store_dwordx4 v[28:31], v{gL16}, {WS}, s12 offen {ST}")
    g.full()
    for p in range(2):
        A(f"v_lshlrev_b32 v{4+2*p}, 16, v{28+p}"); A(f"v_and_b32 v{5+2*p}, 0xffff0000, v{28+p}")
    restoreO()
    take(g, cfg.p[9]); upto(g, "w1")
    A("s_branch L_red_done")
    g.lab("L_nored")
    g.sp = sp0
    A("s_barrier")
    take(g, cfg.p[8])
    g.sleep(cfg.dr); restoreO()
    take(g, cfg.p[9]); upto(g, "w1")
    g.lab("L_red_done")
    g.stamp(10)
    A(f"s_mul_hi_u32 s10, s5, {(2**32+6)//7}"); A("s_mul_i32 s11, s10, 7"); A("s_sub_u32 s11, s5, s11")
    A("s_sub_u32 s9, s5, 28"); A("s_cmp_ge_u32 s5, 28"); A("s_cselect_b32 s10, s9, s10")
    A(f"s_lshl_b32 {SO[0]}, s10, 13"); A(f"s_add_u32 {SO[0]}, {SO[0]}, {W_HB}"); A(f"s_add_u32 {SO[1]}, {SO[0]}, 4096")
    A("s_lshl_b32 s9, s4, 2"); A("s_add_u32 s10, s9, s10")
    A(f"s_mul_i32 s9, s10, {112*128}"); A("s_lshl_b32 s12, s11, 11"); A("s_add_u32 s9, s9, s12"); A(f"s_add_u32 s9, s9, {W_UP}")
    A(f"s_mul_i32 s14, s10, {112*16}"); A("s_lshl_b32 s12, s11, 8"); A("s_add_u32 s14, s14, s12"); A(f"s_add_u32 s14, s14, {W_CS}")
    A("s_lshl_b32 s10, s10, 7"); A(f"s_add_u32 s10, s10, {W_ST}")
    A("v_mov_b32 v12, 0x3f803f80"); A("v_mov_b32 v13, v12"); A("v_mov_b32 v14, v12"); A("v_mov_b32 v15, v12")
    A(f"v_lshrrev_b32 v16, 3, v{gUPw}"); A(f"v_mov_b32 v23, {TAG}")
    A("s_barrier")
    g.sleep(cfg.d5)
    hl = [f"buffer_load_dwordx4 v[{GD+4*k}:{GD+4*k+3}], v{gT16}, {WS}, {SO[k]} offen {LD}" for k in range(2)]
    for s in hl: A(s)
    n = take(g, cfg.p[10])
    A(f"s_waitcnt vmcnt({n+2})")
    A("s_barrier")
    A("s_cmp_ge_u32 s5, 28"); A("s_cbranch_scc1 L_f1s")
    pre128()
    for k in range(8):
        A(f"s_waitcnt lgkmcnt({14-2*k})"); mfma(g, AC + 4, WF + 4 * k, 12, k == 0)
    g.nop(8)
    pack24(g, 20, AC + 4)
    g.setexec(0x0001000100010001)
    A(f"buffer_store_dwordx4 v[20:23], v16, {WS}, s14 offen sc1")
    g.full()
    g.lab("L_f1s")
    gather_finish(g, hl, [GD + 2, GD + 3, GD + 6, GD + 7], n)
    A(f"ds_write_b64 v{aHw}, v[{GD}:{GD+1}]"); A(f"ds_write_b64 v{aHw}, v[{GD+4}:{GD+5}] offset:256")
    upto(g, "w2")
    g.stamp(11)
    A("s_waitcnt lgkmcnt(0)")
    A("s_barrier")
    for k in range(8): A(f"ds_read_b128 v[{XF+4*k}:{XF+4*k+3}], v{aF544} offset:{HL-XN+k*64}")
    A("s_cmp_ge_u32 s5, 28"); A("s_cbranch_scc1 L_stat")
    for k in range(8):
        A(f"s_waitcnt lgkmcnt({7-k})"); mfma(g, AC, WF + 4 * k, XF + 4 * k, k == 0)
    g.setexec(0x00ff00ff00ff00ff)
    A(f"s_mov_b32 s14, 0x00ff00ff")
    g.nop(5)
    pack24(g, RS, AC)
    A(f"buffer_store_dwordx4 v[{RS}:{RS+3}], v{gUPw}, {WS}, s9 offen {STL}")
    g.full()
    A("s_mov_b32 s15, s14")
    A("s_branch L_f2")
    g.lab("L_stat")
    for k in range(8):
        A(f"s_waitcnt lgkmcnt({7-k})")
        mfma(g, AC, XF + 4 * k, XF + 4 * k, k == 0); mfma(g, AC + 4, 12, XF + 4 * k, k == 0)
    A("v_and_b32 v16, 3, v2"); A("v_cmp_eq_u32 s[14:15], 1, v16"); A("v_cmp_eq_u32 vcc, 2, v16"); A("v_cmp_eq_u32 s[12:13], 3, v16")
    A(f"v_lshlrev_b32 v{gUPw}, 4, v2"); A("s_mov_b32 s9, s10"); A(f"v_mov_b32 v{RS+2}, {TAG}")
    g.nop(3)
    A(f"v_cndmask_b32 v{RS+1}, v{AC}, v{AC+1}, s[14:15]"); A(f"v_cndmask_b32 v{RS+1}, v{RS+1}, v{AC+2}, vcc"); A(f"v_cndmask_b32 v{RS+1}, v{RS+1}, v{AC+3}, s[12:13]")
    A(f"v_mov_b32 v{RS}, v{AC+4}")
    A("s_cmp_eq_u32 s3, 0"); A("s_cselect_b32 s14, 0x00f0000f, 0"); A("s_mov_b32 s15, 0"); A("s_cbranch_scc0 L_f2")
    A("s_mov_b64 exec, s[14:15]")
    A(f"buffer_store_dwordx4 v[{RS}:{RS+3}], v{gUPw}, {WS}, s9 offen {STL}")
    g.full()
    g.lab("L_f2")
    g.stamp(12)
    A("s_lshr_b32 s10, s5, 3")
    A(f"s_mul_i32 s11, s4, {4*112*128}"); A(f"s_mul_i32 s12, s10, {28*128}"); A("s_add_u32 s11, s11, s12"); A(f"s_add_u32 {SO[0]}, s11, {W_UP}")
    for i in range(1, 4): A(f"s_add_u32 {SO[i]}, {SO[0]}, {i*112*128}")
    A(f"s_mul_i32 s11, s4, {4*112*16}"); A(f"s_mul_i32 s12, s10, {28*16}"); A("s_add_u32 s11, s11, s12"); A(f"s_add_u32 {bQ}, s11, {W_CS}"); A(f"s_add_u32 {bKV}, {bQ}, {2*112*16}")
    A("s_lshl_b32 s11, s4, 9"); A(f"s_add_u32 {bO}, s11, {W_ST}")
    A("s_cmp_eq_u32 s3, 3"); A("s_cselect_b32 s11, 0, -1"); A("s_mov_b32 exec_hi, s11")
    g.sleep(cfg.d6)
    fl = ([f"buffer_load_dwordx4 v[{GD+32+4*k}:{GD+35+4*k}], v{gSTr}, {WS}, {bO} offen offset:{k*128} {LD}" for k in range(4)] +
          [f"buffer_load_dwordx4 v[{GD+16+4*k}:{GD+19+4*k}], v{gCSr}, {WS}, {[bQ, bKV][k>>1]} offen offset:{(k&1)*112*16} {LD}" for k in range(4)] +
          [f"buffer_load_dwordx4 v[{GD+4*k}:{GD+4*k+3}], v{gT16}, {WS}, {SO[k]} offen {LD}" for k in range(4)])
    for s in fl: A(s)
    g.full()
    A("s_waitcnt vmcnt(12)")
    A("s_barrier")
    pre256(0)
    A("s_and_b32 s10, s5, 7"); A("s_lshl_b32 s10, s10, 17"); A("s_lshr_b32 s12, s6, 3"); A("s_lshl_b32 s12, s12, 7"); A("s_add_u32 s10, s10, s12"); A(f"s_add_u32 s10, s10, {W_FP}")
    A("v_cmp_lt_u32 s[12:13], 7, v2")
    def restoreU():
        if cfg.local:
            sk = g.newlab("L_ru")
            A("s_cmp_eq_u64 s[14:15], 0"); A(f"s_cbranch_scc1 {sk}")
            A("s_mov_b64 exec, s[14:15]")
            A(f"buffer_store_dwordx4 v[{RS}:{RS+3}], v{gUPw}, {WS}, s9 offen sc1")
            g.lab(sk)
            A("s_mov_b32 exec_lo, -1")
        A("s_mov_b32 exec_hi, s11")
    gather_finish(g, fl, [GD + 4 * k + 3 for k in range(12)], 0, pre=lambda: A("s_mov_b32 exec_hi, s11"), late=restoreU)
    S = GD + 32
    A(f"v_pk_add_f32 v[12:13], v[{S}:{S+1}], v[{S+4}:{S+5}]"); A(f"v_pk_add_f32 v[14:15], v[{S+8}:{S+9}], v[{S+12}:{S+13}]")
    A("v_pk_add_f32 v[12:13], v[12:13], v[14:15]")
    A("v_mul_f32 v12, 0x3a800000, v12"); A("v_mul_f32 v14, 0x3a800000, v13")
    A("v_fma_f32 v14, -v12, v12, v14"); A("v_max_f32 v14, 0, v14")
    bf16_round(g, 14, 14)
    A("v_add_f32 v14, 0x3727c5ac, v14"); bf16_round(g, 14, 14)
    A("v_sqrt_f32 v14, v14")
    bf16_round(g, 12, 12)
    for k in range(4): unpack24_d(g, GD + 4 * k)
    bf16_round(g, 14, 14); A("v_rcp_f32 v14, v14")
    for k in range(4, 8): unpack24_d(g, GD + 4 * k)
    for h in range(2):
        A(f"v_pk_add_f32 v[{16+2*h}:{17+2*h}], v[{GD+2*h}:{GD+2*h+1}], v[{GD+4+2*h}:{GD+5+2*h}]"); A(f"v_pk_add_f32 v[{20+2*h}:{21+2*h}], v[{GD+8+2*h}:{GD+9+2*h}], v[{GD+12+2*h}:{GD+13+2*h}]")
        A(f"v_pk_add_f32 v[{24+2*h}:{25+2*h}], v[{GD+16+2*h}:{GD+17+2*h}], v[{GD+20+2*h}:{GD+21+2*h}]"); A(f"v_pk_add_f32 v[{28+2*h}:{29+2*h}], v[{GD+24+2*h}:{GD+25+2*h}], v[{GD+28+2*h}:{GD+29+2*h}]")
    for h in range(2):
        A(f"v_pk_add_f32 v[{16+2*h}:{17+2*h}], v[{16+2*h}:{17+2*h}], v[{20+2*h}:{21+2*h}]"); A(f"v_pk_add_f32 v[{24+2*h}:{25+2*h}], v[{24+2*h}:{25+2*h}], v[{28+2*h}:{29+2*h}]")
    for e in range(4): A(f"v_fma_f32 v{16+e}, -v12, v{24+e}, v{16+e}")
    for e in range(4): A(f"v_mul_f32 v{16+e}, v{16+e}, v14")
    for e in range(4): A(f"v_max_f32 v{16+e}, 0, v{16+e}")
    A("v_cvt_pk_bf16_f32 v12, v16, v17"); A("v_cvt_pk_bf16_f32 v13, v18, v19")
    A(f"ds_write_b64 v{aAw}, v[12:13] offset:{AL-QL}")
    restoreU()
    g.full()
    g.nop(1)
    A(f"v_mov_b32 v{RS+3}, {TAG}")
    g.stamp(13)
    gemv256(AL - QL, "s10", "sc1")
    g.stamp(14)
    A(f"s_cmp_lg_u32 s3, {cfg.wr}"); A("s_cbranch_scc1 L_fin_done")
    A(f"s_lshl_b32 {SO[0]}, s6, 12"); A(f"s_add_u32 {SO[0]}, {SO[0]}, {W_FP}"); A("s_lshl_b32 s12, s6, 3")
    srd(g, 40, 32, 16384)
    g.sleep(cfg.d7)
    for s in rl: A(s)
    gather_finish(g, rl, [GD + 4 * k + 3 for k in range(4)], 0)
    red32_tail()
    g.setexec(0xff)
    A(f"buffer_store_dwordx2 v[28:29], v{gOUT}, {XO}, s12 offen")
    A("s_mov_b64 exec, 1")
    A("s_cmp_lg_u32 s2, 0"); A("s_cbranch_scc1 L_fin_done")
    A(f"v_mov_b32 v12, {TAG}"); A("v_mov_b32 v13, 0")
    A(f"buffer_store_dword v12, v13, {WS}, 0 offen sc1")
    g.lab("L_fin_done")
    g.stamp(15)
    if cfg.stamps == 2:
        g.full()
        A(f"s_cmp_lg_u32 s3, {cfg.wr}"); A("s_cbranch_scc1 L_end")
        A("s_waitcnt lgkmcnt(0)")
        A("s_not_b32 s70, s70")
        for i in range(16): A(f"v_writelane_b32 v10, s{70+2*i}, {i}")
        srd(g, 44, 34, 256)
        A("v_lshlrev_b32 v11, 2, v1")
        g.setexec(0xffff)
        A("buffer_atomic_umax v10, v11, s[44:47], 0 offen sc1")
    if cfg.stamps == 1:
        g.full()
        A("s_waitcnt lgkmcnt(0)")
        A("s_mov_b32 s72, s69")
        for i in range(16): A(f"v_writelane_b32 v10, s{70+2*i}, {i}")
        A("s_lshl_b32 s9, s2, 4"); A("s_add_u32 s9, s9, s3"); A("s_lshl_b32 s9, s9, 6"); A(f"s_add_u32 s9, s9, {STAMP_OFF}")
        A("v_lshlrev_b32 v11, 2, v1")
        g.setexec(0xffff)
        A(f"buffer_store_dword v10, v11, {WS}, s9 offen")
    g.lab("L_end"); A("s_endpgm")
    body = "\n".join(x for x in g.L)
    body = body.replace("CODE_SPAN", "L_end - L_begin - 64").replace("    s_getpc_b64 s[10:11]", "    s_getpc_b64 s[10:11]\nL_begin:")
    return wrap(body, 256, 256, LDS_END, vgpr=256, sgpr=102)

def parse(argv=None):
    ap = argparse.ArgumentParser()
    ap.add_argument("-o", default="sequential_preLN__sliding_block_cached__dense_activation_relu__decode.s")
    D = dict(stamps=0, nt=1, pref=1, local=1, wc=1, wr=2, kwin=2, vwin=2, qv=4,
             d2=3, d3=12, d4=3, d5=12, d6=3, d7=12, dr=10, retry_stamp=0)
    for k, d in D.items(): ap.add_argument(f"--{k}", type=int, default=d)
    ap.add_argument("--p", default="2,2,1,2,1,2,2,1,2,2,3")
    a = ap.parse_args(argv); a.p = [int(v) for v in a.p.split(",")]
    return a

if __name__ == "__main__":
    cfg = parse()
    open(cfg.o, "w").write(gen(cfg))
```

```python
import sys, argparse
sys.path.insert(0, "bench")
from asmlib import wrap

RQ = 98304
SCR = 131072
ACT = SCR
STL_ = SCR + 8 * 2080
QL = SCR + 8 * 544
CB = QL + 8 * 288
LDS_END = CB + 4 * 8 * 528
assert STL_ + 256 <= LDS_END <= 163840

W_QP = 0x100000
W_AP = 0x200000
W_AS = 0x280000
W_OB = 0x290000
W_HB = 0x2C0000
W_HS = 0x2D0000
W_HU = 0x2E0000
W_OP = 0x300000
W_AB = 0x340000
W_FP = 0x380000
BDELTA = 0x400000
STAMP_OFF = 128 << 20

WS, XO, SA, SB = "s[36:39]", "s[40:43]", "s[44:47]", "s[48:51]"
TAG = "s8"
PK0, PK1, PK2, UP0, UP1, PCNT = "s52", "s53", "s54", "s55", "s56", "s57"
SO = ["s58", "s59", "s60", "s61"]
mW, sB, sM, sI = "s62", "s63", "s64", "s65"

class G:
    def __init__(self, cfg):
        self.L = []; self.cfg = cfg; self.nlab = 0
    def A(self, s): self.L.append("    " + s)
    def lab(self, s): self.L.append(s + ":")
    def newlab(self, p="L"):
        self.nlab += 1; return f"{p}_{self.nlab}"
    def nop(self, n):
        while n > 0:
            k = min(n, 16); self.A(f"s_nop {k-1}"); n -= k
    def setexec(self, m):
        lo, hi = m & 0xffffffff, m >> 32
        if hi == 0 and lo <= 64: self.A(f"s_mov_b64 exec, {lo}")
        else:
            self.A(f"s_mov_b32 exec_lo, {hex(lo)}"); self.A(f"s_mov_b32 exec_hi, {hex(hi)}")
    def full(self): self.A("s_mov_b64 exec, -1")
    def stamp(self, idx):
        if self.cfg.stamps: self.A(f"s_memrealtime s[{70+2*idx}:{71+2*idx}]")
    def sleep(self, n):
        while n > 0:
            k = min(n, 127); self.A(f"s_sleep {k}"); n -= k

def srd(g, d, p, n):
    if d != p: g.A(f"s_mov_b32 s{d}, s{p}"); g.A(f"s_mov_b32 s{d+1}, s{p+1}")
    g.A(f"s_mov_b32 s{d+2}, {n}"); g.A(f"s_mov_b32 s{d+3}, 0x20000")

def dma4(g, sr, step, pats, waits=None, lo=0, hi=4, adv=True):
    nt = " nt" if g.cfg.nt else ""
    g.A(f"s_mov_b32 m0, {sM}")
    for jj in range(lo, hi):
        w = None if waits is None else (waits if isinstance(waits, int) else waits[jj])
        if w is not None: g.A(f"s_waitcnt vmcnt({w})")
        off = jj * (step - 1024)
        if off: g.A(f"s_add_u32 s15, {sB}, {off}")
        elif w is None and jj == lo: g.A("s_nop 0")
        g.A(f"buffer_load_dwordx4 v{pats[jj]}, {sr}, {'s15' if off else sB} offen offset:{jj*1024}{nt} lds")
    if adv: g.A(f"s_add_u32 {sB}, {sB}, {4*step}"); g.A(f"s_add_u32 {sM}, {sM}, 4096")

def dma_loop(g, sr, step, pats, ngroups, win):
    l = g.newlab("L_dl")
    g.A(f"s_mov_b32 {sI}, 0")
    g.lab(l)
    dma4(g, sr, step, pats, waits=win - 1)
    g.A(f"s_add_u32 {sI}, {sI}, 1"); g.A(f"s_cmp_lt_u32 {sI}, {ngroups}"); g.A(f"s_cbranch_scc1 {l}")

def tagcheck(g, tagregs, tmp=10):
    g.A(f"v_xor_b32 v{tmp}, {TAG}, v{tagregs[0]}")
    for t in tagregs[1:]: g.A(f"v_bitop3_b32 v{tmp}, v{tmp}, v{t}, {TAG} bitop3:0xF6")
    g.A(f"v_cmp_ne_u32 vcc, 0, v{tmp}")

def gather(g, loads, tagregs, stage, issued=False, newer=0, late=None, toggle=(), sleep=0):
    l = g.newlab("L_g"); e = g.newlab("L_ge")
    if g.cfg.nopoll:
        g.A(f"s_waitcnt vmcnt({newer})"); return
    if not issued:
        for s in loads: g.A(s)
    g.A(f"s_mov_b32 {PCNT}, 0")
    g.A(f"s_waitcnt vmcnt({newer})")
    tagcheck(g, tagregs)
    g.A(f"s_cbranch_vccz {e}")
    g.lab(l)
    g.sleep(sleep)
    for s in loads: g.A(s)
    g.A(f"s_add_u32 {PCNT}, {PCNT}, 1")
    g.A("s_waitcnt vmcnt(0)")
    tagcheck(g, tagregs)
    g.A(f"s_cbranch_vccz {e}")
    if g.cfg.local and (late or toggle):
        sk = g.newlab("L_gl")
        g.A(f"s_cmp_lt_u32 {PCNT}, {g.cfg.fb}"); g.A(f"s_cbranch_scc1 {sk}")
        for t in toggle: g.A(f"s_xor_b32 {t}, {t}, {BDELTA}")
        if late:
            g.A(f"s_cmp_lg_u32 {PCNT}, {g.cfg.fb}"); g.A(f"s_cbranch_scc1 {sk}")
            late()
        g.lab(sk)
    g.A(f"s_cmp_lt_u32 {PCNT}, 40000")
    g.A(f"s_cbranch_scc1 {l}")
    g.lab(e)
    if g.cfg.stamps: g.A(f"s_min_u32 {PCNT}, {PCNT}, 15"); g.A(f"s_lshl_b32 {PCNT}, {PCNT}, {4*stage}"); g.A(f"s_add_u32 s69, s69, {PCNT}")

def hu_wait(g, which, nmask, addr, dst, delay):
    if not g.cfg.hu or g.cfg.nopoll: return
    l = g.newlab("L_hu"); e = g.newlab("L_hue")
    g.A(f"v_and_b32 v{addr}, {nmask}, v1"); g.A(f"v_lshlrev_b32 v{addr}, 4, v{addr}")
    g.A("s_lshl_b32 s15, s4, 8"); g.A(f"s_add_u32 s15, s15, {W_HU + which*2048}")
    g.A(f"s_mov_b32 {PCNT}, 0")
    g.lab(l)
    g.A(f"buffer_load_dword v{dst}, v{addr}, {WS}, s15 offen sc1")
    g.A(f"s_add_u32 {PCNT}, {PCNT}, 1")
    g.A("s_waitcnt vmcnt(0)")
    g.A(f"v_cmp_ne_u32 vcc, {TAG}, v{dst}")
    g.A(f"s_cbranch_vccz {e}")
    g.A(f"s_cmp_lt_u32 {PCNT}, {g.cfg.hun}"); g.A(f"s_cbranch_scc1 {l}")
    g.lab(e)
    g.sleep(delay)

def hu_post(g, which, tagreg, tmp):
    if not g.cfg.hu: return
    g.A("s_lshl_b32 s15, s4, 4"); g.A("s_add_u32 s15, s15, s7"); g.A("s_lshl_b32 s15, s15, 4"); g.A(f"s_add_u32 s15, s15, {W_HU + which*2048}")
    g.A(f"v_mov_b32 v{tmp}, 0"); g.A("s_mov_b64 exec, 1")
    g.A(f"buffer_store_dword v{tagreg}, v{tmp}, {WS}, s15 offen")
    g.full()

def pack24(g, d, a):
    g.A(f"v_perm_b32 v{d}, v{a}, v{a+3}, {PK0}"); g.A(f"v_perm_b32 v{d+1}, v{a+1}, v{a+3}, {PK1}"); g.A(f"v_perm_b32 v{d+2}, v{a+2}, v{a+3}, {PK2}")
def unpack24_d(g, b):
    g.A(f"v_perm_b32 v{b+3}, v{b+1}, v{b}, {UP0}"); g.A(f"v_perm_b32 v{b+3}, v{b+2}, v{b+3}, {UP1}")
def bf16_round(g, d, s):
    g.A(f"v_cvt_pk_bf16_f32 v{d}, v{s}, v{s}"); g.A(f"v_lshlrev_b32 v{d}, 16, v{d}")
def xrow_reduce(g, regs, op="v_add_f32", steps=("ror8", "p16", "p32"), tmp=11):
    n = len(regs)
    for st in steps:
        if st.startswith("ror"):
            g.nop(max(0, 3 - n))
            for r in regs: g.A(f"{op}_dpp v{r}, v{r}, v{r} row_ror:{st[3:]} row_mask:0xf bank_mask:0xf")
        else:
            ins = "v_permlane16_swap_b32" if st == "p16" else "v_permlane32_swap_b32"
            for k, r in enumerate(regs): g.A(f"v_mov_b32 v{tmp+k}, v{r}")
            g.nop(max(0, 3 - n))
            for k, r in enumerate(regs): g.A(f"{ins} v{r}, v{tmp+k}")
            g.nop(max(0, 2 - n))
            for k, r in enumerate(regs): g.A(f"{op} v{r}, v{r}, v{tmp+k}")
def mfma(g, d, a, b, first):
    g.A(f"v_mfma_f32_16x16x32_bf16 v[{d}:{d+3}], v[{a}:{a+3}], v[{b}:{b+3}], {'0' if first else f'v[{d}:{d+3}]'}")
def tr(g, d, addr, off):
    g.A(f"ds_read_b64_tr_b16 v[{d}:{d+1}], v{addr} offset:{off}")

pA, pB, aT, aT2, aF, gT16 = 4, 5, 6, 7, 8, 9
gW, aW, aTb, aTb2 = 28, 29, 30, 31
WF, AC, GD = 64, 32, 192
pK = [240, 241, 242, 243]

def gen(cfg):
    g = G(cfg); A = g.A
    g.stamp(0)
    A("s_load_dwordx16 s[16:31], s[0:1], 0")
    A("s_load_dwordx4 s[32:35], s[0:1], 64")
    A("s_load_dwordx2 s[36:37], s[0:1], 80")
    A("s_cmp_ge_u32 s2, 256"); A("s_cbranch_scc1 L_end")
    A("v_lshrrev_b32 v7, 6, v0"); A("v_and_b32 v1, 63, v0")
    A("s_lshr_b32 s5, s2, 3")
    if cfg.pref:
        A("s_getpc_b64 s[10:11]"); g.lab("L_begin")
        A("s_lshl_b32 s9, s5, 8"); A("v_add_u32 v10, s9, v0"); A("v_and_b32 v10, 1023, v10"); A("v_lshlrev_b32 v10, 4, v10")
        A("s_mov_b32 s9, L_end - L_begin - 64"); A("v_min_u32 v10, s9, v10")
        A("global_load_dwordx4 v[12:15], v10, s[10:11]")
    A("v_readfirstlane_b32 s3, v7")
    A("s_and_b32 s4, s2, 7"); A("s_and_b32 s7, s5, 15"); A("s_lshl_b32 s6, s4, 5"); A("s_add_u32 s6, s6, s5")
    A("v_and_b32 v2, 15, v1"); A("v_lshrrev_b32 v3, 4, v1")
    A("v_lshrrev_b32 v16, 5, v0"); A("v_and_b32 v17, 31, v0")
    A("v_lshlrev_b32 v18, 11, v16"); A("v_lshl_add_u32 v18, v17, 4, v18")
    A("s_lshr_b32 s9, s6, 6")
    A("v_lshrrev_b32 v20, 3, v1"); A("v_and_b32 v19, 7, v1")
    A("v_bfe_u32 v21, v1, 4, 1"); A("v_lshlrev_b32 v21, 1, v21"); A("v_xor_b32 v21, v19, v21"); A("v_lshlrev_b32 v21, 4, v21")
    A(f"v_lshl_add_u32 v{pA}, v20, 13, v21"); A(f"v_xor_b32 v{pB}, 64, v{pA}")
    A("s_lshl_b32 s12, s9, 2"); A("s_add_u32 s12, s12, s3"); A("s_lshl_b32 s12, s12, 19"); A("s_and_b32 s13, s6, 63"); A("s_lshl_b32 s13, s13, 7"); A(f"s_add_u32 {sB}, s12, s13")
    A(f"s_lshl_b32 {sM}, s3, 13"); A(f"s_add_u32 {sM}, {sM}, {RQ}")
    A("s_lshl_b32 s13, s9, 9"); A("s_add_u32 s14, s13, 512"); A("s_and_b32 s14, s14, 0x600"); A("s_xor_b32 s12, s13, 1024"); A("s_xor_b32 s9, s14, 1024")
    A("s_waitcnt lgkmcnt(0)")
    srd(g, 40, 16, 16384)
    for i, s in enumerate(["s13", "s14", "s12", "s9"]): A(f"buffer_load_dwordx4 v[{GD+4*i}:{GD+4*i+3}], v18, {XO}, {s} offen")
    srd(g, 44, 22, 8 << 20)
    A("s_load_dword s8, s[36:37], 0")
    for k in range(2): dma4(g, SA, 8 * 8192, [pA, pB, pA, pB])
    g.stamp(1)
    srd(g, 36, 36, 256 << 20); srd(g, 48, 18, 32 << 20)
    A(f"s_mov_b32 {PK0}, 0x07060501"); A(f"s_mov_b32 {PK1}, 0x07060502"); A(f"s_mov_b32 {PK2}, 0x07060503"); A(f"s_mov_b32 {UP0}, 0x0C04000C"); A(f"s_mov_b32 {UP1}, 0x0402010C")
    if cfg.stamps: A("s_mov_b32 s69, 0")
    A("v_mul_u32_u24 v22, 544, v16"); A(f"v_lshl_add_u32 v{aW}, v17, 4, v22"); A(f"v_add_u32 v{aW}, {ACT}, v{aW}")
    A("v_mul_u32_u24 v22, 544, v19"); A(f"v_lshl_add_u32 v{aF}, v3, 4, v22"); A(f"v_add_u32 v{aF}, {ACT}, v{aF}")
    A("v_bfe_u32 v23, v1, 2, 2"); A("v_and_b32 v24, 3, v1"); A("v_lshlrev_b32 v24, 3, v24"); A("v_and_b32 v25, 1, v3"); A("v_lshl_add_u32 v26, v3, 3, v23")
    A("v_lshrrev_b32 v27, 1, v23"); A("v_lshl_add_u32 v27, v25, 1, v27"); A("v_xor_b32 v27, s3, v27"); A("v_lshl_add_u32 v27, v27, 5, v24"); A(f"v_lshl_add_u32 v{aT}, v26, 7, v27")
    A(f"v_add_u32 v{aT2}, 0x10000, v{aT}")
    A(f"v_lshlrev_b32 v{gT16}, 4, v0")
    A("s_lshl_b32 s13, s3, 6"); A("v_lshlrev_b32 v27, 9, v2"); A(f"v_lshl_add_u32 v{gW}, v3, 4, v27"); A(f"v_add_u32 v{gW}, s13, v{gW}")
    A("v_xor_b32 v27, v2, v3"); A("v_lshlrev_b32 v27, 4, v27"); A(f"v_lshl_add_u32 v{pK[0]}, v3, 8, v27")
    for k in range(1, 4): A(f"v_xor_b32 v{pK[k]}, {k*64}, v{pK[0]}")
    A("s_lshl_b32 s68, s4, 4"); A("s_add_u32 s68, s68, s7")
    A("s_lshr_b32 s12, s68, 2"); A("s_lshl_b32 s12, s12, 20"); A("s_and_b32 s13, s68, 3"); A("s_lshl_b32 s13, s13, 16"); A("s_add_u32 s12, s12, s13")
    A(f"s_lshl_b32 {mW}, s3, 14"); A(f"s_add_u32 s12, s12, {mW}"); A("s_add_u32 s66, s12, 0xC0000")
    A(f"s_mov_b32 {sB}, s66"); A(f"s_mov_b32 {sM}, {mW}")
    A("s_lshl_b32 s9, s6, 12"); A(f"s_add_u32 s9, s9, {W_QP}")
    A("s_waitcnt lgkmcnt(0)")
    A("s_mul_i32 s8, s8, 0x9E3779B1"); A("s_add_u32 s8, s8, 0x7F4A7C15")
    U = 96
    A("s_waitcnt vmcnt(8)")
    g.stamp(5)
    for d in range(16):
        A(f"v_lshlrev_b32 v{U+2*d}, 16, v{GD+d}"); A(f"v_and_b32 v{U+2*d+1}, 0xffff0000, v{GD+d}")
    A(f"v_pk_add_f32 v[40:41], v[{U}:{U+1}], v[{U+2}:{U+3}]"); A(f"v_pk_add_f32 v[42:43], v[{U+4}:{U+5}], v[{U+6}:{U+7}]")
    for d in range(4, 16): A(f"v_pk_add_f32 v[{40+2*(d&1)}:{41+2*(d&1)}], v[{40+2*(d&1)}:{41+2*(d&1)}], v[{U+2*d}:{U+2*d+1}]")
    A("v_pk_add_f32 v[40:41], v[40:41], v[42:43]"); A("v_add_f32 v40, v40, v41")
    xrow_reduce(g, [40], steps=("ror8", "ror4", "ror2", "ror1", "p16"))
    A("v_mul_f32 v40, 0xba800000, v40"); A("v_mov_b32 v41, v40")
    for d in range(16):
        r = WF + 2 * (d & 7)
        A(f"v_pk_add_f32 v[{r}:{r+1}], v[{U+2*d}:{U+2*d+1}], v[40:41]")
        a = 44 + 2 * (d & 1)
        if d < 2: A(f"v_pk_mul_f32 v[{a}:{a+1}], v[{r}:{r+1}], v[{r}:{r+1}]")
        else: A(f"v_pk_fma_f32 v[{a}:{a+1}], v[{r}:{r+1}], v[{r}:{r+1}], v[{a}:{a+1}]")
    A("v_pk_add_f32 v[44:45], v[44:45], v[46:47]"); A("v_add_f32 v44, v44, v45")
    xrow_reduce(g, [44], steps=("ror8", "ror4", "ror2", "ror1", "p16"))
    A("v_mul_f32 v44, 0x3a800000, v44")
    bf16_round(g, 40, 40); bf16_round(g, 44, 44)
    A("v_add_f32 v44, 0x3727c5ac, v44"); bf16_round(g, 44, 44)
    A("v_sqrt_f32 v44, v44"); A("v_mov_b32 v41, v40")
    for d in range(4): A(f"v_pk_add_f32 v[{U+2*d}:{U+2*d+1}], v[{U+2*d}:{U+2*d+1}], v[40:41]")
    bf16_round(g, 44, 44)
    A("v_rcp_f32 v46, v44"); A("v_sub_f32 v44, 0, v44"); A("v_mov_b32 v45, v44")
    for d in range(4): A(f"v_cvt_pk_bf16_f32 v{48+d}, v{U+2*d}, v{U+2*d+1}")
    A("v_mov_b32 v47, v46")
    for d in range(4):
        A(f"v_lshlrev_b32 v{U+2*d}, 16, v{48+d}"); A(f"v_and_b32 v{U+2*d+1}, 0xffff0000, v{48+d}")
    for d in range(4): A(f"v_pk_mul_f32 v[{U+16+2*d}:{U+17+2*d}], v[{U+2*d}:{U+2*d+1}], v[46:47]")
    for d in range(4): A(f"v_pk_fma_f32 v[{U+2*d}:{U+2*d+1}], v[{U+16+2*d}:{U+17+2*d}], v[44:45], v[{U+2*d}:{U+2*d+1}]")
    for d in range(4): A(f"v_pk_fma_f32 v[{U+16+2*d}:{U+17+2*d}], v[{U+2*d}:{U+2*d+1}], v[46:47], v[{U+16+2*d}:{U+17+2*d}]")
    for d in range(4): A(f"v_cvt_pk_bf16_f32 v{48+d}, v{U+16+2*d}, v{U+17+2*d}")
    A(f"ds_write_b128 v{aW}, v[48:51]")
    g.stamp(2)
    A(f"v_mov_b32 v14, {TAG}"); A(f"v_mov_b32 v15, {TAG}"); A(f"v_mov_b32 v42, {TAG}"); A(f"v_mov_b32 v43, {TAG}")
    nk0 = cfg.nk0
    A("s_cmp_lt_u32 s5, 16"); A("s_cbranch_scc1 L_nok")
    done = 0
    while done < nk0:
        n = min(4, nk0 - done)
        dma4(g, SB, 1024, pK, waits=[max(0, 7 - min(7, done + jj + cfg.kwin)) + done + jj for jj in range(4)], hi=n, adv=(n == 4))
        done += n
    A(f"s_waitcnt vmcnt({nk0}) lgkmcnt(0)"); A("s_branch L_qb")
    g.lab("L_nok")
    A("s_waitcnt vmcnt(0) lgkmcnt(0)")
    g.lab("L_qb")
    A("s_barrier")
    XFq = 192
    for k in range(8):
        A(f"ds_read_b128 v[{XFq+4*k}:{XFq+4*k+3}], v{aF} offset:{k*64}")
        for q in range(2): tr(g, WF + 4 * k + 2 * q, aT2, RQ - 65536 + k * 4096 + q * 512)
        if k >= 4:
            A("s_waitcnt lgkmcnt(12)"); mfma(g, AC, WF + 4 * (k - 4), XFq + 4 * (k - 4), k == 4)
    for k in range(4, 8):
        A(f"s_waitcnt lgkmcnt({3*(7-k)})"); mfma(g, AC, WF + 4 * k, XFq + 4 * k, False)
    g.setexec(0x00ff00ff00ff00ff)
    g.nop(6)
    A(f"v_mov_b32 v12, v{AC}"); A(f"v_mov_b32 v13, v{AC+1}"); A(f"v_mov_b32 v40, v{AC+2}"); A(f"v_mov_b32 v41, v{AC+3}")
    A(f"buffer_store_dwordx4 v[12:15], v{gW}, {WS}, s9 offen sc1")
    A(f"buffer_store_dwordx4 v[40:43], v{gW}, {WS}, s9 offen offset:256 sc1")
    g.full()
    g.stamp(3)
    A("s_cmp_eq_u32 s5, 15"); A("s_cbranch_scc1 L_done")
    A("s_barrier")
    A("s_cmp_ge_u32 s5, 16"); A("s_cbranch_scc1 L_attn")
    A(f"s_lshl_b32 {sM}, s3, 15")
    A("s_cmp_ge_u32 s5, 8"); A("s_cbranch_scc1 L_f1")
    role_o(g)
    role_f1(g)
    role_attn(g)
    g.lab("L_done")
    g.stamp(15)
    if cfg.stamps == 2:
        g.full()
        A(f"s_cmp_lg_u32 s3, {cfg.wr}"); A("s_cbranch_scc1 L_end"); A("s_cmp_ge_u32 s5, 8"); A("s_cbranch_scc1 L_end")
        A("s_waitcnt lgkmcnt(0)"); A("s_not_b32 s70, s70")
        for i in range(16): A(f"v_writelane_b32 v10, s{70+2*i}, {i}")
        srd(g, 44, 34, 256); A("v_lshlrev_b32 v11, 2, v1"); g.setexec(0xffff)
        A("buffer_atomic_umax v10, v11, s[44:47], 0 offen sc1")
    if cfg.stamps == 1:
        g.full()
        A("s_waitcnt lgkmcnt(0)"); A("s_mov_b32 s72, s69")
        for i in range(16): A(f"v_writelane_b32 v10, s{70+2*i}, {i}")
        A("s_lshl_b32 s9, s2, 4"); A("s_add_u32 s9, s9, s3"); A("s_lshl_b32 s9, s9, 6"); A(f"s_add_u32 s9, s9, {STAMP_OFF}")
        A("v_lshlrev_b32 v11, 2, v1"); g.setexec(0xffff)
        A(f"buffer_store_dword v10, v11, {WS}, s9 offen")
    g.lab("L_end"); A("s_endpgm")
    return wrap("\n".join(g.L), 256, 256, LDS_END, vgpr=256, sgpr=102)

def role_o(g):
    A = g.A; cfg = g.cfg
    gOUT, gL16 = 62, 63
    A("v_lshlrev_b32 v22, 1, v3"); A("v_xor_b32 v22, v2, v22"); A("v_lshlrev_b32 v22, 4, v22"); A(f"v_lshl_add_u32 v{pA}, v3, 11, v22"); A(f"v_xor_b32 v{pB}, 128, v{pA}")
    srd(g, 44, 24, 8 << 20)
    A("s_lshl_b32 s6, s4, 3"); A("s_add_u32 s6, s6, s7"); A("s_lshl_b32 s14, s6, 2")
    A("v_bfe_u32 v22, v1, 3, 2"); A("v_lshlrev_b32 v22, 3, v22"); A(f"v_lshl_add_u32 v{gOUT}, v19, 11, v22"); A("s_lshl_b32 s68, s14, 3")
    A(f"buffer_load_dwordx2 v[60:61], v{gOUT}, {XO}, s68 offen")
    A("s_lshl_b32 s12, s4, 2"); A("s_add_u32 s12, s12, s3"); A("s_lshl_b32 s12, s12, 18"); A("s_lshl_b32 s13, s7, 8"); A(f"s_add_u32 {sB}, s12, s13")
    P4 = [pA, pA, pB, pB]
    g.sleep(cfg.osl)
    if cfg.on1: dma_loop(g, SA, 4 * 2048, P4, cfg.on1, cfg.ow1)
    dma_loop(g, SA, 4 * 2048, P4, 8 - cfg.on1, cfg.ow2)
    A("v_lshl_add_u32 v27, v25, 2, v23"); A("s_lshl_b32 s11, s3, 1"); A("v_xor_b32 v27, s11, v27"); A("v_lshl_add_u32 v27, v27, 5, v24")
    A(f"v_lshl_add_u32 v{aT}, v26, 8, v27"); A(f"v_xor_b32 v{aTb}, 32, v{aT}"); A(f"v_add_u32 v{aT2}, 0x10000, v{aT}"); A(f"v_add_u32 v{aTb2}, 0x10000, v{aTb}")
    A("v_mul_u32_u24 v22, 1056, v16"); A(f"v_lshl_add_u32 v{aW}, v17, 3, v22"); A(f"v_add_u32 v{aW}, {ACT}, v{aW}")
    A("v_mul_u32_u24 v22, 1056, v19"); A(f"v_lshl_add_u32 v{aF}, v3, 4, v22"); A(f"v_add_u32 v{aF}, {ACT}, v{aF}")
    A("v_lshrrev_b32 v22, 3, v2"); A("v_add_u32 v22, s11, v22"); A("v_lshl_add_u32 v22, v22, 2, v3"); A("v_lshlrev_b32 v22, 10, v22"); A(f"v_lshl_add_u32 v{gW}, v19, 4, v22")
    A("v_cmp_lt_u32 s[66:67], 7, v2")
    for r_ in (47, 50, 51, 54, 55): A(f"v_mov_b32 v{r_}, {TAG}")
    A(f"v_lshlrev_b32 v{gL16}, 4, v1")
    A(f"s_lshl_b32 {SO[0]}, s4, 14"); A(f"s_add_u32 {SO[0]}, {SO[0]}, {W_OB}")
    for i in range(1, 4): A(f"s_add_u32 {SO[i]}, {SO[0]}, {i*4096}")
    A("s_lshl_b32 s9, s7, 15"); A("s_lshl_b32 s10, s4, 7"); A("s_add_u32 s9, s9, s10"); A(f"s_add_u32 s9, s9, {W_OP}")
    A("s_waitcnt vmcnt(0)")
    A("s_barrier")
    g.stamp(4)
    ol = [f"buffer_load_dwordx4 v[{GD+4*k}:{GD+4*k+3}], v{gT16}, {WS}, {SO[k]} offen sc1" for k in range(4)]
    early = cfg.early and not cfg.hu
    if early:
        for x_ in ol: A(x_)
    for k in range(16):
        for tl in range(2):
            for q in range(2):
                tr(g, WF + 64 * tl + 4 * k + 2 * q, ([aT, aTb] if k < 8 else [aT2, aTb2])[tl], (k & 7) * 8192 + q * 1024)
    srd(g, 40, 32, 16384)
    for p in range(2):
        A(f"v_lshlrev_b32 v{56+2*p}, 16, v{60+p}"); A(f"v_and_b32 v{57+2*p}, 0xffff0000, v{60+p}")
    hu_wait(g, 0, 15, 12, 13, cfg.da)
    gather(g, ol, [GD + 4 * k + 2 for k in range(4)] + [GD + 4 * k + 3 for k in range(4)], 2, sleep=cfg.ps, issued=early)
    for k in range(4): A(f"ds_write_b64 v{aW}, v[{GD+4*k}:{GD+4*k+1}] offset:{k*256}")
    A(f"s_lshl_b32 {SO[0]}, s14, 10"); A(f"s_add_u32 {SO[1]}, {SO[0]}, {W_FP}"); A(f"s_add_u32 {SO[0]}, {SO[0]}, {W_OP}")
    A(f"s_lshl_b32 {SO[2]}, s14, 7"); A(f"s_add_u32 {SO[2]}, {SO[2]}, {W_HB}"); A(f"s_lshl_b32 {SO[3]}, s6, 7"); A(f"s_add_u32 {SO[3]}, {SO[3]}, {W_HS}")
    g.stamp(8)
    A("s_waitcnt lgkmcnt(0)")
    A("s_barrier")
    for k in range(16): A(f"ds_read_b128 v[{GD+4*k}:{GD+4*k+3}], v{aF} offset:{k*64}")
    for k in range(16):
        A(f"s_waitcnt lgkmcnt({15-k})")
        for tl in range(2): mfma(g, AC + 4 * tl, WF + 64 * tl + 4 * k, GD + 4 * k, k == 0)
    g.nop(7)
    for e in range(4): A(f"v_cndmask_b32 v{40+e}, v{AC+e}, v{AC+4+e}, s[66:67]") if e == 0 else None
    L = g.L; L.pop()
    A("s_nop 0")
    for e in range(4): A(f"v_cndmask_b32 v{40+e}, v{AC+e}, v{AC+4+e}, s[66:67]")
    pack24(g, 44, 40)
    A(f"buffer_store_dwordx4 v[44:47], v{gW}, {WS}, s9 offen sc1")
    g.stamp(9)
    A(f"s_cmp_lg_u32 s3, {cfg.wr}"); A("s_cbranch_scc1 L_done")
    def red(so, stage):
        rl = [f"buffer_load_dwordx4 v[{GD+4*k}:{GD+4*k+3}], v{gL16}, {WS}, {so} offen offset:{k*1024} sc1" for k in range(4)]
        gather(g, rl, [GD + 4 * k + 3 for k in range(4)], stage, sleep=cfg.ps)
        for k in range(4): unpack24_d(g, GD + 4 * k)
        for e in range(16): A(f"v_add_f32_dpp v{GD+e}, v{GD+e}, v{GD+e} row_ror:8 row_mask:0xf bank_mask:0xf")
        for e in range(4): A(f"v_cndmask_b32 v{40+e}, v{GD+e}, v{GD+4+e}, s[66:67]")
        for e in range(4): A(f"v_cndmask_b32 v{12+e}, v{GD+8+e}, v{GD+12+e}, s[66:67]")
        for e in range(4): A(f"v_permlane16_swap_b32 v{40+e}, v{12+e}")
        for e in range(4): A(f"v_add_f32 v{40+e}, v{40+e}, v{12+e}")
        xrow_reduce(g, [40, 41, 42, 43], steps=("p32",), tmp=12)
        A("v_cvt_pk_bf16_f32 v12, v40, v41"); A("v_cvt_pk_bf16_f32 v13, v42, v43")
        for p in range(2):
            A(f"v_lshlrev_b32 v{40+2*p}, 16, v{12+p}"); A(f"v_and_b32 v{41+2*p}, 0xffff0000, v{12+p}")
        for h in range(2): A(f"v_pk_add_f32 v[{40+2*h}:{41+2*h}], v[{40+2*h}:{41+2*h}], v[{56+2*h}:{57+2*h}]")
        A("v_cvt_pk_bf16_f32 v48, v40, v41"); A("v_cvt_pk_bf16_f32 v49, v42, v43")
    g.sleep(cfg.d4)
    red(SO[0], 3)
    A("s_mov_b32 exec_hi, 0")
    A(f"buffer_store_dwordx4 v[48:51], v{gL16}, {WS}, {SO[2]} offen sc1")
    for p in range(2):
        A(f"v_lshlrev_b32 v{56+2*p}, 16, v{48+p}"); A(f"v_and_b32 v{57+2*p}, 0xffff0000, v{48+p}")
    A("v_pk_add_f32 v[40:41], v[56:57], v[58:59]"); A("v_pk_mul_f32 v[42:43], v[56:57], v[56:57]"); A("v_pk_fma_f32 v[42:43], v[58:59], v[58:59], v[42:43]")
    A("v_add_f32 v52, v40, v41"); A("v_add_f32 v53, v42, v43")
    xrow_reduce(g, [52, 53], steps=("ror8", "p16"), tmp=12)
    g.setexec(0xff)
    A(f"buffer_store_dwordx4 v[52:55], v{gL16}, {WS}, {SO[3]} offen sc1")
    g.full()
    hu_post(g, 1, 55, 12)
    g.stamp(10)
    if not cfg.hu: g.sleep(cfg.d7)
    hu_wait(g, 2, 15, 12, 13, cfg.dc)
    red(SO[1], 6)
    A("s_mov_b32 exec_hi, 0")
    A(f"buffer_store_dwordx2 v[48:49], v{gOUT}, {XO}, s68 offen")
    A("s_mov_b64 exec, 1")
    A("s_cmp_lg_u32 s2, 0"); A("s_cbranch_scc1 L_done")
    A(f"v_mov_b32 v12, {TAG}"); A("v_mov_b32 v13, 0")
    A(f"buffer_store_dword v12, v13, {WS}, 0 offen sc1")
    A("s_branch L_done")

def role_f1(g):
    A = g.A; cfg = g.cfg
    STL = "" if cfg.local else "sc1"
    HF = 224
    g.lab("L_f1")
    A("s_movk_i32 s12, 7168"); A("v_mul_lo_u32 v22, v20, s12"); A(f"v_add_u32 v{pA}, v22, v21"); A(f"v_xor_b32 v{pB}, 64, v{pA}")
    srd(g, 44, 28, 7340032)
    A("s_mul_i32 s12, s4, 7"); A("s_add_u32 s12, s12, s7"); A("s_sub_u32 s12, s12, 8"); A("s_lshl_b32 s13, s12, 7"); A(f"s_mul_i32 s14, s3, {256*7168}"); A(f"s_add_u32 {sB}, s13, s14")
    P2 = [pA, pB, pA, pB]
    g.sleep(cfg.fsl)
    if cfg.fn1: dma_loop(g, SA, 8 * 7168, P2, cfg.fn1, cfg.fw1)
    dma_loop(g, SA, 8 * 7168, P2, 8 - cfg.fn1, cfg.fw2)
    A("v_mul_u32_u24 v22, 2080, v19"); A("v_lshrrev_b32 v27, 3, v0"); A(f"v_lshl_add_u32 v{aW}, v27, 3, v22"); A(f"v_add_u32 v{aW}, {ACT}, v{aW}")
    A(f"v_lshl_add_u32 v{aF}, v3, 4, v22"); A(f"v_add_u32 v{aF}, {ACT}, v{aF}")
    A("s_lshl_b32 s13, s3, 9"); A("v_lshlrev_b32 v22, 7, v3"); A(f"v_lshl_add_u32 v{gW}, v2, 4, v22"); A(f"v_add_u32 v{gW}, s13, v{gW}")
    A(f"s_lshl_b32 s9, s12, 11"); A(f"s_add_u32 s9, s9, {W_AB}"); A(f"s_add_u32 s10, s9, {BDELTA}")
    for i in range(4): A(f"s_mov_b32 {SO[i]}, {W_HB+8192*i}")
    A(f"v_add_u32 v{aTb}, 4096, v{gT16}")
    A("v_mov_b32 v12, 0x3f803f80"); A("v_mov_b32 v13, v12"); A("v_mov_b32 v14, v12"); A("v_mov_b32 v15, v12")
    A(f"s_mov_b32 s68, {W_HS}")
    A("s_lshl_b32 s13, s3, 6"); A(f"v_lshl_add_u32 v{aTb2}, v19, 3, s13"); A(f"v_add_u32 v{aTb2}, {STL_}, v{aTb2}")
    A("v_lshlrev_b32 v27, 3, v19"); A(f"v_add_u32 v27, {STL_}, v27")
    A(f"v_mov_b32 v46, {TAG}"); A(f"v_mov_b32 v47, {TAG}")
    A("s_waitcnt vmcnt(0)")
    A("s_barrier")
    g.stamp(4)
    hl = [f"buffer_load_dwordx4 v[{GD+4*k}:{GD+4*k+3}], v{gT16 if k % 2 == 0 else aTb}, {WS}, {SO[k>>1]} offen sc1" for k in range(8)]
    hl += [f"buffer_load_dwordx4 v[{48+4*k}:{51+4*k}], v{gT16 if k == 0 else aTb}, {WS}, s68 offen sc1" for k in range(2)]
    early = cfg.early and not cfg.hu
    if early:
        for x_ in hl: A(x_)
    for k in range(32):
        for q in range(2): tr(g, WF + 4 * k + 2 * q, aT if k < 16 else aT2, (k & 15) * 4096 + q * 512)
        if k >= 6:
            A("s_waitcnt lgkmcnt(12)"); mfma(g, AC + 4, WF + 4 * (k - 6), 12, k == 6)
    for k in range(26, 32):
        A(f"s_waitcnt lgkmcnt({2*(31-k)})"); mfma(g, AC + 4, WF + 4 * k, 12, False)
    g.stamp(10)
    hu_wait(g, 1, 7, 40, 41, cfg.db)
    gather(g, hl, [GD + 4 * k + 2 for k in range(8)] + [GD + 4 * k + 3 for k in range(8)] + [51, 55], 4, sleep=cfg.ps, issued=early)
    for k in range(8): A(f"ds_write_b64 v{aW}, v[{GD+4*k}:{GD+4*k+1}] offset:{k*256}")
    g.stamp(11)
    A("s_waitcnt lgkmcnt(0)")
    A("s_barrier")
    for k in range(8): A(f"ds_read_b128 v[{HF+4*k}:{HF+4*k+3}], v{aF} offset:{k*64}")
    A("v_pk_add_f32 v[40:41], v[48:49], v[52:53]")
    side = {
        0: ["v_add_f32_dpp v40, v40, v40 row_ror:8 row_mask:0xf bank_mask:0xf", "v_add_f32_dpp v41, v41, v41 row_ror:8 row_mask:0xf bank_mask:0xf"],
        1: ["v_mov_b32 v42, v40", "v_mov_b32 v43, v41"],
        2: ["v_permlane16_swap_b32 v40, v42", "v_permlane16_swap_b32 v41, v43"],
        3: ["v_pk_add_f32 v[40:41], v[40:41], v[42:43]"],
        4: ["v_mov_b32 v42, v40", "v_mov_b32 v43, v41"],
        5: ["v_permlane32_swap_b32 v40, v42", "v_permlane32_swap_b32 v41, v43"],
        6: ["v_pk_add_f32 v[40:41], v[40:41], v[42:43]"],
        7: ["s_mov_b32 exec_lo, 0xff", "s_mov_b32 exec_hi, 0", f"ds_write_b64 v{aTb2}, v[40:41]", "s_mov_b64 exec, -1"],
        12: ["s_barrier"] + [f"ds_read_b64 v[{48+2*w}:{49+2*w}], v27 offset:{w*64}" for w in range(4)],
        21: ["v_pk_add_f32 v[48:49], v[48:49], v[50:51]", "v_pk_add_f32 v[52:53], v[52:53], v[54:55]"],
        22: ["v_pk_add_f32 v[48:49], v[48:49], v[52:53]"],
        23: ["v_mul_f32 v48, 0x3a800000, v48", "v_mul_f32 v49, 0x3a800000, v49"],
        24: ["v_fma_f32 v49, -v48, v48, v49", "v_max_f32 v49, 0, v49"],
        25: ["v_cvt_pk_bf16_f32 v49, v49, v49", "v_lshlrev_b32 v49, 16, v49"],
        26: ["v_add_f32 v49, 0x3727c5ac, v49", "v_cvt_pk_bf16_f32 v49, v49, v49"],
        27: ["v_lshlrev_b32 v49, 16, v49", "v_sqrt_f32 v49, v49"],
        28: ["v_cvt_pk_bf16_f32 v48, v48, v48", "v_cvt_pk_bf16_f32 v49, v49, v49"],
        29: ["v_lshlrev_b32 v48, 16, v48", "v_lshlrev_b32 v49, 16, v49"],
        30: ["v_rcp_f32 v49, v49"],
    }
    seq = [("f", k) for k in range(8)]
    for k in range(32):
        need = seq.index(("f", k))
        if k == 12: need = max(need, seq.index(("w", 0)))
        if k == 21: need = max(need, seq.index(("s", 3)))
        A(f"s_waitcnt lgkmcnt({len(seq) - 1 - need})")
        mfma(g, AC, WF + 4 * k, HF + 4 * (k & 7), k == 0)
        if k + 8 < 32:
            A(f"ds_read_b128 v[{HF+4*(k&7)}:{HF+4*(k&7)+3}], v{aF} offset:{(k+8)*64}"); seq.append(("f", k + 8))
        for x_ in side.get(k, []): A(x_)
        if k == 7: seq.append(("w", 0))
        if k == 12: seq += [("s", w) for w in range(4)]
    g.nop(6)
    g.setexec(0x00ff00ff00ff00ff)
    for e in range(4): A(f"v_fma_f32 v{40+e}, -v48, v{AC+4+e}, v{AC+e}")
    for e in range(4): A(f"v_mul_f32 v{40+e}, v{40+e}, v49")
    for e in range(4): A(f"v_max_f32 v{40+e}, 0, v{40+e}")
    A("v_cvt_pk_bf16_f32 v44, v40, v41"); A("v_cvt_pk_bf16_f32 v45, v42, v43")
    A(f"buffer_store_dwordx4 v[44:47], v{gW}, {WS}, s9 offen {STL}")
    if cfg.local: A(f"buffer_store_dwordx4 v[44:47], v{gW}, {WS}, s10 offen sc1")
    g.stamp(12)
    A("s_branch L_done")

def role_attn(g):
    A = g.A; cfg = g.cfg
    STL = "" if cfg.local else "sc1"
    KF, VF, QF, SC, PV, GA = 64, 128, 192, 32, 208, 128
    PF, RS = 48, 56
    pV = [244, 245]; p2 = [4, 5]
    aK, aV, gQ, aQw, aCBw, aCBr, aCBs, gASw, gC, gS = range(246, 256)
    gL16 = 18
    g.lab("L_attn")
    A("s_mov_b32 s6, s68")
    nk0 = cfg.nk0
    done = nk0
    while done < 16:
        lo = done & 3
        dma4(g, SB, 1024, pK, waits=cfg.kw - 1, lo=lo)
        done += 4 - lo
    srd(g, 44, 20, 32 << 20)
    A("v_lshlrev_b32 v22, 1, v3"); A("v_xor_b32 v22, v2, v22"); A("v_lshlrev_b32 v22, 4, v22"); A(f"v_lshl_add_u32 v{pV[0]}, v3, 8, v22"); A(f"v_xor_b32 v{pV[1]}, 128, v{pV[0]}")
    A(f"s_mov_b32 {sB}, s66"); A(f"s_add_u32 {sM}, {mW}, 0x10000")
    A("s_lshr_b32 s10, s7, 2"); A("s_lshl_b32 s10, s10, 16"); A("s_lshl_b32 s11, s4, 9"); A("s_add_u32 s10, s10, s11"); A(f"s_add_u32 {SO[0]}, s10, {W_QP}")
    for i in range(1, 4): A(f"s_add_u32 {SO[i]}, {SO[0]}, {i*262144}")
    A("v_lshrrev_b32 v22, 4, v0"); A("v_lshlrev_b32 v22, 12, v22"); A(f"v_lshl_add_u32 v{gQ}, v2, 4, v22")
    PVp = [pV[0], pV[1], pV[0], pV[1]]
    QD = 192
    ql = [f"buffer_load_dwordx4 v[{QD+8*k+4*h}:{QD+8*k+4*h+3}], v{gQ}, {WS}, {SO[k]} offen offset:{256*h} sc1" for k in range(4) for h in range(2)]
    for k in range(4):
        if k == cfg.qpos:
            for s in ql: A(s)
        dma4(g, SA, 1024, PVp, waits=cfg.vw - 1 + (8 if k >= cfg.qpos else 0))
        if k == 0:
            A("v_lshl_add_u32 v27, v25, 2, v23"); A("v_lshl_add_u32 v27, v27, 5, v24"); A("v_lshl_add_u32 v22, v3, 2, v23")
            A(f"v_lshl_add_u32 v{aV}, v22, 8, v27"); A(f"v_add_u32 v{aV}, {mW}, v{aV}"); A(f"v_add_u32 v{aV}, 0x10000, v{aV}")
            A("v_xor_b32 v22, v3, v2"); A("v_lshlrev_b32 v22, 4, v22"); A(f"v_lshl_add_u32 v{aK}, v2, 8, v22"); A(f"v_add_u32 v{aK}, {mW}, v{aK}")
            A("v_mul_u32_u24 v22, 288, v16"); A(f"v_lshl_add_u32 v{aQw}, v17, 3, v22"); A(f"v_add_u32 v{aQw}, {QL}, v{aQw}")
            A("v_mul_u32_u24 v22, 288, v19"); A(f"v_lshl_add_u32 v{aF}, v3, 4, v22"); A(f"v_add_u32 v{aF}, {QL}, v{aF}")
            A("s_mul_i32 s13, s3, 4224"); A("v_mul_u32_u24 v22, 528, v2"); A(f"v_lshl_add_u32 v{aCBw}, v3, 4, v22"); A(f"v_add_u32 v{aCBw}, s13, v{aCBw}"); A(f"v_add_u32 v{aCBw}, {CB}, v{aCBw}")
            A("v_mul_u32_u24 v22, 528, v16"); A(f"v_add_u32 v22, {CB}, v22"); A(f"v_lshl_add_u32 v{aCBr}, v17, 4, v22"); A(f"v_add_u32 v{aCBs}, 512, v22")
            A(f"v_lshlrev_b32 v{gL16}, 4, v1"); A(f"v_lshrrev_b32 v{gASw}, 1, v0")
            A("v_lshrrev_b32 v22, 5, v1"); A("v_lshlrev_b32 v27, 4, v22"); A(f"v_lshl_add_u32 v{gS}, v24, 4, v27")
            A("v_lshlrev_b32 v22, 12, v22"); A(f"v_lshl_add_u32 v{gC}, v17, 4, v22")
            for kk in range(1, 4): A(f"v_xor_b32 v{36+kk}, {kk*64}, v{aK}")
            A(f"v_mov_b32 v{RS+3}, {TAG}"); A(f"v_mov_b32 v{RS+6}, {TAG}"); A(f"v_mov_b32 v{RS+7}, {TAG}")
            A(f"v_lshl_add_u32 v{p2[0]}, v20, 11, v21"); A(f"v_xor_b32 v{p2[1]}, 64, v{p2[0]}")
    if cfg.qpos >= 4:
        A(f"s_waitcnt vmcnt({cfg.qw})")
        for s in ql: A(s)
    newer = max(0, 4 - cfg.qpos) * 4
    A(f"s_waitcnt vmcnt({16+8})")
    for tl in range(4):
        for k in range(4): A(f"ds_read_b128 v[{KF+16*tl+4*k}:{KF+16*tl+4*k+3}], v{aK if k == 0 else 36+k} offset:{tl*4096}")
    srd(g, 48, 30, 7340032)
    A("s_lshl_b32 s12, s4, 2"); A("s_add_u32 s12, s12, s3"); A(f"s_mul_i32 s12, s12, {112*2048}"); A("s_lshl_b32 s13, s7, 7"); A(f"s_add_u32 {sB}, s12, s13")
    A(f"s_mul_i32 {sM}, s3, {14*1024}")
    g.stamp(11)
    gather(g, ql, [QD + 4 * j + 2 for j in range(8)] + [QD + 4 * j + 3 for j in range(8)], 0, issued=True, newer=newer)
    g.stamp(4)
    for h in range(2):
        A(f"v_pk_add_f32 v[{12+2*h}:{13+2*h}], v[{QD+4*h}:{QD+4*h+1}], v[{QD+8+4*h}:{QD+9+4*h}]"); A(f"v_pk_add_f32 v[{32+2*h}:{33+2*h}], v[{QD+16+4*h}:{QD+17+4*h}], v[{QD+24+4*h}:{QD+25+4*h}]")
    for h in range(2): A(f"v_pk_add_f32 v[{12+2*h}:{13+2*h}], v[{12+2*h}:{13+2*h}], v[{32+2*h}:{33+2*h}]")
    A("v_cvt_pk_bf16_f32 v12, v12, v13"); A("v_cvt_pk_bf16_f32 v13, v14, v15")
    A(f"ds_write_b64 v{aQw}, v[12:13]")
    for t in range(1, 8): A(f"v_xor_b32 v{224+t}, {t*32}, v{aV}") if False else None
    A("s_mov_b32 s9, 0x3db504f3"); A("s_mov_b32 s10, 0x3fb8aa3b")
    A("s_waitcnt lgkmcnt(0)")
    A("s_barrier")
    for k in range(4): A(f"ds_read_b128 v[{QF+4*k}:{QF+4*k+3}], v{aF} offset:{k*64}")
    P2 = [p2[0], p2[1], p2[0], p2[1]]
    n2 = cfg.w2e
    for k in range(n2 // 4): dma4(g, SB, 8 * 2048, P2)
    for k in range(4):
        A(f"s_waitcnt lgkmcnt({3-k})")
        for tl in range(4): mfma(g, SC + 4 * tl, KF + 16 * tl + 4 * k, QF + 4 * k, k == 0)
    VA = 112
    for t in range(1, 6): A(f"v_xor_b32 v{VA+t}, {t*32}, v{aV}") if False else None
    g.nop(5)
    E = 64
    for p in range(8): A(f"v_cvt_pk_bf16_f32 v{PF+p}, v{SC+2*p}, v{SC+2*p+1}")
    for p in range(8):
        A(f"v_lshlrev_b32 v{E+2*p}, 16, v{PF+p}"); A(f"v_and_b32 v{E+2*p+1}, 0xffff0000, v{PF+p}")
    A("s_mov_b32 s11, s9")
    for p in range(8): A(f"v_pk_mul_f32 v[{E+2*p}:{E+2*p+1}], v[{E+2*p}:{E+2*p+1}], s[12:13]") if False else None
    for e in range(16): A(f"v_mul_f32 v{E+e}, s9, v{E+e}")
    for p in range(8): A(f"v_cvt_pk_bf16_f32 v{PF+p}, v{E+2*p}, v{E+2*p+1}")
    for p in range(8):
        A(f"v_lshlrev_b32 v{E+2*p}, 16, v{PF+p}"); A(f"v_and_b32 v{E+2*p+1}, 0xffff0000, v{PF+p}")
    for k in range(5): A(f"v_max3_f32 v{32+k}, v{E+3*k}, v{E+3*k+1}, v{E+3*k+2}")
    A(f"v_max3_f32 v32, v32, v33, v{E+15}"); A("v_max3_f32 v34, v34, v35, v36"); A("v_max_f32 v30, v32, v34")
    A("v_mov_b32 v11, v30")
    for t in range(1, 3): A(f"v_xor_b32 v{VA+t}, {t*32}, v{aV}")
    A("v_permlane16_swap_b32 v30, v11"); A(f"v_xor_b32 v{VA+3}, {3*32}, v{aV}"); A("v_max_f32 v30, v30, v11"); A("v_mov_b32 v11, v30")
    for t in range(4, 6): A(f"v_xor_b32 v{VA+t}, {t*32}, v{aV}")
    A("v_permlane32_swap_b32 v30, v11"); A(f"v_xor_b32 v{VA+6}, {6*32}, v{aV}"); A("v_max_f32 v30, v30, v11"); A(f"v_xor_b32 v{VA+7}, {7*32}, v{aV}")
    A("v_mul_f32 v30, s10, v30")
    for e in range(16): A(f"v_fma_f32 v{E+e}, v{E+e}, s10, -v30")
    for e in range(8): A(f"v_exp_f32 v{E+e}, v{E+e}")
    g.stamp(5)
    A(f"s_waitcnt vmcnt({n2+8})")
    for t in range(8):
        for q in range(2): tr(g, VF + 4 * t + 2 * q, aV if t == 0 else VA + t, q * 4096)
    for p in range(4): A(f"v_cvt_pk_bf16_f32 v{PF+p}, v{E+2*p}, v{E+2*p+1}")
    for e in range(8, 16): A(f"v_exp_f32 v{E+e}, v{E+e}")
    for t in range(8):
        A(f"s_waitcnt lgkmcnt({14-2*t})")
        mfma(g, PV + 4 * t, VF + 4 * t, PF, True)
        if t < 4: A(f"v_cvt_pk_bf16_f32 v{PF+4+t}, v{E+8+2*t}, v{E+9+2*t}")
        else: A(f"v_pk_add_f32 v[{E+4*(t-4)}:{E+4*(t-4)+1}], v[{E+4*(t-4)}:{E+4*(t-4)+1}], v[{E+4*(t-4)+2}:{E+4*(t-4)+3}]")
    A(f"s_waitcnt vmcnt({n2})")
    g.stamp(10)
    for t in range(8):
        for q in range(2): tr(g, VF + 32 + 4 * t + 2 * q, aV if t == 0 else VA + t, 8192 + q * 4096)
    tail = [f"v_pk_add_f32 v[{E}:{E+1}], v[{E}:{E+1}], v[{E+4}:{E+5}]", f"v_pk_add_f32 v[{E+8}:{E+9}], v[{E+8}:{E+9}], v[{E+12}:{E+13}]",
            f"v_pk_add_f32 v[{E}:{E+1}], v[{E}:{E+1}], v[{E+8}:{E+9}]", f"v_add_f32 v31, v{E}, v{E+1}", "v_mov_b32 v11, v31", "s_nop 0",
            "v_permlane16_swap_b32 v31, v11", "v_add_f32 v31, v31, v11"]
    for t in range(8):
        A(f"s_waitcnt lgkmcnt({14-2*t})")
        mfma(g, PV + 4 * t, VF + 32 + 4 * t, PF + 4, False)
        A(tail[t])
    A("v_mov_b32 v11, v31"); g.nop(2); A("v_permlane32_swap_b32 v31, v11"); g.nop(1); A("v_add_f32 v31, v31, v11")
    g.setexec(0x00ff00ff00ff00ff)
    for t in range(8): A(f"ds_write_b128 v{aCBw}, v[{PV+4*t}:{PV+4*t+3}] offset:{t*64}")
    g.setexec(0xff)
    A(f"ds_write_b64 v{aCBw}, v[30:31] offset:512")
    g.full()
    A("s_lshl_b32 s9, s6, 12"); A(f"s_add_u32 s9, s9, {W_AP}"); A("s_lshl_b32 s10, s6, 7"); A(f"s_add_u32 s10, s10, {W_AS}")
    A("s_waitcnt lgkmcnt(0)")
    A("s_barrier")
    for w in range(4): A(f"ds_read_b64 v[{32+2*w}:{33+2*w}], v{aCBs} offset:{w*4224}")
    for w in range(4): A(f"ds_read_b128 v[{GA+4*w}:{GA+4*w+3}], v{aCBr} offset:{w*4224}")
    A("s_waitcnt lgkmcnt(4)")
    M4, L4 = RS + 4, RS + 5
    A(f"v_max3_f32 v{M4}, v32, v34, v36"); A(f"v_max_f32 v{M4}, v{M4}, v38")
    for w in range(4): A(f"v_sub_f32 v{32+2*w}, v{32+2*w}, v{M4}")
    for w in range(4): A(f"v_exp_f32 v{32+2*w}, v{32+2*w}")
    A("s_waitcnt lgkmcnt(0)")
    for e in range(4): A(f"v_mul_f32 v{40+e}, v32, v{GA+e}")
    for w in range(1, 4):
        for e in range(4): A(f"v_fmac_f32 v{40+e}, v{32+2*w}, v{GA+4*w+e}")
    pack24(g, RS, 40)
    A(f"buffer_store_dwordx4 v[{RS}:{RS+3}], v{gT16}, {WS}, s9 offen {STL}")
    A(f"v_mul_f32 v{L4}, v32, v33")
    for w in range(1, 4): A(f"v_fmac_f32 v{L4}, v{32+2*w}, v{33+2*w}")
    g.setexec(0x0000000100000001)
    A(f"buffer_store_dwordx4 v[{RS+4}:{RS+7}], v{gASw}, {WS}, s10 offen {STL}")
    g.full()
    g.stamp(6)
    def twinA():
        if cfg.local:
            A(f"s_add_u32 s12, s9, {BDELTA}"); A(f"s_add_u32 s13, s10, {BDELTA}")
            A(f"buffer_store_dwordx4 v[{RS}:{RS+3}], v{gT16}, {WS}, s12 offen sc1")
            g.setexec(0x0000000100000001)
            A(f"buffer_store_dwordx4 v[{RS+4}:{RS+7}], v{gASw}, {WS}, s13 offen sc1")
            g.full()
    A(f"s_cmp_eq_u32 s3, {cfg.wc}"); A("s_cbranch_scc1 L_comb")
    g.sleep(cfg.dt)
    twinA()
    A("s_branch L_f2")
    g.lab("L_comb")
    A("s_and_b32 s11, s6, 0x7c"); A(f"s_lshl_b32 {SO[0]}, s11, 12"); A("s_and_b32 s14, s6, 3"); A("s_lshl_b32 s15, s14, 10"); A(f"s_add_u32 {SO[0]}, {SO[0]}, s15"); A(f"s_add_u32 {SO[0]}, {SO[0]}, {W_AP}")
    for i in range(1, 4): A(f"s_add_u32 {SO[i]}, {SO[0]}, {i*4096}")
    A("s_lshl_b32 s11, s11, 7"); A("s_lshl_b32 s14, s14, 5"); A("s_add_u32 s11, s11, s14"); A(f"s_add_u32 s11, s11, {W_AS}")
    A("s_lshl_b32 s66, s7, 13"); A("s_lshl_b32 s14, s4, 9"); A("s_add_u32 s66, s66, s14"); A(f"s_add_u32 s66, s66, {W_OB}")
    A(f"v_mov_b32 v34, {TAG}"); A(f"v_mov_b32 v35, {TAG}")
    g.sleep(cfg.d2)
    cl = [f"buffer_load_dwordx4 v[{GA+16}:{GA+19}], v{gS}, {WS}, s11 offen sc1"] + [f"buffer_load_dwordx4 v[{GA+4*k}:{GA+4*k+3}], v{gL16}, {WS}, {SO[k]} offen sc1" for k in range(4)]
    gather(g, cl, [GA + 18, GA + 19] + [GA + 4 * k + 3 for k in range(4)], 1, late=twinA, toggle=SO + ["s11"], sleep=cfg.pl)
    M, Lr = GA + 16, GA + 17
    A(f"v_max_f32_dpp v36, v{M}, v{M} quad_perm:[1,0,3,2] row_mask:0xf bank_mask:0xf")
    unpack24_d(g, GA)
    A("v_max_f32_dpp v36, v36, v36 quad_perm:[2,3,0,1] row_mask:0xf bank_mask:0xf")
    A(f"v_sub_f32 v37, v{M}, v36"); A("v_exp_f32 v37, v37")
    unpack24_d(g, GA + 4)
    A(f"v_mul_f32 v38, v37, v{Lr}")
    unpack24_d(g, GA + 8)
    A("v_add_f32_dpp v38, v38, v38 quad_perm:[1,0,3,2] row_mask:0xf bank_mask:0xf")
    unpack24_d(g, GA + 12)
    A("v_add_f32_dpp v38, v38, v38 quad_perm:[2,3,0,1] row_mask:0xf bank_mask:0xf")
    for e in range(4): A(f"v_mul_f32_dpp v{40+e}, v37, v{GA+e} quad_perm:[0,0,0,0] row_mask:0xf bank_mask:0xf")
    A("v_rcp_f32 v38, v38")
    for k in range(1, 4):
        for e in range(4): A(f"v_fmac_f32_dpp v{40+e}, v37, v{GA+4*k+e} quad_perm:[{k},{k},{k},{k}] row_mask:0xf bank_mask:0xf")
    for e in range(4): A(f"v_mul_f32 v{40+e}, v{40+e}, v38")
    A("v_cvt_pk_bf16_f32 v32, v40, v41"); A("v_cvt_pk_bf16_f32 v33, v42, v43")
    A(f"buffer_store_dwordx4 v[32:35], v{gC}, {WS}, s66 offen sc1")
    hu_post(g, 0, 35, 12)
    g.stamp(7)
    twinA()
    g.lab("L_f2")
    A("s_barrier")
    g.sleep(cfg.w2sl)
    for k in range(n2 // 4, 3): dma4(g, SB, 8 * 2048, P2)
    dma4(g, SB, 8 * 2048, P2, hi=2)
    A("v_mul_u32_u24 v22, 928, v19"); A(f"v_add_u32 v22, {CB}, v22"); A("v_lshrrev_b32 v27, 3, v0"); A(f"v_lshl_add_u32 v{aW}, v27, 3, v22"); A(f"v_lshl_add_u32 v{aF}, v3, 4, v22")
    A("s_lshl_b32 s13, s3, 12"); A("v_lshlrev_b32 v22, 10, v3"); A(f"v_lshl_add_u32 v{gW}, v2, 4, v22"); A(f"v_add_u32 v{gW}, s13, v{gW}")
    A(f"s_mul_i32 {SO[0]}, s4, {112*128}"); A(f"s_add_u32 {SO[0]}, {SO[0]}, {W_AB}")
    for i in range(1, 3): A(f"s_add_u32 {SO[i]}, {SO[0]}, {i*4096}")
    A(f"s_add_u32 {SO[3]}, {SO[0]}, {3*4096}"); A("s_cmp_ge_u32 s3, 2"); A(f"s_cselect_b32 {SO[3]}, {SO[0]}, {SO[3]}")
    A("s_lshl_b32 s9, s7, 14"); A("s_lshl_b32 s10, s4, 7"); A("s_add_u32 s9, s9, s10"); A(f"s_add_u32 s9, s9, {W_FP}")
    A(f"v_mov_b32 v47, {TAG}")
    A("s_waitcnt vmcnt(0)")
    A("s_barrier")
    g.stamp(12)
    for k in range(14):
        for q in range(2): tr(g, 64 + 4 * k + 2 * q, aT, k * 4096 + q * 512)
    AD = 192
    al = [f"buffer_load_dwordx4 v[{AD+4*k}:{AD+4*k+3}], v{gT16}, {WS}, {SO[k]} offen sc1" for k in range(4)]
    g.sleep(cfg.d6)
    gather(g, al, [AD + 4 * k + 2 for k in range(4)] + [AD + 4 * k + 3 for k in range(4)], 5, toggle=SO, sleep=cfg.pl)
    for k in range(3): A(f"ds_write_b64 v{aW}, v[{AD+4*k}:{AD+4*k+1}] offset:{k*256}")
    A("s_cmp_ge_u32 s3, 2"); A("s_cbranch_scc1 L_a3"); A(f"ds_write_b64 v{aW}, v[{AD+12}:{AD+13}] offset:768"); g.lab("L_a3")
    g.stamp(13)
    A("s_waitcnt lgkmcnt(0)")
    A("s_barrier")
    for k in range(14): A(f"ds_read_b128 v[{128+4*k}:{131+4*k}], v{aF} offset:{k*64}")
    for k in range(14):
        A(f"s_waitcnt lgkmcnt({13-k})")
        mfma(g, 32, 64 + 4 * k, 128 + 4 * k, k == 0)
    g.setexec(0x00ff00ff00ff00ff)
    g.nop(6)
    pack24(g, 44, 32)
    A(f"buffer_store_dwordx4 v[44:47], v{gW}, {WS}, s9 offen sc1")
    g.full()
    A("s_cmp_lg_u32 s3, 0"); A("s_cbranch_scc1 L_nohu")
    hu_post(g, 2, 47, 12)
    g.lab("L_nohu")
    g.stamp(14)

def parse(argv=None):
    ap = argparse.ArgumentParser()
    ap.add_argument("-o", default="sequential_preLN__sliding_block_cached__dense_activation_relu__decode.s")
    D = dict(stamps=0, nt=1, pref=1, local=1, wc=1, wr=2, fb=300, early=1, nopoll=0, hu=1, hun=400,
             nk0=8, kwin=2, kw=10, vw=10, qpos=2, qw=8, w2e=0, w2sl=0,
             osl=40, on1=0, ow1=2, ow2=10, fsl=70, fn1=0, fw1=2, fw2=8,
             d2=3, d4=14, d6=0, d7=60, dt=12, da=6, db=6, dc=6, ps=4, pl=1)
    for k, d in D.items(): ap.add_argument(f"--{k}", type=int, default=d)
    return ap.parse_args(argv)

if __name__ == "__main__":
    cfg = parse()
    open(cfg.o, "w").write(gen(cfg))
```

```python
import sys, argparse
sys.path.insert(0, "bench")
from asmlib import wrap

RQ = 98304
SCR = 131072
ACT = SCR
STL_ = SCR + 8 * 2080
QL = SCR + 8 * 544
CB = QL + 8 * 288
LDS_END = CB + 4 * 8 * 528
assert STL_ + 256 <= LDS_END <= 163840

W_QP = 0x100000
W_AP = 0x200000
W_AS = 0x280000
W_OB = 0x290000
W_HB = 0x2C0000
W_HS = 0x2D0000
W_HU = 0x2E0000
W_OP = 0x500000
W_AB = 0x340000
W_FP = 0x380000
BDELTA = 0x400000
STAMP_OFF = 128 << 20

WS, XO, SA, SB = "s[36:39]", "s[40:43]", "s[44:47]", "s[48:51]"
TAG = "s8"
PK0, PK1, PK2, UP0, UP1, PCNT = "s52", "s53", "s54", "s55", "s56", "s57"
SO = ["s58", "s59", "s60", "s61"]
mW, sB, sM, sI = "s62", "s63", "s64", "s65"

class G:
    def __init__(self, cfg):
        self.L = []; self.cfg = cfg; self.nlab = 0
    def A(self, s): self.L.append("    " + s)
    def lab(self, s): self.L.append(s + ":")
    def newlab(self, p="L"):
        self.nlab += 1; return f"{p}_{self.nlab}"
    def nop(self, n):
        while n > 0:
            k = min(n, 16); self.A(f"s_nop {k-1}"); n -= k
    def setexec(self, m):
        lo, hi = m & 0xffffffff, m >> 32
        if hi == 0 and lo <= 64: self.A(f"s_mov_b64 exec, {lo}")
        else:
            self.A(f"s_mov_b32 exec_lo, {hex(lo)}"); self.A(f"s_mov_b32 exec_hi, {hex(hi)}")
    def full(self): self.A("s_mov_b64 exec, -1")
    def stamp(self, idx):
        if self.cfg.stamps: self.A(f"s_memrealtime s[{70+2*idx}:{71+2*idx}]")
    def sleep(self, n):
        while n > 0:
            k = min(n, 127); self.A(f"s_sleep {k}"); n -= k

def srd(g, d, p, n):
    if d != p: g.A(f"s_mov_b32 s{d}, s{p}"); g.A(f"s_mov_b32 s{d+1}, s{p+1}")
    g.A(f"s_mov_b32 s{d+2}, {n}"); g.A(f"s_mov_b32 s{d+3}, 0x20000")

def dma4(g, sr, step, pats, waits=None, lo=0, hi=4, adv=True):
    nt = " nt" if g.cfg.nt else ""
    g.A(f"s_mov_b32 m0, {sM}")
    for jj in range(lo, hi):
        w = None if waits is None else (waits if isinstance(waits, int) else waits[jj])
        if w is not None: g.A(f"s_waitcnt vmcnt({w})")
        off = jj * (step - 1024)
        if off: g.A(f"s_add_u32 s15, {sB}, {off}")
        elif w is None and jj == lo: g.A("s_nop 0")
        g.A(f"buffer_load_dwordx4 v{pats[jj]}, {sr}, {'s15' if off else sB} offen offset:{jj*1024}{nt} lds")
    if adv: g.A(f"s_add_u32 {sB}, {sB}, {4*step}"); g.A(f"s_add_u32 {sM}, {sM}, 4096")

def dma_loop(g, sr, step, pats, ngroups, win):
    l = g.newlab("L_dl")
    g.A(f"s_mov_b32 {sI}, 0")
    g.lab(l)
    dma4(g, sr, step, pats, waits=win - 1)
    g.A(f"s_add_u32 {sI}, {sI}, 1"); g.A(f"s_cmp_lt_u32 {sI}, {ngroups}"); g.A(f"s_cbranch_scc1 {l}")

def tagcheck(g, tagregs, tmp=10):
    g.A(f"v_xor_b32 v{tmp}, {TAG}, v{tagregs[0]}")
    for t in tagregs[1:]: g.A(f"v_bitop3_b32 v{tmp}, v{tmp}, v{t}, {TAG} bitop3:0xF6")
    g.A(f"v_cmp_ne_u32 vcc, 0, v{tmp}")

def gather(g, loads, tagregs, stage, issued=False, newer=0, late=None, toggle=(), sleep=0):
    l = g.newlab("L_g"); e = g.newlab("L_ge")
    if g.cfg.nopoll:
        g.A(f"s_waitcnt vmcnt({newer})"); return
    if not issued:
        for s in loads: g.A(s)
    g.A(f"s_mov_b32 {PCNT}, 0")
    g.A(f"s_waitcnt vmcnt({newer})")
    tagcheck(g, tagregs)
    g.A(f"s_cbranch_vccz {e}")
    g.lab(l)
    g.sleep(sleep)
    for s in loads: g.A(s)
    g.A(f"s_add_u32 {PCNT}, {PCNT}, 1")
    g.A("s_waitcnt vmcnt(0)")
    tagcheck(g, tagregs)
    g.A(f"s_cbranch_vccz {e}")
    if g.cfg.local and (late or toggle):
        sk = g.newlab("L_gl")
        g.A(f"s_cmp_lt_u32 {PCNT}, {g.cfg.fb}"); g.A(f"s_cbranch_scc1 {sk}")
        for t in toggle: g.A(f"s_xor_b32 {t}, {t}, {BDELTA}")
        if late:
            g.A(f"s_cmp_lg_u32 {PCNT}, {g.cfg.fb}"); g.A(f"s_cbranch_scc1 {sk}")
            late()
        g.lab(sk)
    g.A(f"s_cmp_lt_u32 {PCNT}, 40000")
    g.A(f"s_cbranch_scc1 {l}")
    g.lab(e)
    if g.cfg.stamps: g.A(f"s_min_u32 {PCNT}, {PCNT}, 15"); g.A(f"s_lshl_b32 {PCNT}, {PCNT}, {4*stage}"); g.A(f"s_add_u32 s69, s69, {PCNT}")

def hu_wait(g, which, nmask, addr, dst, delay):
    if not g.cfg.hu or g.cfg.nopoll: return
    l = g.newlab("L_hu"); e = g.newlab("L_hue")
    g.A(f"v_and_b32 v{addr}, {nmask}, v1"); g.A(f"v_lshlrev_b32 v{addr}, 4, v{addr}")
    g.A("s_lshl_b32 s15, s4, 8"); g.A(f"s_add_u32 s15, s15, {W_HU + which*2048}")
    g.A(f"s_mov_b32 {PCNT}, 0")
    g.lab(l)
    g.A(f"buffer_load_dword v{dst}, v{addr}, {WS}, s15 offen sc1")
    g.A(f"s_add_u32 {PCNT}, {PCNT}, 1")
    g.A("s_waitcnt vmcnt(0)")
    g.A(f"v_cmp_ne_u32 vcc, {TAG}, v{dst}")
    g.A(f"s_cbranch_vccz {e}")
    g.A(f"s_cmp_lt_u32 {PCNT}, {g.cfg.hun}"); g.A(f"s_cbranch_scc1 {l}")
    g.lab(e)
    g.sleep(delay)

def hu_probe_issue(g, which, nmask, addr, dst):
    if not (g.cfg.hu and g.cfg.huearly) or g.cfg.nopoll: return
    g.A(f"v_and_b32 v{addr}, {nmask}, v1"); g.A(f"v_lshlrev_b32 v{addr}, 4, v{addr}")
    g.A("s_lshl_b32 s15, s4, 8"); g.A(f"s_add_u32 s15, s15, {W_HU + which*2048}")
    g.A(f"buffer_load_dword v{dst}, v{addr}, {WS}, s15 offen sc1")

def staged(g, which, nmask, addr, dst, delay, loads, preload, fin):
    if not (g.cfg.hu and g.cfg.huearly) or g.cfg.nopoll:
        preload(); hu_wait(g, which, nmask, addr, dst, delay); fin(False); return
    late = g.newlab("L_st"); go = g.newlab("L_sg")
    g.A(f"v_cmp_ne_u32 vcc, {TAG}, v{dst}")
    g.A(f"s_cbranch_vccnz {late}")
    for x_ in loads: g.A(x_)
    g.A("s_mov_b32 s67, 1") if False else None
    g.lab(late)
    g.A("s_mov_b64 s[88:89], vcc") if False else None
    g.A("s_cselect_b32 s0, 0, 0") if False else None
    g.A("s_mov_b64 s[0:1], vcc")
    preload()
    g.A("s_cmp_eq_u64 s[0:1], 0"); g.A(f"s_cbranch_scc1 {go}")
    hu_wait(g, which, nmask, addr, dst, delay)
    for x_ in loads: g.A(x_)
    g.lab(go)
    fin(True)

def hu_post(g, which, tagreg, tmp):
    if not g.cfg.hu: return
    g.A("s_lshl_b32 s15, s4, 4"); g.A("s_add_u32 s15, s15, s7"); g.A("s_lshl_b32 s15, s15, 4"); g.A(f"s_add_u32 s15, s15, {W_HU + which*2048}")
    g.A(f"v_mov_b32 v{tmp}, 0"); g.A("s_mov_b64 exec, 1")
    g.A(f"buffer_store_dword v{tagreg}, v{tmp}, {WS}, s15 offen")
    g.full()

def pack24(g, d, a):
    g.A(f"v_perm_b32 v{d}, v{a}, v{a+3}, {PK0}"); g.A(f"v_perm_b32 v{d+1}, v{a+1}, v{a+3}, {PK1}"); g.A(f"v_perm_b32 v{d+2}, v{a+2}, v{a+3}, {PK2}")
def unpack24_d(g, b):
    g.A(f"v_perm_b32 v{b+3}, v{b+1}, v{b}, {UP0}"); g.A(f"v_perm_b32 v{b+3}, v{b+2}, v{b+3}, {UP1}")
def bf16_round(g, d, s):
    g.A(f"v_cvt_pk_bf16_f32 v{d}, v{s}, v{s}"); g.A(f"v_lshlrev_b32 v{d}, 16, v{d}")
def xrow_reduce(g, regs, op="v_add_f32", steps=("ror8", "p16", "p32"), tmp=11):
    n = len(regs)
    for st in steps:
        if st.startswith("ror"):
            g.nop(max(0, 3 - n))
            for r in regs: g.A(f"{op}_dpp v{r}, v{r}, v{r} row_ror:{st[3:]} row_mask:0xf bank_mask:0xf")
        else:
            ins = "v_permlane16_swap_b32" if st == "p16" else "v_permlane32_swap_b32"
            for k, r in enumerate(regs): g.A(f"v_mov_b32 v{tmp+k}, v{r}")
            g.nop(max(0, 3 - n))
            for k, r in enumerate(regs): g.A(f"{ins} v{r}, v{tmp+k}")
            g.nop(max(0, 2 - n))
            for k, r in enumerate(regs): g.A(f"{op} v{r}, v{r}, v{tmp+k}")
def mfma(g, d, a, b, first):
    g.A(f"v_mfma_f32_16x16x32_bf16 v[{d}:{d+3}], v[{a}:{a+3}], v[{b}:{b+3}], {'0' if first else f'v[{d}:{d+3}]'}")
def tr(g, d, addr, off):
    g.A(f"ds_read_b64_tr_b16 v[{d}:{d+1}], v{addr} offset:{off}")

pA, pB, aT, aT2, aF, gT16 = 4, 5, 6, 7, 8, 9
gW, aW, aTb, aTb2 = 28, 29, 30, 31
WF, AC, GD = 64, 32, 192
pK = [240, 241, 242, 243]

def gen(cfg):
    g = G(cfg); A = g.A
    g.stamp(0)
    A("s_load_dwordx16 s[16:31], s[0:1], 0")
    A("s_load_dwordx4 s[32:35], s[0:1], 64")
    A("s_load_dwordx2 s[36:37], s[0:1], 80")
    A("s_cmp_ge_u32 s2, 256"); A("s_cbranch_scc1 L_end")
    A("v_lshrrev_b32 v7, 6, v0"); A("v_and_b32 v1, 63, v0")
    A("s_lshr_b32 s5, s2, 3")
    if cfg.pref:
        A("s_getpc_b64 s[10:11]"); g.lab("L_begin")
        A("s_lshl_b32 s9, s5, 8"); A("v_add_u32 v10, s9, v0"); A("v_and_b32 v10, 1023, v10"); A("v_lshlrev_b32 v10, 4, v10")
        A("s_mov_b32 s9, L_end - L_begin - 64"); A("v_min_u32 v10, s9, v10")
        A("global_load_dwordx4 v[12:15], v10, s[10:11]")
    A("v_readfirstlane_b32 s3, v7")
    A("s_and_b32 s4, s2, 7"); A("s_and_b32 s7, s5, 15"); A("s_lshl_b32 s6, s4, 5"); A("s_add_u32 s6, s6, s5")
    A("v_and_b32 v2, 15, v1"); A("v_lshrrev_b32 v3, 4, v1")
    A("v_lshrrev_b32 v16, 5, v0"); A("v_and_b32 v17, 31, v0")
    A("v_lshlrev_b32 v18, 11, v16"); A("v_lshl_add_u32 v18, v17, 4, v18")
    A("s_lshr_b32 s9, s6, 6")
    A("v_lshrrev_b32 v20, 3, v1"); A("v_and_b32 v19, 7, v1")
    A("v_bfe_u32 v21, v1, 4, 1"); A("v_lshlrev_b32 v21, 1, v21"); A("v_xor_b32 v21, v19, v21"); A("v_lshlrev_b32 v21, 4, v21")
    A(f"v_lshl_add_u32 v{pA}, v20, 13, v21"); A(f"v_xor_b32 v{pB}, 64, v{pA}")
    A("s_lshl_b32 s12, s9, 2"); A("s_add_u32 s12, s12, s3"); A("s_lshl_b32 s12, s12, 19"); A("s_and_b32 s13, s6, 63"); A("s_lshl_b32 s13, s13, 7"); A(f"s_add_u32 {sB}, s12, s13")
    A(f"s_lshl_b32 {sM}, s3, 13"); A(f"s_add_u32 {sM}, {sM}, {RQ}")
    A("s_lshl_b32 s13, s9, 9"); A("s_add_u32 s14, s13, 512"); A("s_and_b32 s14, s14, 0x600"); A("s_xor_b32 s12, s13, 1024"); A("s_xor_b32 s9, s14, 1024")
    A("s_waitcnt lgkmcnt(0)")
    srd(g, 40, 16, 16384)
    for i, s in enumerate(["s13", "s14", "s12", "s9"]): A(f"buffer_load_dwordx4 v[{GD+4*i}:{GD+4*i+3}], v18, {XO}, {s} offen")
    srd(g, 44, 22, 8 << 20)
    A("s_load_dword s8, s[36:37], 0")
    for k in range(2): dma4(g, SA, 8 * 8192, [pA, pB, pA, pB])
    g.stamp(1)
    srd(g, 36, 36, 256 << 20); srd(g, 48, 18, 32 << 20)
    A(f"s_mov_b32 {PK0}, 0x07060501"); A(f"s_mov_b32 {PK1}, 0x07060502"); A(f"s_mov_b32 {PK2}, 0x07060503"); A(f"s_mov_b32 {UP0}, 0x0C04000C"); A(f"s_mov_b32 {UP1}, 0x0402010C")
    if cfg.stamps: A("s_mov_b32 s69, 0")
    A("v_mul_u32_u24 v22, 544, v16"); A(f"v_lshl_add_u32 v{aW}, v17, 4, v22"); A(f"v_add_u32 v{aW}, {ACT}, v{aW}")
    A("v_mul_u32_u24 v22, 544, v19"); A(f"v_lshl_add_u32 v{aF}, v3, 4, v22"); A(f"v_add_u32 v{aF}, {ACT}, v{aF}")
    A("v_bfe_u32 v23, v1, 2, 2"); A("v_and_b32 v24, 3, v1"); A("v_lshlrev_b32 v24, 3, v24"); A("v_and_b32 v25, 1, v3"); A("v_lshl_add_u32 v26, v3, 3, v23")
    A("v_lshrrev_b32 v27, 1, v23"); A("v_lshl_add_u32 v27, v25, 1, v27"); A("v_xor_b32 v27, s3, v27"); A("v_lshl_add_u32 v27, v27, 5, v24"); A(f"v_lshl_add_u32 v{aT}, v26, 7, v27")
    A(f"v_add_u32 v{aT2}, 0x10000, v{aT}")
    A(f"v_lshlrev_b32 v{gT16}, 4, v0")
    A("s_lshl_b32 s13, s3, 6"); A("v_lshlrev_b32 v27, 9, v2"); A(f"v_lshl_add_u32 v{gW}, v3, 4, v27"); A(f"v_add_u32 v{gW}, s13, v{gW}")
    A("v_xor_b32 v27, v2, v3"); A("v_lshlrev_b32 v27, 4, v27"); A(f"v_lshl_add_u32 v{pK[0]}, v3, 8, v27")
    for k in range(1, 4): A(f"v_xor_b32 v{pK[k]}, {k*64}, v{pK[0]}")
    A("s_lshl_b32 s68, s4, 4"); A("s_add_u32 s68, s68, s7")
    A("s_lshr_b32 s12, s68, 2"); A("s_lshl_b32 s12, s12, 20"); A("s_and_b32 s13, s68, 3"); A("s_lshl_b32 s13, s13, 16"); A("s_add_u32 s12, s12, s13")
    A(f"s_lshl_b32 {mW}, s3, 14"); A(f"s_add_u32 s12, s12, {mW}"); A("s_add_u32 s66, s12, 0xC0000")
    A(f"s_mov_b32 {sB}, s66"); A(f"s_mov_b32 {sM}, {mW}")
    A("s_lshl_b32 s9, s6, 12"); A(f"s_add_u32 s9, s9, {W_QP}")
    A("s_waitcnt lgkmcnt(0)")
    A("s_mul_i32 s8, s8, 0x9E3779B1"); A("s_add_u32 s8, s8, 0x7F4A7C15")
    U = 96
    A("s_waitcnt vmcnt(8)")
    g.stamp(5)
    for d in range(16):
        A(f"v_lshlrev_b32 v{U+2*d}, 16, v{GD+d}"); A(f"v_and_b32 v{U+2*d+1}, 0xffff0000, v{GD+d}")
    A(f"v_pk_add_f32 v[40:41], v[{U}:{U+1}], v[{U+2}:{U+3}]"); A(f"v_pk_add_f32 v[42:43], v[{U+4}:{U+5}], v[{U+6}:{U+7}]")
    for d in range(4, 16): A(f"v_pk_add_f32 v[{40+2*(d&1)}:{41+2*(d&1)}], v[{40+2*(d&1)}:{41+2*(d&1)}], v[{U+2*d}:{U+2*d+1}]")
    A("v_pk_add_f32 v[40:41], v[40:41], v[42:43]"); A("v_add_f32 v40, v40, v41")
    xrow_reduce(g, [40], steps=("ror8", "ror4", "ror2", "ror1", "p16"))
    A("v_mul_f32 v40, 0xba800000, v40"); A("v_mov_b32 v41, v40")
    for d in range(16):
        r = WF + 2 * (d & 7)
        A(f"v_pk_add_f32 v[{r}:{r+1}], v[{U+2*d}:{U+2*d+1}], v[40:41]")
        a = 44 + 2 * (d & 1)
        if d < 2: A(f"v_pk_mul_f32 v[{a}:{a+1}], v[{r}:{r+1}], v[{r}:{r+1}]")
        else: A(f"v_pk_fma_f32 v[{a}:{a+1}], v[{r}:{r+1}], v[{r}:{r+1}], v[{a}:{a+1}]")
    A("v_pk_add_f32 v[44:45], v[44:45], v[46:47]"); A("v_add_f32 v44, v44, v45")
    xrow_reduce(g, [44], steps=("ror8", "ror4", "ror2", "ror1", "p16"))
    A("v_mul_f32 v44, 0x3a800000, v44")
    bf16_round(g, 40, 40); bf16_round(g, 44, 44)
    A("v_add_f32 v44, 0x3727c5ac, v44"); bf16_round(g, 44, 44)
    A("v_sqrt_f32 v44, v44"); A("v_mov_b32 v41, v40")
    for d in range(4): A(f"v_pk_add_f32 v[{U+2*d}:{U+2*d+1}], v[{U+2*d}:{U+2*d+1}], v[40:41]")
    bf16_round(g, 44, 44)
    A("v_rcp_f32 v46, v44"); A("v_sub_f32 v44, 0, v44"); A("v_mov_b32 v45, v44")
    for d in range(4): A(f"v_cvt_pk_bf16_f32 v{48+d}, v{U+2*d}, v{U+2*d+1}")
    A("v_mov_b32 v47, v46")
    for d in range(4):
        A(f"v_lshlrev_b32 v{U+2*d}, 16, v{48+d}"); A(f"v_and_b32 v{U+2*d+1}, 0xffff0000, v{48+d}")
    for d in range(4): A(f"v_pk_mul_f32 v[{U+16+2*d}:{U+17+2*d}], v[{U+2*d}:{U+2*d+1}], v[46:47]")
    for d in range(4): A(f"v_pk_fma_f32 v[{U+2*d}:{U+2*d+1}], v[{U+16+2*d}:{U+17+2*d}], v[44:45], v[{U+2*d}:{U+2*d+1}]")
    for d in range(4): A(f"v_pk_fma_f32 v[{U+16+2*d}:{U+17+2*d}], v[{U+2*d}:{U+2*d+1}], v[46:47], v[{U+16+2*d}:{U+17+2*d}]")
    for d in range(4): A(f"v_cvt_pk_bf16_f32 v{48+d}, v{U+16+2*d}, v{U+17+2*d}")
    A(f"ds_write_b128 v{aW}, v[48:51]")
    g.stamp(2)
    A(f"v_mov_b32 v14, {TAG}"); A(f"v_mov_b32 v15, {TAG}"); A(f"v_mov_b32 v42, {TAG}"); A(f"v_mov_b32 v43, {TAG}")
    nk0 = cfg.nk0
    A("s_cmp_lt_u32 s5, 16"); A("s_cbranch_scc1 L_nok")
    done = 0
    while done < nk0:
        n = min(4, nk0 - done)
        dma4(g, SB, 1024, pK, waits=[max(0, 7 - min(7, done + jj + cfg.kwin)) + done + jj for jj in range(4)], hi=n, adv=(n == 4))
        done += n
    A(f"s_waitcnt vmcnt({nk0}) lgkmcnt(0)"); A("s_branch L_qb")
    g.lab("L_nok")
    A("s_waitcnt vmcnt(0) lgkmcnt(0)")
    g.lab("L_qb")
    A("s_barrier")
    XFq = 192
    for k in range(8):
        A(f"ds_read_b128 v[{XFq+4*k}:{XFq+4*k+3}], v{aF} offset:{k*64}")
        for q in range(2): tr(g, WF + 4 * k + 2 * q, aT2, RQ - 65536 + k * 4096 + q * 512)
        if k >= 4:
            A("s_waitcnt lgkmcnt(12)"); mfma(g, AC, WF + 4 * (k - 4), XFq + 4 * (k - 4), k == 4)
    for k in range(4, 8):
        A(f"s_waitcnt lgkmcnt({3*(7-k)})"); mfma(g, AC, WF + 4 * k, XFq + 4 * k, False)
    g.setexec(0x00ff00ff00ff00ff)
    g.nop(6)
    A(f"v_mov_b32 v12, v{AC}"); A(f"v_mov_b32 v13, v{AC+1}"); A(f"v_mov_b32 v40, v{AC+2}"); A(f"v_mov_b32 v41, v{AC+3}")
    A(f"buffer_store_dwordx4 v[12:15], v{gW}, {WS}, s9 offen sc1")
    A(f"buffer_store_dwordx4 v[40:43], v{gW}, {WS}, s9 offen offset:256 sc1")
    g.full()
    g.stamp(3)
    A("s_cmp_eq_u32 s5, 15"); A("s_cbranch_scc1 L_done")
    A("s_barrier")
    A("s_cmp_ge_u32 s5, 16"); A("s_cbranch_scc1 L_attn")
    A(f"s_lshl_b32 {sM}, s3, 15")
    A("s_cmp_ge_u32 s5, 8"); A("s_cbranch_scc1 L_f1")
    role_o(g)
    role_f1(g)
    role_attn(g)
    g.lab("L_done")
    g.stamp(15)
    if cfg.stamps == 2:
        g.full()
        A("s_cmp_ge_u32 s5, 8"); A("s_cbranch_scc1 L_end")
        A("s_waitcnt lgkmcnt(0)"); A("s_not_b32 s70, s70")
        for i in range(16): A(f"v_writelane_b32 v10, s{70+2*i}, {i}")
        srd(g, 44, 34, 256); A("v_lshlrev_b32 v11, 2, v1"); g.setexec(0xffff)
        A("buffer_atomic_umax v10, v11, s[44:47], 0 offen sc1")
    if cfg.stamps == 1:
        g.full()
        A("s_waitcnt lgkmcnt(0)"); A("s_mov_b32 s72, s69")
        for i in range(16): A(f"v_writelane_b32 v10, s{70+2*i}, {i}")
        A("s_lshl_b32 s9, s2, 4"); A("s_add_u32 s9, s9, s3"); A("s_lshl_b32 s9, s9, 6"); A(f"s_add_u32 s9, s9, {STAMP_OFF}")
        A("v_lshlrev_b32 v11, 2, v1"); g.setexec(0xffff)
        A(f"buffer_store_dword v10, v11, {WS}, s9 offen")
    g.lab("L_end"); A("s_endpgm")
    return wrap("\n".join(g.L), 256, 256, LDS_END, vgpr=256, sgpr=102)

def role_o(g):
    A = g.A; cfg = g.cfg
    gOUT, gL16, gP, gS = 62, 63, 18, 27
    PO = [240, 241, 242, 243]
    AO, XF = 208, 192
    A("s_lshr_b32 s12, s7, 1"); A("s_lshl_b32 s11, s4, 2"); A("s_add_u32 s12, s12, s11"); A("s_and_b32 s13, s7, 1")
    for k in range(4): A(f"v_xor_b32 v{PO[k]}, {2*k}, v1");
    for k in range(4): A(f"v_lshlrev_b32 v{PO[k]}, 4, v{PO[k]}")
    srd(g, 44, 24, 8 << 20)
    A("s_lshl_b32 s6, s4, 3"); A("s_add_u32 s6, s6, s7"); A("s_lshl_b32 s14, s6, 2"); A("s_add_u32 s14, s14, s3")
    A(f"v_lshlrev_b32 v{gOUT}, 11, v19"); A("s_lshl_b32 s68, s14, 3")
    A(f"buffer_load_dwordx2 v[60:61], v{gOUT}, {XO}, s68 offen")
    A("s_lshl_b32 s10, s12, 2"); A("s_add_u32 s10, s10, s3"); A("s_lshl_b32 s10, s10, 16"); A("s_lshl_b32 s11, s13, 10"); A(f"s_add_u32 {sB}, s10, s11")
    g.sleep(cfg.osl)
    l = g.newlab("L_dl")
    A(f"s_mov_b32 {sI}, 0")
    g.lab(l)
    dma4(g, SA, 2048, PO, waits=cfg.ow2 - 1); dma4(g, SA, 2048, PO, waits=cfg.ow2 - 1)
    for k in range(4): A(f"v_xor_b32 v{PO[k]}, 128, v{PO[k]}")
    A(f"s_add_u32 {sI}, {sI}, 1"); A(f"s_cmp_lt_u32 {sI}, 4"); A(f"s_cbranch_scc1 {l}")
    A("v_lshl_add_u32 v22, v25, 2, v23"); A("v_lshl_add_u32 v22, v22, 5, v24"); A("s_lshl_b32 s11, s3, 8")
    A(f"v_lshl_add_u32 v{aT}, v26, 10, v22"); A(f"v_add_u32 v{aT}, s11, v{aT}")
    A("v_mul_u32_u24 v22, 288, v16"); A(f"v_lshl_add_u32 v{aW}, v17, 3, v22"); A(f"v_add_u32 v{aW}, {ACT}, v{aW}")
    A("v_mul_u32_u24 v22, 288, v19"); A(f"v_lshl_add_u32 v{aF}, v3, 4, v22"); A(f"v_add_u32 v{aF}, {ACT}, v{aF}")
    A("s_lshl_b32 s11, s3, 3"); A("v_lshrrev_b32 v22, 3, v2"); A("v_add_u32 v22, s11, v22"); A("v_lshl_add_u32 v22, v22, 2, v3"); A("v_lshlrev_b32 v22, 12, v22"); A(f"v_lshl_add_u32 v{gW}, v19, 4, v22")
    A("v_lshlrev_b32 v22, 16, v16"); A(f"v_lshl_add_u32 v{gP}, v17, 4, v22")
    A("v_lshlrev_b32 v22, 11, v16"); A(f"v_lshl_add_u32 v{gS}, v24, 4, v22")
    A("v_cmp_lt_u32 s[66:67], 7, v2")
    for r_ in (47, 50, 51, 54, 55): A(f"v_mov_b32 v{r_}, {TAG}")
    A(f"v_lshlrev_b32 v{gL16}, 4, v1")
    A("s_lshl_b32 s10, s3, 6"); A(f"v_lshl_add_u32 v{aTb2}, v19, 3, s10"); A(f"v_add_u32 v{aTb2}, {STL_}, v{aTb2}")
    A("s_lshr_b32 s10, s12, 3"); A("s_and_b32 s11, s12, 7")
    A(f"s_lshl_b32 {SO[0]}, s10, 14"); A("s_lshl_b32 s9, s11, 9"); A(f"s_add_u32 {SO[0]}, {SO[0]}, s9"); A(f"s_add_u32 {SO[0]}, {SO[0]}, {W_AP}")
    for i in range(1, 4): A(f"s_add_u32 {SO[i]}, {SO[0]}, {i*4096}")
    A("s_lshl_b32 s10, s10, 9"); A("s_lshl_b32 s11, s11, 4"); A("s_add_u32 s11, s11, s10"); A(f"s_add_u32 s11, s11, {W_AS}")
    A("s_lshl_b32 s9, s13, 19"); A("s_lshl_b32 s10, s12, 7"); A("s_add_u32 s9, s9, s10"); A(f"s_add_u32 s9, s9, {W_OP}")
    A(f"s_add_u32 s10, s9, 32768"); A("s_add_u32 s12, s9, 65536"); A("s_add_u32 s13, s9, 98304")
    hu_probe_issue(g, 0, 15, 40, 41)
    A("s_waitcnt vmcnt(0)")
    A("s_barrier")
    g.stamp(4)
    GA = 192
    cl = [f"buffer_load_dwordx4 v[{GA+16}:{GA+19}], v{gS}, {WS}, s11 offen sc1"] + [f"buffer_load_dwordx4 v[{GA+4*k}:{GA+4*k+3}], v{gP}, {WS}, {SO[k]} offen sc1" for k in range(4)]
    def pre_o():
        for tt in range(8):
            a0, a1 = 12 + 2 * (tt & 1), 13 + 2 * (tt & 1)
            A(f"v_xor_b32 v{a0}, {tt*32}, v{aT}"); A(f"v_add_u32 v{a1}, 0x10000, v{a0}")
            for k in range(4):
                for q in range(2): tr(g, WF + 16 * tt + 4 * k + 2 * q, a0 if k < 2 else a1, (k & 1) * 32768 + q * 4096)
        srd(g, 40, 32, 16384)
        for p in range(2):
            A(f"v_lshlrev_b32 v{56+2*p}, 16, v{60+p}"); A(f"v_and_b32 v{57+2*p}, 0xffff0000, v{60+p}")
    staged(g, 0, 15, 40, 41, cfg.da, cl, pre_o, lambda iss: gather(g, cl, [GA + 18, GA + 19] + [GA + 4 * k + 3 for k in range(4)], 2, sleep=cfg.ps, issued=iss))
    M, Lr = GA + 16, GA + 17
    A(f"v_max_f32_dpp v36, v{M}, v{M} quad_perm:[1,0,3,2] row_mask:0xf bank_mask:0xf")
    unpack24_d(g, GA)
    A("v_max_f32_dpp v36, v36, v36 quad_perm:[2,3,0,1] row_mask:0xf bank_mask:0xf")
    A(f"v_sub_f32 v37, v{M}, v36"); A("v_exp_f32 v37, v37")
    unpack24_d(g, GA + 4)
    A(f"v_mul_f32 v38, v37, v{Lr}")
    unpack24_d(g, GA + 8)
    A("v_add_f32_dpp v38, v38, v38 quad_perm:[1,0,3,2] row_mask:0xf bank_mask:0xf")
    unpack24_d(g, GA + 12)
    A("v_add_f32_dpp v38, v38, v38 quad_perm:[2,3,0,1] row_mask:0xf bank_mask:0xf")
    for e in range(4): A(f"v_mul_f32_dpp v{40+e}, v37, v{GA+e} quad_perm:[0,0,0,0] row_mask:0xf bank_mask:0xf")
    A("v_rcp_f32 v38, v38")
    for k in range(1, 4):
        for e in range(4): A(f"v_fmac_f32_dpp v{40+e}, v37, v{GA+4*k+e} quad_perm:[{k},{k},{k},{k}] row_mask:0xf bank_mask:0xf")
    for e in range(4): A(f"v_mul_f32 v{40+e}, v{40+e}, v38")
    A("v_cvt_pk_bf16_f32 v32, v40, v41"); A("v_cvt_pk_bf16_f32 v33, v42, v43")
    A(f"ds_write_b64 v{aW}, v[32:33]")
    if cfg.dumpo:
        A(f"v_mov_b32 v34, {TAG}"); A(f"v_mov_b32 v35, {TAG}"); A("s_lshr_b32 s15, s6, 1"); A("s_lshl_b32 s15, s15, 12"); A(f"s_add_u32 s15, s15, {W_OB}")
        A(f"buffer_store_dwordx4 v[32:35], v{gT16}, {WS}, s15 offen sc1")
    A(f"s_lshl_b32 {SO[0]}, s14, 12"); A(f"s_add_u32 {SO[0]}, {SO[0]}, {W_OP}"); A(f"s_lshl_b32 {SO[1]}, s14, 10"); A(f"s_add_u32 {SO[1]}, {SO[1]}, {W_FP}")
    A(f"s_lshl_b32 {SO[2]}, s14, 7"); A(f"s_add_u32 {SO[2]}, {SO[2]}, {W_HB}"); A(f"s_lshl_b32 {SO[3]}, s6, 7"); A(f"s_add_u32 {SO[3]}, {SO[3]}, {W_HS}")
    for r_ in (35, 39, 43): A(f"v_mov_b32 v{r_}, {TAG}")
    g.stamp(8)
    A("s_waitcnt lgkmcnt(0)")
    A("s_barrier")
    for k in range(4): A(f"ds_read_b128 v[{XF+4*k}:{XF+4*k+3}], v{aF} offset:{k*64}")
    A("s_waitcnt lgkmcnt(0)")
    def fin_pair(m):
        for e in range(4): A(f"v_cndmask_b32 v{12+e}, v{AO+8*m+e}, v{AO+8*m+4+e}, s[66:67]")
        pack24(g, 32 + 4 * m, 12)
        A(f"buffer_store_dwordx4 v[{32+4*m}:{35+4*m}], v{gW}, {WS}, {['s9', 's10', 's12', 's13'][m]} offen sc1")
    for m in range(4):
        for k in range(4):
            for tl in range(2): mfma(g, AO + 8 * m + 4 * tl, WF + 16 * (2 * m + tl) + 4 * k, XF + 4 * k, k == 0)
        if m >= 1: fin_pair(m - 1)
    g.nop(1)
    fin_pair(3)
    g.stamp(9)
    def red(so, nl, stage):
        rl = [f"buffer_load_dwordx4 v[{GD+4*k}:{GD+4*k+3}], v{gL16}, {WS}, {so} offen offset:{k*1024} sc1" for k in range(nl)]
        gather(g, rl, [GD + 4 * k + 3 for k in range(nl)], stage, sleep=cfg.ps)
        for k in range(nl): unpack24_d(g, GD + 4 * k)
        if nl == 4:
            for h in range(2):
                A(f"v_pk_add_f32 v[{GD+2*h}:{GD+2*h+1}], v[{GD+2*h}:{GD+2*h+1}], v[{GD+4+2*h}:{GD+5+2*h}]"); A(f"v_pk_add_f32 v[{GD+8+2*h}:{GD+9+2*h}], v[{GD+8+2*h}:{GD+9+2*h}], v[{GD+12+2*h}:{GD+13+2*h}]")
            for h in range(2): A(f"v_pk_add_f32 v[{GD+2*h}:{GD+2*h+1}], v[{GD+2*h}:{GD+2*h+1}], v[{GD+8+2*h}:{GD+9+2*h}]")
            g.nop(1)
        xrow_reduce(g, [GD, GD + 1, GD + 2, GD + 3], steps=("ror8", "p16", "p32"), tmp=12)
        A(f"v_cvt_pk_bf16_f32 v12, v{GD}, v{GD+1}"); A(f"v_cvt_pk_bf16_f32 v13, v{GD+2}, v{GD+3}")
        for p in range(2):
            A(f"v_lshlrev_b32 v{40+2*p}, 16, v{12+p}"); A(f"v_and_b32 v{41+2*p}, 0xffff0000, v{12+p}")
        for h in range(2): A(f"v_pk_add_f32 v[{40+2*h}:{41+2*h}], v[{40+2*h}:{41+2*h}], v[{56+2*h}:{57+2*h}]")
        A("v_cvt_pk_bf16_f32 v48, v40, v41"); A("v_cvt_pk_bf16_f32 v49, v42, v43")
    g.sleep(cfg.d4)
    red(SO[0], 4, 3)
    g.setexec(0xff)
    A(f"buffer_store_dwordx4 v[48:51], v{gL16}, {WS}, {SO[2]} offen sc1")
    for p in range(2):
        A(f"v_lshlrev_b32 v{56+2*p}, 16, v{48+p}"); A(f"v_and_b32 v{57+2*p}, 0xffff0000, v{48+p}")
    A("v_pk_add_f32 v[40:41], v[56:57], v[58:59]"); A("v_pk_mul_f32 v[42:43], v[56:57], v[56:57]"); A("v_pk_fma_f32 v[42:43], v[58:59], v[58:59], v[42:43]")
    A("v_add_f32 v40, v40, v41"); A("v_add_f32 v41, v42, v43")
    A(f"ds_write_b64 v{aTb2}, v[40:41]")
    A("s_waitcnt lgkmcnt(0)")
    A("s_barrier")
    A("s_cmp_lg_u32 s3, 0"); A("s_cbranch_scc1 L_nost")
    for w in range(4): A(f"ds_read_b64 v[{GD+2*w}:{GD+2*w+1}], v{aTb2} offset:{w*64}")
    A("s_waitcnt lgkmcnt(0)")
    A(f"v_pk_add_f32 v[{GD}:{GD+1}], v[{GD}:{GD+1}], v[{GD+2}:{GD+3}]"); A(f"v_pk_add_f32 v[{GD+4}:{GD+5}], v[{GD+4}:{GD+5}], v[{GD+6}:{GD+7}]")
    A(f"v_pk_add_f32 v[52:53], v[{GD}:{GD+1}], v[{GD+4}:{GD+5}]")
    A(f"buffer_store_dwordx4 v[52:55], v{gL16}, {WS}, {SO[3]} offen sc1")
    hu_post(g, 1, 55, 12)
    g.lab("L_nost")
    g.full()
    g.stamp(10)
    if not cfg.hu: g.sleep(cfg.d7)
    hu_wait(g, 2, 15, 12, 13, cfg.dc)
    red(SO[1], 1, 6)
    g.setexec(0xff)
    A(f"buffer_store_dwordx2 v[48:49], v{gOUT}, {XO}, s68 offen")
    A("s_mov_b64 exec, 1")
    A("s_or_b32 s10, s2, s3"); A("s_cmp_lg_u32 s10, 0"); A("s_cbranch_scc1 L_done")
    A(f"v_mov_b32 v12, {TAG}"); A("v_mov_b32 v13, 0")
    A(f"buffer_store_dword v12, v13, {WS}, 0 offen sc1")
    A("s_branch L_done")

def role_f1(g):
    A = g.A; cfg = g.cfg
    STL = "" if cfg.local else "sc1"
    HF = 224
    g.lab("L_f1")
    A("s_movk_i32 s12, 7168"); A("v_mul_lo_u32 v22, v20, s12"); A(f"v_add_u32 v{pA}, v22, v21"); A(f"v_xor_b32 v{pB}, 64, v{pA}")
    srd(g, 44, 28, 7340032)
    A("s_mul_i32 s12, s4, 7"); A("s_add_u32 s12, s12, s7"); A("s_sub_u32 s12, s12, 8"); A("s_lshl_b32 s13, s12, 7"); A(f"s_mul_i32 s14, s3, {256*7168}"); A(f"s_add_u32 {sB}, s13, s14")
    P2 = [pA, pB, pA, pB]
    g.sleep(cfg.fsl)
    if cfg.fn1: dma_loop(g, SA, 8 * 7168, P2, cfg.fn1, cfg.fw1)
    dma_loop(g, SA, 8 * 7168, P2, 8 - cfg.fn1, cfg.fw2)
    A("v_mul_u32_u24 v22, 2080, v19"); A("v_lshrrev_b32 v27, 3, v0"); A(f"v_lshl_add_u32 v{aW}, v27, 3, v22"); A(f"v_add_u32 v{aW}, {ACT}, v{aW}")
    A(f"v_lshl_add_u32 v{aF}, v3, 4, v22"); A(f"v_add_u32 v{aF}, {ACT}, v{aF}")
    A("s_lshl_b32 s13, s3, 9"); A("v_lshlrev_b32 v22, 7, v3"); A(f"v_lshl_add_u32 v{gW}, v2, 4, v22"); A(f"v_add_u32 v{gW}, s13, v{gW}")
    A(f"s_lshl_b32 s9, s12, 11"); A(f"s_add_u32 s9, s9, {W_AB}"); A(f"s_add_u32 s10, s9, {BDELTA}")
    for i in range(4): A(f"s_mov_b32 {SO[i]}, {W_HB+8192*i}")
    A(f"v_add_u32 v{aTb}, 4096, v{gT16}")
    A("v_mov_b32 v12, 0x3f803f80"); A("v_mov_b32 v13, v12"); A("v_mov_b32 v14, v12"); A("v_mov_b32 v15, v12")
    A(f"s_mov_b32 s68, {W_HS}")
    A("s_lshl_b32 s13, s3, 6"); A(f"v_lshl_add_u32 v{aTb2}, v19, 3, s13"); A(f"v_add_u32 v{aTb2}, {STL_}, v{aTb2}")
    A("v_lshlrev_b32 v27, 3, v19"); A(f"v_add_u32 v27, {STL_}, v27")
    A(f"v_mov_b32 v46, {TAG}"); A(f"v_mov_b32 v47, {TAG}")
    hu_probe_issue(g, 1, 7, 40, 41)
    A("s_waitcnt vmcnt(0)")
    A("s_barrier")
    g.stamp(4)
    hl = [f"buffer_load_dwordx4 v[{GD+4*k}:{GD+4*k+3}], v{gT16 if k % 2 == 0 else aTb}, {WS}, {SO[k>>1]} offen sc1" for k in range(8)]
    hl += [f"buffer_load_dwordx4 v[{48+4*k}:{51+4*k}], v{gT16 if k == 0 else aTb}, {WS}, s68 offen sc1" for k in range(2)]
    def pre_1():
        for k in range(32):
            for q in range(2): tr(g, WF + 4 * k + 2 * q, aT if k < 16 else aT2, (k & 15) * 4096 + q * 512)
            if k >= 6:
                A("s_waitcnt lgkmcnt(12)"); mfma(g, AC + 4, WF + 4 * (k - 6), 12, k == 6)
        for k in range(26, 32):
            A(f"s_waitcnt lgkmcnt({2*(31-k)})"); mfma(g, AC + 4, WF + 4 * k, 12, False)
        g.stamp(10)
    staged(g, 1, 7, 40, 41, cfg.db, hl, pre_1, lambda iss: gather(g, hl, [GD + 4 * k + 2 for k in range(8)] + [GD + 4 * k + 3 for k in range(8)] + [51, 55], 4, sleep=cfg.ps, issued=iss))
    for k in range(8): A(f"ds_write_b64 v{aW}, v[{GD+4*k}:{GD+4*k+1}] offset:{k*256}")
    g.stamp(11)
    A("s_waitcnt lgkmcnt(0)")
    A("s_barrier")
    for k in range(8): A(f"ds_read_b128 v[{HF+4*k}:{HF+4*k+3}], v{aF} offset:{k*64}")
    A("v_pk_add_f32 v[40:41], v[48:49], v[52:53]")
    side = {
        0: ["v_add_f32_dpp v40, v40, v40 row_ror:8 row_mask:0xf bank_mask:0xf", "v_add_f32_dpp v41, v41, v41 row_ror:8 row_mask:0xf bank_mask:0xf"],
        1: ["v_mov_b32 v42, v40", "v_mov_b32 v43, v41"],
        2: ["v_permlane16_swap_b32 v40, v42", "v_permlane16_swap_b32 v41, v43"],
        3: ["v_pk_add_f32 v[40:41], v[40:41], v[42:43]"],
        4: ["v_mov_b32 v42, v40", "v_mov_b32 v43, v41"],
        5: ["v_permlane32_swap_b32 v40, v42", "v_permlane32_swap_b32 v41, v43"],
        6: ["v_pk_add_f32 v[40:41], v[40:41], v[42:43]"],
        7: ["s_mov_b32 exec_lo, 0xff", "s_mov_b32 exec_hi, 0", f"ds_write_b64 v{aTb2}, v[40:41]", "s_mov_b64 exec, -1"],
        12: ["s_barrier"] + [f"ds_read_b64 v[{48+2*w}:{49+2*w}], v27 offset:{w*64}" for w in range(4)],
        21: ["v_pk_add_f32 v[48:49], v[48:49], v[50:51]", "v_pk_add_f32 v[52:53], v[52:53], v[54:55]"],
        22: ["v_pk_add_f32 v[48:49], v[48:49], v[52:53]"],
        23: ["v_mul_f32 v48, 0x3a800000, v48", "v_mul_f32 v49, 0x3a800000, v49"],
        24: ["v_fma_f32 v49, -v48, v48, v49", "v_max_f32 v49, 0, v49"],
        25: ["v_cvt_pk_bf16_f32 v49, v49, v49", "v_lshlrev_b32 v49, 16, v49"],
        26: ["v_add_f32 v49, 0x3727c5ac, v49", "v_cvt_pk_bf16_f32 v49, v49, v49"],
        27: ["v_lshlrev_b32 v49, 16, v49", "v_sqrt_f32 v49, v49"],
        28: ["v_cvt_pk_bf16_f32 v48, v48, v48", "v_cvt_pk_bf16_f32 v49, v49, v49"],
        29: ["v_lshlrev_b32 v48, 16, v48", "v_lshlrev_b32 v49, 16, v49"],
        30: ["v_rcp_f32 v49, v49"],
    }
    seq = [("f", k) for k in range(8)]
    for k in range(32):
        need = seq.index(("f", k))
        if k == 12: need = max(need, seq.index(("w", 0)))
        if k == 21: need = max(need, seq.index(("s", 3)))
        A(f"s_waitcnt lgkmcnt({len(seq) - 1 - need})")
        mfma(g, AC, WF + 4 * k, HF + 4 * (k & 7), k == 0)
        if k + 8 < 32:
            A(f"ds_read_b128 v[{HF+4*(k&7)}:{HF+4*(k&7)+3}], v{aF} offset:{(k+8)*64}"); seq.append(("f", k + 8))
        for x_ in side.get(k, []): A(x_)
        if k == 7: seq.append(("w", 0))
        if k == 12: seq += [("s", w) for w in range(4)]
    g.nop(6)
    g.setexec(0x00ff00ff00ff00ff)
    for e in range(4): A(f"v_fma_f32 v{40+e}, -v48, v{AC+4+e}, v{AC+e}")
    for e in range(4): A(f"v_mul_f32 v{40+e}, v{40+e}, v49")
    for e in range(4): A(f"v_max_f32 v{40+e}, 0, v{40+e}")
    A("v_cvt_pk_bf16_f32 v44, v40, v41"); A("v_cvt_pk_bf16_f32 v45, v42, v43")
    A(f"buffer_store_dwordx4 v[44:47], v{gW}, {WS}, s9 offen {STL}")
    if cfg.local: A(f"buffer_store_dwordx4 v[44:47], v{gW}, {WS}, s10 offen sc1")
    g.stamp(12)
    A("s_branch L_done")

def role_attn(g):
    A = g.A; cfg = g.cfg
    STL = "" if cfg.local else "sc1"
    KF, VF, QF, SC, PV, GA = 64, 128, 192, 32, 208, 128
    PF, RS = 48, 56
    pV = [244, 245]; p2 = [4, 5]
    aK, aV, gQ, aQw, aCBw, aCBr, aCBs, gASw, gC, gS = range(246, 256)
    gL16 = 18
    g.lab("L_attn")
    A("s_mov_b32 s6, s68")
    nk0 = cfg.nk0
    done = nk0
    while done < 16:
        lo = done & 3
        dma4(g, SB, 1024, pK, waits=cfg.kw - 1, lo=lo)
        done += 4 - lo
    srd(g, 44, 20, 32 << 20)
    A("v_lshlrev_b32 v22, 1, v3"); A("v_xor_b32 v22, v2, v22"); A("v_lshlrev_b32 v22, 4, v22"); A(f"v_lshl_add_u32 v{pV[0]}, v3, 8, v22"); A(f"v_xor_b32 v{pV[1]}, 128, v{pV[0]}")
    A(f"s_mov_b32 {sB}, s66"); A(f"s_add_u32 {sM}, {mW}, 0x10000")
    A("s_lshr_b32 s10, s7, 2"); A("s_lshl_b32 s10, s10, 16"); A("s_lshl_b32 s11, s4, 9"); A("s_add_u32 s10, s10, s11"); A(f"s_add_u32 {SO[0]}, s10, {W_QP}")
    for i in range(1, 4): A(f"s_add_u32 {SO[i]}, {SO[0]}, {i*262144}")
    A("v_lshrrev_b32 v22, 4, v0"); A("v_lshlrev_b32 v22, 12, v22"); A(f"v_lshl_add_u32 v{gQ}, v2, 4, v22")
    PVp = [pV[0], pV[1], pV[0], pV[1]]
    QD = 192
    ql = [f"buffer_load_dwordx4 v[{QD+8*k+4*h}:{QD+8*k+4*h+3}], v{gQ}, {WS}, {SO[k]} offen offset:{256*h} sc1" for k in range(4) for h in range(2)]
    for k in range(4):
        if k == cfg.qpos:
            for s in ql: A(s)
        dma4(g, SA, 1024, PVp, waits=cfg.vw - 1 + (8 if k >= cfg.qpos else 0))
        if k == 0:
            A("v_lshl_add_u32 v27, v25, 2, v23"); A("v_lshl_add_u32 v27, v27, 5, v24"); A("v_lshl_add_u32 v22, v3, 2, v23")
            A(f"v_lshl_add_u32 v{aV}, v22, 8, v27"); A(f"v_add_u32 v{aV}, {mW}, v{aV}"); A(f"v_add_u32 v{aV}, 0x10000, v{aV}")
            A("v_xor_b32 v22, v3, v2"); A("v_lshlrev_b32 v22, 4, v22"); A(f"v_lshl_add_u32 v{aK}, v2, 8, v22"); A(f"v_add_u32 v{aK}, {mW}, v{aK}")
            A("v_mul_u32_u24 v22, 288, v16"); A(f"v_lshl_add_u32 v{aQw}, v17, 3, v22"); A(f"v_add_u32 v{aQw}, {QL}, v{aQw}")
            A("v_mul_u32_u24 v22, 288, v19"); A(f"v_lshl_add_u32 v{aF}, v3, 4, v22"); A(f"v_add_u32 v{aF}, {QL}, v{aF}")
            A("s_mul_i32 s13, s3, 4224"); A("v_mul_u32_u24 v22, 528, v2"); A(f"v_lshl_add_u32 v{aCBw}, v3, 4, v22"); A(f"v_add_u32 v{aCBw}, s13, v{aCBw}"); A(f"v_add_u32 v{aCBw}, {CB}, v{aCBw}")
            A("v_mul_u32_u24 v22, 528, v16"); A(f"v_add_u32 v22, {CB}, v22"); A(f"v_lshl_add_u32 v{aCBr}, v17, 4, v22"); A(f"v_add_u32 v{aCBs}, 512, v22")
            A(f"v_lshlrev_b32 v{gL16}, 4, v1"); A(f"v_lshrrev_b32 v{gASw}, 1, v0")
            A("v_lshrrev_b32 v22, 5, v1"); A("v_lshlrev_b32 v27, 4, v22"); A(f"v_lshl_add_u32 v{gS}, v24, 4, v27")
            A("v_lshlrev_b32 v22, 12, v22"); A(f"v_lshl_add_u32 v{gC}, v17, 4, v22")
            for kk in range(1, 4): A(f"v_xor_b32 v{36+kk}, {kk*64}, v{aK}")
            A(f"v_mov_b32 v{RS+3}, {TAG}"); A(f"v_mov_b32 v{RS+6}, {TAG}"); A(f"v_mov_b32 v{RS+7}, {TAG}")
            A(f"v_lshl_add_u32 v{p2[0]}, v20, 11, v21"); A(f"v_xor_b32 v{p2[1]}, 64, v{p2[0]}")
    if cfg.qpos >= 4:
        A(f"s_waitcnt vmcnt({cfg.qw})")
        for s in ql: A(s)
    newer = max(0, 4 - cfg.qpos) * 4
    A(f"s_waitcnt vmcnt({16+8})")
    for tl in range(4):
        for k in range(4): A(f"ds_read_b128 v[{KF+16*tl+4*k}:{KF+16*tl+4*k+3}], v{aK if k == 0 else 36+k} offset:{tl*4096}")
    srd(g, 48, 30, 7340032)
    A("s_lshl_b32 s12, s4, 2"); A("s_add_u32 s12, s12, s3"); A(f"s_mul_i32 s12, s12, {112*2048}"); A("s_lshl_b32 s13, s7, 7"); A(f"s_add_u32 {sB}, s12, s13")
    A(f"s_mul_i32 {sM}, s3, {14*1024}")
    g.stamp(11)
    gather(g, ql, [QD + 4 * j + 2 for j in range(8)] + [QD + 4 * j + 3 for j in range(8)], 0, issued=True, newer=newer)
    g.stamp(4)
    for h in range(2):
        A(f"v_pk_add_f32 v[{12+2*h}:{13+2*h}], v[{QD+4*h}:{QD+4*h+1}], v[{QD+8+4*h}:{QD+9+4*h}]"); A(f"v_pk_add_f32 v[{32+2*h}:{33+2*h}], v[{QD+16+4*h}:{QD+17+4*h}], v[{QD+24+4*h}:{QD+25+4*h}]")
    for h in range(2): A(f"v_pk_add_f32 v[{12+2*h}:{13+2*h}], v[{12+2*h}:{13+2*h}], v[{32+2*h}:{33+2*h}]")
    A("v_cvt_pk_bf16_f32 v12, v12, v13"); A("v_cvt_pk_bf16_f32 v13, v14, v15")
    A(f"ds_write_b64 v{aQw}, v[12:13]")
    for t in range(1, 8): A(f"v_xor_b32 v{224+t}, {t*32}, v{aV}") if False else None
    A("s_mov_b32 s9, 0x3db504f3"); A("s_mov_b32 s10, 0x3fb8aa3b")
    A("s_waitcnt lgkmcnt(0)")
    A("s_barrier")
    for k in range(4): A(f"ds_read_b128 v[{QF+4*k}:{QF+4*k+3}], v{aF} offset:{k*64}")
    P2 = [p2[0], p2[1], p2[0], p2[1]]
    n2 = cfg.w2e
    for k in range(n2 // 4): dma4(g, SB, 8 * 2048, P2)
    for k in range(4):
        A(f"s_waitcnt lgkmcnt({3-k})")
        for tl in range(4): mfma(g, SC + 4 * tl, KF + 16 * tl + 4 * k, QF + 4 * k, k == 0)
    VA = 112
    for t in range(1, 6): A(f"v_xor_b32 v{VA+t}, {t*32}, v{aV}") if False else None
    g.nop(5)
    E = 64
    for p in range(8): A(f"v_cvt_pk_bf16_f32 v{PF+p}, v{SC+2*p}, v{SC+2*p+1}")
    for p in range(8):
        A(f"v_lshlrev_b32 v{E+2*p}, 16, v{PF+p}"); A(f"v_and_b32 v{E+2*p+1}, 0xffff0000, v{PF+p}")
    A("s_mov_b32 s11, s9")
    for p in range(8): A(f"v_pk_mul_f32 v[{E+2*p}:{E+2*p+1}], v[{E+2*p}:{E+2*p+1}], s[12:13]") if False else None
    for e in range(16): A(f"v_mul_f32 v{E+e}, s9, v{E+e}")
    for p in range(8): A(f"v_cvt_pk_bf16_f32 v{PF+p}, v{E+2*p}, v{E+2*p+1}")
    for p in range(8):
        A(f"v_lshlrev_b32 v{E+2*p}, 16, v{PF+p}"); A(f"v_and_b32 v{E+2*p+1}, 0xffff0000, v{PF+p}")
    for k in range(5): A(f"v_max3_f32 v{32+k}, v{E+3*k}, v{E+3*k+1}, v{E+3*k+2}")
    A(f"v_max3_f32 v32, v32, v33, v{E+15}"); A("v_max3_f32 v34, v34, v35, v36"); A("v_max_f32 v30, v32, v34")
    A("v_mov_b32 v11, v30")
    for t in range(1, 3): A(f"v_xor_b32 v{VA+t}, {t*32}, v{aV}")
    A("v_permlane16_swap_b32 v30, v11"); A(f"v_xor_b32 v{VA+3}, {3*32}, v{aV}"); A("v_max_f32 v30, v30, v11"); A("v_mov_b32 v11, v30")
    for t in range(4, 6): A(f"v_xor_b32 v{VA+t}, {t*32}, v{aV}")
    A("v_permlane32_swap_b32 v30, v11"); A(f"v_xor_b32 v{VA+6}, {6*32}, v{aV}"); A("v_max_f32 v30, v30, v11"); A(f"v_xor_b32 v{VA+7}, {7*32}, v{aV}")
    A("v_mul_f32 v30, s10, v30")
    for e in range(16): A(f"v_fma_f32 v{E+e}, v{E+e}, s10, -v30")
    for e in range(8): A(f"v_exp_f32 v{E+e}, v{E+e}")
    g.stamp(5)
    A(f"s_waitcnt vmcnt({n2+8})")
    for t in range(8):
        for q in range(2): tr(g, VF + 4 * t + 2 * q, aV if t == 0 else VA + t, q * 4096)
    for p in range(4): A(f"v_cvt_pk_bf16_f32 v{PF+p}, v{E+2*p}, v{E+2*p+1}")
    for e in range(8, 16): A(f"v_exp_f32 v{E+e}, v{E+e}")
    for t in range(8):
        A(f"s_waitcnt lgkmcnt({14-2*t})")
        mfma(g, PV + 4 * t, VF + 4 * t, PF, True)
        if t < 4: A(f"v_cvt_pk_bf16_f32 v{PF+4+t}, v{E+8+2*t}, v{E+9+2*t}")
        else: A(f"v_pk_add_f32 v[{E+4*(t-4)}:{E+4*(t-4)+1}], v[{E+4*(t-4)}:{E+4*(t-4)+1}], v[{E+4*(t-4)+2}:{E+4*(t-4)+3}]")
    A(f"s_waitcnt vmcnt({n2})")
    g.stamp(10)
    for t in range(8):
        for q in range(2): tr(g, VF + 32 + 4 * t + 2 * q, aV if t == 0 else VA + t, 8192 + q * 4096)
    tail = [f"v_pk_add_f32 v[{E}:{E+1}], v[{E}:{E+1}], v[{E+4}:{E+5}]", f"v_pk_add_f32 v[{E+8}:{E+9}], v[{E+8}:{E+9}], v[{E+12}:{E+13}]",
            f"v_pk_add_f32 v[{E}:{E+1}], v[{E}:{E+1}], v[{E+8}:{E+9}]", f"v_add_f32 v31, v{E}, v{E+1}", "v_mov_b32 v11, v31", "s_nop 0",
            "v_permlane16_swap_b32 v31, v11", "v_add_f32 v31, v31, v11"]
    for t in range(8):
        A(f"s_waitcnt lgkmcnt({14-2*t})")
        mfma(g, PV + 4 * t, VF + 32 + 4 * t, PF + 4, False)
        A(tail[t])
    A("v_mov_b32 v11, v31"); g.nop(2); A("v_permlane32_swap_b32 v31, v11"); g.nop(1); A("v_add_f32 v31, v31, v11")
    g.setexec(0x00ff00ff00ff00ff)
    for t in range(8): A(f"ds_write_b128 v{aCBw}, v[{PV+4*t}:{PV+4*t+3}] offset:{t*64}")
    g.setexec(0xff)
    A(f"ds_write_b64 v{aCBw}, v[30:31] offset:512")
    g.full()
    A("s_lshl_b32 s9, s6, 12"); A(f"s_add_u32 s9, s9, {W_AP}"); A("s_lshl_b32 s10, s6, 7"); A(f"s_add_u32 s10, s10, {W_AS}")
    A("s_waitcnt lgkmcnt(0)")
    A("s_barrier")
    for w in range(4): A(f"ds_read_b64 v[{32+2*w}:{33+2*w}], v{aCBs} offset:{w*4224}")
    for w in range(4): A(f"ds_read_b128 v[{GA+4*w}:{GA+4*w+3}], v{aCBr} offset:{w*4224}")
    A("s_waitcnt lgkmcnt(4)")
    M4, L4 = RS + 4, RS + 5
    A(f"v_max3_f32 v{M4}, v32, v34, v36"); A(f"v_max_f32 v{M4}, v{M4}, v38")
    for w in range(4): A(f"v_sub_f32 v{32+2*w}, v{32+2*w}, v{M4}")
    for w in range(4): A(f"v_exp_f32 v{32+2*w}, v{32+2*w}")
    A("s_waitcnt lgkmcnt(0)")
    for e in range(4): A(f"v_mul_f32 v{40+e}, v32, v{GA+e}")
    for w in range(1, 4):
        for e in range(4): A(f"v_fmac_f32 v{40+e}, v{32+2*w}, v{GA+4*w+e}")
    pack24(g, RS, 40)
    A(f"buffer_store_dwordx4 v[{RS}:{RS+3}], v{gT16}, {WS}, s9 offen sc1")
    A(f"v_mul_f32 v{L4}, v32, v33")
    for w in range(1, 4): A(f"v_fmac_f32 v{L4}, v{32+2*w}, v{33+2*w}")
    g.setexec(0x0000000100000001)
    A(f"buffer_store_dwordx4 v[{RS+4}:{RS+7}], v{gASw}, {WS}, s10 offen sc1")
    g.full()
    g.stamp(6)
    A("s_cmp_lg_u32 s3, 0"); A("s_cbranch_scc1 L_nohu0")
    hu_post(g, 0, RS + 7, 12)
    g.lab("L_nohu0")
    g.sleep(cfg.w2sl)
    for k in range(n2 // 4, 3): dma4(g, SB, 8 * 2048, P2)
    dma4(g, SB, 8 * 2048, P2, hi=2)
    A("v_mul_u32_u24 v22, 928, v19"); A(f"v_add_u32 v22, {CB}, v22"); A("v_lshrrev_b32 v27, 3, v0"); A(f"v_lshl_add_u32 v{aW}, v27, 3, v22"); A(f"v_lshl_add_u32 v{aF}, v3, 4, v22")
    A("s_lshl_b32 s13, s3, 12"); A("v_lshlrev_b32 v22, 10, v3"); A(f"v_lshl_add_u32 v{gW}, v2, 4, v22"); A(f"v_add_u32 v{gW}, s13, v{gW}")
    A(f"s_mul_i32 {SO[0]}, s4, {112*128}"); A(f"s_add_u32 {SO[0]}, {SO[0]}, {W_AB}")
    for i in range(1, 3): A(f"s_add_u32 {SO[i]}, {SO[0]}, {i*4096}")
    A(f"s_add_u32 {SO[3]}, {SO[0]}, {3*4096}"); A("s_cmp_ge_u32 s3, 2"); A(f"s_cselect_b32 {SO[3]}, {SO[0]}, {SO[3]}")
    A("s_lshl_b32 s9, s7, 14"); A("s_lshl_b32 s10, s4, 7"); A("s_add_u32 s9, s9, s10"); A(f"s_add_u32 s9, s9, {W_FP}")
    A(f"v_mov_b32 v47, {TAG}")
    A("s_waitcnt vmcnt(0)")
    A("s_barrier")
    g.stamp(12)
    for k in range(14):
        for q in range(2): tr(g, 64 + 4 * k + 2 * q, aT, k * 4096 + q * 512)
    AD = 192
    al = [f"buffer_load_dwordx4 v[{AD+4*k}:{AD+4*k+3}], v{gT16}, {WS}, {SO[k]} offen sc1" for k in range(4)]
    g.sleep(cfg.d6)
    gather(g, al, [AD + 4 * k + 2 for k in range(4)] + [AD + 4 * k + 3 for k in range(4)], 5, toggle=SO, sleep=cfg.pl)
    for k in range(3): A(f"ds_write_b64 v{aW}, v[{AD+4*k}:{AD+4*k+1}] offset:{k*256}")
    A("s_cmp_ge_u32 s3, 2"); A("s_cbranch_scc1 L_a3"); A(f"ds_write_b64 v{aW}, v[{AD+12}:{AD+13}] offset:768"); g.lab("L_a3")
    g.stamp(13)
    A("s_waitcnt lgkmcnt(0)")
    A("s_barrier")
    for k in range(14): A(f"ds_read_b128 v[{128+4*k}:{131+4*k}], v{aF} offset:{k*64}")
    for k in range(14):
        A(f"s_waitcnt lgkmcnt({13-k})")
        mfma(g, 32, 64 + 4 * k, 128 + 4 * k, k == 0)
    g.setexec(0x00ff00ff00ff00ff)
    g.nop(6)
    pack24(g, 44, 32)
    A(f"buffer_store_dwordx4 v[44:47], v{gW}, {WS}, s9 offen sc1")
    g.full()
    A("s_cmp_lg_u32 s3, 0"); A("s_cbranch_scc1 L_nohu")
    hu_post(g, 2, 47, 12)
    g.lab("L_nohu")
    g.stamp(14)

def parse(argv=None):
    ap = argparse.ArgumentParser()
    ap.add_argument("-o", default="sequential_preLN__sliding_block_cached__dense_activation_relu__decode.s")
    D = dict(stamps=0, nt=1, pref=1, local=1, wc=1, wr=2, fb=300, early=1, nopoll=0, hu=1, hun=400, dumpo=0, huearly=1,
             nk0=8, kwin=2, kw=10, vw=10, qpos=2, qw=8, w2e=0, w2sl=0,
             osl=40, on1=0, ow1=2, ow2=10, fsl=70, fn1=0, fw1=2, fw2=8,
             d2=3, d4=14, d6=0, d7=60, dt=12, da=6, db=6, dc=6, ps=4, pl=1)
    for k, d in D.items(): ap.add_argument(f"--{k}", type=int, default=d)
    return ap.parse_args(argv)

if __name__ == "__main__":
    cfg = parse()
    open(cfg.o, "w").write(gen(cfg))
```

```python
import sys, argparse
sys.path.insert(0, "bench")
from asmlib import wrap

RQ = 98304
SCR = 131072
ACT = SCR
STL_ = SCR + 8 * 2080
QL = SCR + 8 * 544
CB = QL + 8 * 288
LDS_END = CB + 4 * 8 * 528
assert STL_ + 256 <= LDS_END <= 163840

W_QP = 0x100000
W_AP = 0x200000
W_AS = 0x280000
W_OB = 0x290000
W_HB = 0x2C0000
W_HS = 0x2D0000
W_HU = 0x2E0000
W_OP = 0x500000
W_AB = 0x340000
W_FP = 0x380000
BDELTA = 0x400000
STAMP_OFF = 128 << 20

WS, XO, SA, SB = "s[36:39]", "s[40:43]", "s[44:47]", "s[48:51]"
TAG = "s8"
PK0, PK1, PK2, UP0, UP1, PCNT = "s52", "s53", "s54", "s55", "s56", "s57"
SO = ["s58", "s59", "s60", "s61"]
mW, sB, sM, sI = "s62", "s63", "s64", "s65"

class G:
    def __init__(self, cfg):
        self.L = []; self.cfg = cfg; self.nlab = 0
    def A(self, s): self.L.append("    " + s)
    def lab(self, s): self.L.append(s + ":")
    def newlab(self, p="L"):
        self.nlab += 1; return f"{p}_{self.nlab}"
    def nop(self, n):
        while n > 0:
            k = min(n, 16); self.A(f"s_nop {k-1}"); n -= k
    def setexec(self, m):
        lo, hi = m & 0xffffffff, m >> 32
        if hi == 0 and lo <= 64: self.A(f"s_mov_b64 exec, {lo}")
        else:
            self.A(f"s_mov_b32 exec_lo, {hex(lo)}"); self.A(f"s_mov_b32 exec_hi, {hex(hi)}")
    def full(self): self.A("s_mov_b64 exec, -1")
    def stamp(self, idx):
        if self.cfg.stamps: self.A(f"s_memrealtime s[{70+2*idx}:{71+2*idx}]")
    def sleep(self, n):
        while n > 0:
            k = min(n, 127); self.A(f"s_sleep {k}"); n -= k

def srd(g, d, p, n):
    if d != p: g.A(f"s_mov_b32 s{d}, s{p}"); g.A(f"s_mov_b32 s{d+1}, s{p+1}")
    g.A(f"s_mov_b32 s{d+2}, {n}"); g.A(f"s_mov_b32 s{d+3}, 0x20000")

def dma4(g, sr, step, pats, waits=None, lo=0, hi=4, adv=True):
    nt = " nt" if g.cfg.nt else ""
    g.A(f"s_mov_b32 m0, {sM}")
    for jj in range(lo, hi):
        w = None if waits is None else (waits if isinstance(waits, int) else waits[jj])
        if w is not None: g.A(f"s_waitcnt vmcnt({w})")
        off = jj * (step - 1024)
        if off: g.A(f"s_add_u32 s15, {sB}, {off}")
        elif w is None and jj == lo: g.A("s_nop 0")
        g.A(f"buffer_load_dwordx4 v{pats[jj]}, {sr}, {'s15' if off else sB} offen offset:{jj*1024}{nt} lds")
    if adv: g.A(f"s_add_u32 {sB}, {sB}, {4*step}"); g.A(f"s_add_u32 {sM}, {sM}, 4096")

def dma_loop(g, sr, step, pats, ngroups, win):
    l = g.newlab("L_dl")
    g.A(f"s_mov_b32 {sI}, 0")
    g.lab(l)
    dma4(g, sr, step, pats, waits=win - 1)
    g.A(f"s_add_u32 {sI}, {sI}, 1"); g.A(f"s_cmp_lt_u32 {sI}, {ngroups}"); g.A(f"s_cbranch_scc1 {l}")

def tagcheck(g, tagregs, tmp=10):
    g.A(f"v_xor_b32 v{tmp}, {TAG}, v{tagregs[0]}")
    for t in tagregs[1:]: g.A(f"v_bitop3_b32 v{tmp}, v{tmp}, v{t}, {TAG} bitop3:0xF6")
    g.A(f"v_cmp_ne_u32 vcc, 0, v{tmp}")

def gather(g, loads, tagregs, stage, issued=False, newer=0, late=None, toggle=(), sleep=0):
    l = g.newlab("L_g"); e = g.newlab("L_ge")
    if g.cfg.nopoll:
        g.A(f"s_waitcnt vmcnt({newer})"); return
    if not issued:
        for s in loads: g.A(s)
    g.A(f"s_mov_b32 {PCNT}, 0")
    g.A(f"s_waitcnt vmcnt({newer})")
    tagcheck(g, tagregs)
    g.A(f"s_cbranch_vccz {e}")
    g.lab(l)
    g.sleep(sleep)
    for s in loads: g.A(s)
    g.A(f"s_add_u32 {PCNT}, {PCNT}, 1")
    g.A("s_waitcnt vmcnt(0)")
    tagcheck(g, tagregs)
    g.A(f"s_cbranch_vccz {e}")
    if g.cfg.local and (late or toggle):
        sk = g.newlab("L_gl")
        g.A(f"s_cmp_lt_u32 {PCNT}, {g.cfg.fb}"); g.A(f"s_cbranch_scc1 {sk}")
        for t in toggle: g.A(f"s_xor_b32 {t}, {t}, {BDELTA}")
        if late:
            g.A(f"s_cmp_lg_u32 {PCNT}, {g.cfg.fb}"); g.A(f"s_cbranch_scc1 {sk}")
            late()
        g.lab(sk)
    g.A(f"s_cmp_lt_u32 {PCNT}, 40000")
    g.A(f"s_cbranch_scc1 {l}")
    g.lab(e)
    if g.cfg.stamps: g.A(f"s_min_u32 {PCNT}, {PCNT}, 15"); g.A(f"s_lshl_b32 {PCNT}, {PCNT}, {4*stage}"); g.A(f"s_add_u32 s69, s69, {PCNT}")

def hu_wait(g, which, nmask, addr, dst, delay):
    if not g.cfg.hu or g.cfg.nopoll: return
    l = g.newlab("L_hu"); e = g.newlab("L_hue")
    g.A(f"v_and_b32 v{addr}, {nmask}, v1"); g.A(f"v_lshlrev_b32 v{addr}, 4, v{addr}")
    g.A("s_lshl_b32 s15, s4, 8"); g.A(f"s_add_u32 s15, s15, {W_HU + which*2048}")
    g.A(f"s_mov_b32 {PCNT}, 0")
    g.lab(l)
    g.A(f"buffer_load_dword v{dst}, v{addr}, {WS}, s15 offen sc1")
    g.A(f"s_add_u32 {PCNT}, {PCNT}, 1")
    g.A("s_waitcnt vmcnt(0)")
    g.A(f"v_cmp_ne_u32 vcc, {TAG}, v{dst}")
    g.A(f"s_cbranch_vccz {e}")
    g.A(f"s_cmp_lt_u32 {PCNT}, {g.cfg.hun}"); g.A(f"s_cbranch_scc1 {l}")
    g.lab(e)
    g.sleep(delay)

def hu_probe_issue(g, which, nmask, addr, dst):
    if not (g.cfg.hu and g.cfg.huearly) or g.cfg.nopoll: return
    g.A(f"v_and_b32 v{addr}, {nmask}, v1"); g.A(f"v_lshlrev_b32 v{addr}, 4, v{addr}")
    g.A("s_lshl_b32 s15, s4, 8"); g.A(f"s_add_u32 s15, s15, {W_HU + which*2048}")
    g.A(f"buffer_load_dword v{dst}, v{addr}, {WS}, s15 offen sc1")

def staged(g, which, nmask, addr, dst, delay, loads, preload, fin):
    if not (g.cfg.hu and g.cfg.huearly) or g.cfg.nopoll:
        preload(); hu_wait(g, which, nmask, addr, dst, delay); fin(False); return
    late = g.newlab("L_st"); go = g.newlab("L_sg")
    g.A(f"v_cmp_ne_u32 vcc, {TAG}, v{dst}")
    g.A(f"s_cbranch_vccnz {late}")
    for x_ in loads: g.A(x_)
    g.A("s_mov_b32 s67, 1") if False else None
    g.lab(late)
    g.A("s_mov_b64 s[88:89], vcc") if False else None
    g.A("s_cselect_b32 s0, 0, 0") if False else None
    g.A("s_mov_b64 s[0:1], vcc")
    preload()
    g.A("s_cmp_eq_u64 s[0:1], 0"); g.A(f"s_cbranch_scc1 {go}")
    hu_wait(g, which, nmask, addr, dst, delay)
    for x_ in loads: g.A(x_)
    g.lab(go)
    fin(True)

def hu_post(g, which, tagreg, tmp):
    if not g.cfg.hu: return
    g.A("s_lshl_b32 s15, s4, 4"); g.A("s_add_u32 s15, s15, s7"); g.A("s_lshl_b32 s15, s15, 4"); g.A(f"s_add_u32 s15, s15, {W_HU + which*2048}")
    g.A(f"v_mov_b32 v{tmp}, 0"); g.A("s_mov_b64 exec, 1")
    g.A(f"buffer_store_dword v{tagreg}, v{tmp}, {WS}, s15 offen")
    g.full()

def pack24(g, d, a):
    g.A(f"v_perm_b32 v{d}, v{a}, v{a+3}, {PK0}"); g.A(f"v_perm_b32 v{d+1}, v{a+1}, v{a+3}, {PK1}"); g.A(f"v_perm_b32 v{d+2}, v{a+2}, v{a+3}, {PK2}")
def unpack24_d(g, b):
    g.A(f"v_perm_b32 v{b+3}, v{b+1}, v{b}, {UP0}"); g.A(f"v_perm_b32 v{b+3}, v{b+2}, v{b+3}, {UP1}")
def bf16_round(g, d, s):
    g.A(f"v_cvt_pk_bf16_f32 v{d}, v{s}, v{s}"); g.A(f"v_lshlrev_b32 v{d}, 16, v{d}")
def xrow_reduce(g, regs, op="v_add_f32", steps=("ror8", "p16", "p32"), tmp=11):
    n = len(regs)
    for st in steps:
        if st.startswith("ror"):
            g.nop(max(0, 3 - n))
            for r in regs: g.A(f"{op}_dpp v{r}, v{r}, v{r} row_ror:{st[3:]} row_mask:0xf bank_mask:0xf")
        else:
            ins = "v_permlane16_swap_b32" if st == "p16" else "v_permlane32_swap_b32"
            for k, r in enumerate(regs): g.A(f"v_mov_b32 v{tmp+k}, v{r}")
            g.nop(max(0, 3 - n))
            for k, r in enumerate(regs): g.A(f"{ins} v{r}, v{tmp+k}")
            g.nop(max(0, 2 - n))
            for k, r in enumerate(regs): g.A(f"{op} v{r}, v{r}, v{tmp+k}")
def mfma(g, d, a, b, first):
    g.A(f"v_mfma_f32_16x16x32_bf16 v[{d}:{d+3}], v[{a}:{a+3}], v[{b}:{b+3}], {'0' if first else f'v[{d}:{d+3}]'}")
def tr(g, d, addr, off):
    g.A(f"ds_read_b64_tr_b16 v[{d}:{d+1}], v{addr} offset:{off}")

pA, pB, aT, aT2, aF, gT16 = 4, 5, 6, 7, 8, 9
gW, aW, aTb, aTb2 = 28, 29, 30, 31
WF, AC, GD = 64, 32, 192
pK = [240, 241, 242, 243]

def gen(cfg):
    g = G(cfg); A = g.A
    g.stamp(0)
    A("s_load_dwordx16 s[16:31], s[0:1], 0")
    A("s_load_dwordx4 s[32:35], s[0:1], 64")
    A("s_load_dwordx2 s[36:37], s[0:1], 80")
    A("s_cmp_ge_u32 s2, 256"); A("s_cbranch_scc1 L_end")
    A("v_lshrrev_b32 v7, 6, v0"); A("v_and_b32 v1, 63, v0")
    A("s_lshr_b32 s5, s2, 3")
    if cfg.pref:
        A("s_getpc_b64 s[10:11]"); g.lab("L_begin")
        A("s_lshl_b32 s9, s5, 8"); A("v_add_u32 v10, s9, v0"); A("v_and_b32 v10, 1023, v10"); A("v_lshlrev_b32 v10, 4, v10")
        A("s_mov_b32 s9, L_end - L_begin - 64"); A("v_min_u32 v10, s9, v10")
        A("global_load_dwordx4 v[12:15], v10, s[10:11]")
    A("v_readfirstlane_b32 s3, v7")
    A("s_and_b32 s4, s2, 7"); A("s_and_b32 s7, s5, 15"); A("s_lshl_b32 s6, s4, 5"); A("s_add_u32 s6, s6, s5")
    if cfg.swap: A("s_xor_b32 s5, s5, 16")
    A("v_and_b32 v2, 15, v1"); A("v_lshrrev_b32 v3, 4, v1")
    A("v_lshrrev_b32 v16, 5, v0"); A("v_and_b32 v17, 31, v0")
    A("v_lshlrev_b32 v18, 11, v16"); A("v_lshl_add_u32 v18, v17, 4, v18")
    A("s_lshr_b32 s9, s6, 6")
    A("v_lshrrev_b32 v20, 3, v1"); A("v_and_b32 v19, 7, v1")
    A("v_bfe_u32 v21, v1, 4, 1"); A("v_lshlrev_b32 v21, 1, v21"); A("v_xor_b32 v21, v19, v21"); A("v_lshlrev_b32 v21, 4, v21")
    A(f"v_lshl_add_u32 v{pA}, v20, 13, v21"); A(f"v_xor_b32 v{pB}, 64, v{pA}")
    A("s_lshl_b32 s12, s9, 2"); A("s_add_u32 s12, s12, s3"); A("s_lshl_b32 s12, s12, 19"); A("s_and_b32 s13, s6, 63"); A("s_lshl_b32 s13, s13, 7"); A(f"s_add_u32 {sB}, s12, s13")
    A(f"s_lshl_b32 {sM}, s3, 13"); A(f"s_add_u32 {sM}, {sM}, {RQ}")
    A("s_lshl_b32 s13, s9, 9"); A("s_add_u32 s14, s13, 512"); A("s_and_b32 s14, s14, 0x600"); A("s_xor_b32 s12, s13, 1024"); A("s_xor_b32 s9, s14, 1024")
    A("s_waitcnt lgkmcnt(0)")
    srd(g, 40, 16, 16384)
    for i, s in enumerate(["s13", "s14", "s12", "s9"]): A(f"buffer_load_dwordx4 v[{GD+4*i}:{GD+4*i+3}], v18, {XO}, {s} offen")
    srd(g, 44, 22, 8 << 20)
    A("s_load_dword s8, s[36:37], 0")
    for k in range(2): dma4(g, SA, 8 * 8192, [pA, pB, pA, pB])
    g.stamp(1)
    srd(g, 36, 36, 256 << 20); srd(g, 48, 18, 32 << 20)
    A(f"s_mov_b32 {PK0}, 0x07060501"); A(f"s_mov_b32 {PK1}, 0x07060502"); A(f"s_mov_b32 {PK2}, 0x07060503"); A(f"s_mov_b32 {UP0}, 0x0C04000C"); A(f"s_mov_b32 {UP1}, 0x0402010C")
    if cfg.stamps: A("s_mov_b32 s69, 0")
    A("v_mul_u32_u24 v22, 544, v16"); A(f"v_lshl_add_u32 v{aW}, v17, 4, v22"); A(f"v_add_u32 v{aW}, {ACT}, v{aW}")
    A("v_mul_u32_u24 v22, 544, v19"); A(f"v_lshl_add_u32 v{aF}, v3, 4, v22"); A(f"v_add_u32 v{aF}, {ACT}, v{aF}")
    A("v_bfe_u32 v23, v1, 2, 2"); A("v_and_b32 v24, 3, v1"); A("v_lshlrev_b32 v24, 3, v24"); A("v_and_b32 v25, 1, v3"); A("v_lshl_add_u32 v26, v3, 3, v23")
    A("v_lshrrev_b32 v27, 1, v23"); A("v_lshl_add_u32 v27, v25, 1, v27"); A("v_xor_b32 v27, s3, v27"); A("v_lshl_add_u32 v27, v27, 5, v24"); A(f"v_lshl_add_u32 v{aT}, v26, 7, v27")
    A(f"v_add_u32 v{aT2}, 0x10000, v{aT}")
    A(f"v_lshlrev_b32 v{gT16}, 4, v0")
    A("s_lshl_b32 s13, s3, 6"); A("v_lshlrev_b32 v27, 9, v2"); A(f"v_lshl_add_u32 v{gW}, v3, 4, v27"); A(f"v_add_u32 v{gW}, s13, v{gW}")
    A("v_xor_b32 v27, v2, v3"); A("v_lshlrev_b32 v27, 4, v27"); A(f"v_lshl_add_u32 v{pK[0]}, v3, 8, v27")
    for k in range(1, 4): A(f"v_xor_b32 v{pK[k]}, {k*64}, v{pK[0]}")
    A("s_lshl_b32 s68, s4, 4"); A("s_add_u32 s68, s68, s7")
    A("s_lshr_b32 s12, s68, 2"); A("s_lshl_b32 s12, s12, 20"); A("s_and_b32 s13, s68, 3"); A("s_lshl_b32 s13, s13, 16"); A("s_add_u32 s12, s12, s13")
    A(f"s_lshl_b32 {mW}, s3, 14"); A(f"s_add_u32 s12, s12, {mW}"); A("s_add_u32 s66, s12, 0xC0000")
    A(f"s_mov_b32 {sB}, s66"); A(f"s_mov_b32 {sM}, {mW}")
    A("s_lshl_b32 s9, s6, 12"); A(f"s_add_u32 s9, s9, {W_QP}")
    A("s_waitcnt lgkmcnt(0)")
    A("s_mul_i32 s8, s8, 0x9E3779B1"); A("s_add_u32 s8, s8, 0x7F4A7C15")
    U = 96
    A("s_waitcnt vmcnt(8)")
    g.stamp(5)
    for d in range(16):
        A(f"v_lshlrev_b32 v{U+2*d}, 16, v{GD+d}"); A(f"v_and_b32 v{U+2*d+1}, 0xffff0000, v{GD+d}")
    A(f"v_pk_add_f32 v[40:41], v[{U}:{U+1}], v[{U+2}:{U+3}]"); A(f"v_pk_add_f32 v[42:43], v[{U+4}:{U+5}], v[{U+6}:{U+7}]")
    for d in range(4, 16): A(f"v_pk_add_f32 v[{40+2*(d&1)}:{41+2*(d&1)}], v[{40+2*(d&1)}:{41+2*(d&1)}], v[{U+2*d}:{U+2*d+1}]")
    A("v_pk_add_f32 v[40:41], v[40:41], v[42:43]"); A("v_add_f32 v40, v40, v41")
    xrow_reduce(g, [40], steps=("ror8", "ror4", "ror2", "ror1", "p16"))
    A("v_mul_f32 v40, 0xba800000, v40"); A("v_mov_b32 v41, v40")
    for d in range(16):
        r = WF + 2 * (d & 7)
        A(f"v_pk_add_f32 v[{r}:{r+1}], v[{U+2*d}:{U+2*d+1}], v[40:41]")
        a = 44 + 2 * (d & 1)
        if d < 2: A(f"v_pk_mul_f32 v[{a}:{a+1}], v[{r}:{r+1}], v[{r}:{r+1}]")
        else: A(f"v_pk_fma_f32 v[{a}:{a+1}], v[{r}:{r+1}], v[{r}:{r+1}], v[{a}:{a+1}]")
    A("v_pk_add_f32 v[44:45], v[44:45], v[46:47]"); A("v_add_f32 v44, v44, v45")
    xrow_reduce(g, [44], steps=("ror8", "ror4", "ror2", "ror1", "p16"))
    A("v_mul_f32 v44, 0x3a800000, v44")
    bf16_round(g, 40, 40); bf16_round(g, 44, 44)
    A("v_add_f32 v44, 0x3727c5ac, v44"); bf16_round(g, 44, 44)
    A("v_sqrt_f32 v44, v44"); A("v_mov_b32 v41, v40")
    for d in range(4): A(f"v_pk_add_f32 v[{U+2*d}:{U+2*d+1}], v[{U+2*d}:{U+2*d+1}], v[40:41]")
    bf16_round(g, 44, 44)
    A("v_rcp_f32 v46, v44"); A("v_sub_f32 v44, 0, v44"); A("v_mov_b32 v45, v44")
    for d in range(4): A(f"v_cvt_pk_bf16_f32 v{48+d}, v{U+2*d}, v{U+2*d+1}")
    A("v_mov_b32 v47, v46")
    for d in range(4):
        A(f"v_lshlrev_b32 v{U+2*d}, 16, v{48+d}"); A(f"v_and_b32 v{U+2*d+1}, 0xffff0000, v{48+d}")
    for d in range(4): A(f"v_pk_mul_f32 v[{U+16+2*d}:{U+17+2*d}], v[{U+2*d}:{U+2*d+1}], v[46:47]")
    for d in range(4): A(f"v_pk_fma_f32 v[{U+2*d}:{U+2*d+1}], v[{U+16+2*d}:{U+17+2*d}], v[44:45], v[{U+2*d}:{U+2*d+1}]")
    for d in range(4): A(f"v_pk_fma_f32 v[{U+16+2*d}:{U+17+2*d}], v[{U+2*d}:{U+2*d+1}], v[46:47], v[{U+16+2*d}:{U+17+2*d}]")
    for d in range(4): A(f"v_cvt_pk_bf16_f32 v{48+d}, v{U+16+2*d}, v{U+17+2*d}")
    A(f"ds_write_b128 v{aW}, v[48:51]")
    g.stamp(2)
    A(f"v_mov_b32 v14, {TAG}"); A(f"v_mov_b32 v15, {TAG}"); A(f"v_mov_b32 v42, {TAG}"); A(f"v_mov_b32 v43, {TAG}")
    nk0 = cfg.nk0
    A("s_cmp_lt_u32 s5, 16"); A("s_cbranch_scc1 L_nok")
    done = 0
    while done < nk0:
        n = min(4, nk0 - done)
        dma4(g, SB, 1024, pK, waits=[max(0, 7 - min(7, done + jj + cfg.kwin)) + done + jj for jj in range(4)], hi=n, adv=(n == 4))
        done += n
    A(f"s_waitcnt vmcnt({nk0}) lgkmcnt(0)"); A("s_branch L_qb")
    g.lab("L_nok")
    A("s_waitcnt vmcnt(0) lgkmcnt(0)")
    g.lab("L_qb")
    A("s_barrier")
    XFq = 192
    for k in range(8):
        A(f"ds_read_b128 v[{XFq+4*k}:{XFq+4*k+3}], v{aF} offset:{k*64}")
        for q in range(2): tr(g, WF + 4 * k + 2 * q, aT2, RQ - 65536 + k * 4096 + q * 512)
        if k >= 4:
            A("s_waitcnt lgkmcnt(12)"); mfma(g, AC, WF + 4 * (k - 4), XFq + 4 * (k - 4), k == 4)
    for k in range(4, 8):
        A(f"s_waitcnt lgkmcnt({3*(7-k)})"); mfma(g, AC, WF + 4 * k, XFq + 4 * k, False)
    g.setexec(0x00ff00ff00ff00ff)
    g.nop(6)
    A(f"v_mov_b32 v12, v{AC}"); A(f"v_mov_b32 v13, v{AC+1}"); A(f"v_mov_b32 v40, v{AC+2}"); A(f"v_mov_b32 v41, v{AC+3}")
    A(f"buffer_store_dwordx4 v[12:15], v{gW}, {WS}, s9 offen sc1")
    A(f"buffer_store_dwordx4 v[40:43], v{gW}, {WS}, s9 offen offset:256 sc1")
    g.full()
    g.stamp(3)
    A("s_cmp_eq_u32 s5, 15"); A("s_cbranch_scc1 L_done")
    A("s_barrier")
    A("s_cmp_ge_u32 s5, 16"); A("s_cbranch_scc1 L_attn")
    A(f"s_lshl_b32 {sM}, s3, 15")
    A("s_cmp_ge_u32 s5, 8"); A("s_cbranch_scc1 L_f1")
    role_o(g)
    role_f1(g)
    role_attn(g)
    g.lab("L_done")
    g.stamp(15)
    if cfg.stamps == 2:
        g.full()
        A("s_cmp_ge_u32 s5, 8"); A("s_cbranch_scc1 L_end")
        A("s_waitcnt lgkmcnt(0)"); A("s_not_b32 s70, s70")
        for i in range(16): A(f"v_writelane_b32 v10, s{70+2*i}, {i}")
        srd(g, 44, 34, 256); A("v_lshlrev_b32 v11, 2, v1"); g.setexec(0xffff)
        A("buffer_atomic_umax v10, v11, s[44:47], 0 offen sc1")
    if cfg.stamps == 1:
        g.full()
        A("s_waitcnt lgkmcnt(0)"); A("s_mov_b32 s72, s69")
        for i in range(16): A(f"v_writelane_b32 v10, s{70+2*i}, {i}")
        A("s_lshl_b32 s9, s2, 4"); A("s_add_u32 s9, s9, s3"); A("s_lshl_b32 s9, s9, 6"); A(f"s_add_u32 s9, s9, {STAMP_OFF}")
        A("v_lshlrev_b32 v11, 2, v1"); g.setexec(0xffff)
        A(f"buffer_store_dword v10, v11, {WS}, s9 offen")
    g.lab("L_end"); A("s_endpgm")
    return wrap("\n".join(g.L), 256, 256, LDS_END, vgpr=256, sgpr=102)

def role_o(g):
    A = g.A; cfg = g.cfg
    gOUT, gL16, gP, gS = 62, 63, 18, 27
    PO = [240, 241, 242, 243]
    AO, XF = 208, 192
    A("s_lshr_b32 s12, s7, 1"); A("s_lshl_b32 s11, s4, 2"); A("s_add_u32 s12, s12, s11"); A("s_and_b32 s13, s7, 1")
    for k in range(4): A(f"v_xor_b32 v{PO[k]}, {2*k}, v1");
    for k in range(4): A(f"v_lshlrev_b32 v{PO[k]}, 4, v{PO[k]}")
    srd(g, 44, 24, 8 << 20)
    A("s_lshl_b32 s6, s4, 3"); A("s_add_u32 s6, s6, s7"); A("s_lshl_b32 s14, s6, 2"); A("s_add_u32 s14, s14, s3")
    A(f"v_lshlrev_b32 v{gOUT}, 11, v19"); A("s_lshl_b32 s68, s14, 3")
    A(f"buffer_load_dwordx2 v[60:61], v{gOUT}, {XO}, s68 offen")
    A("s_lshl_b32 s10, s12, 2"); A("s_add_u32 s10, s10, s3"); A("s_lshl_b32 s10, s10, 16"); A("s_lshl_b32 s11, s13, 10"); A(f"s_add_u32 {sB}, s10, s11")
    g.sleep(cfg.osl)
    l = g.newlab("L_dl")
    A(f"s_mov_b32 {sI}, 0")
    g.lab(l)
    dma4(g, SA, 2048, PO, waits=cfg.ow2 - 1); dma4(g, SA, 2048, PO, waits=cfg.ow2 - 1)
    for k in range(4): A(f"v_xor_b32 v{PO[k]}, 128, v{PO[k]}")
    A(f"s_add_u32 {sI}, {sI}, 1"); A(f"s_cmp_lt_u32 {sI}, 4"); A(f"s_cbranch_scc1 {l}")
    A("v_lshl_add_u32 v22, v25, 2, v23"); A("v_lshl_add_u32 v22, v22, 5, v24"); A("s_lshl_b32 s11, s3, 8")
    A(f"v_lshl_add_u32 v{aT}, v26, 10, v22"); A(f"v_add_u32 v{aT}, s11, v{aT}")
    A("v_mul_u32_u24 v22, 288, v16"); A(f"v_lshl_add_u32 v{aW}, v17, 3, v22"); A(f"v_add_u32 v{aW}, {ACT}, v{aW}")
    A("v_mul_u32_u24 v22, 288, v19"); A(f"v_lshl_add_u32 v{aF}, v3, 4, v22"); A(f"v_add_u32 v{aF}, {ACT}, v{aF}")
    A("s_lshl_b32 s11, s3, 3"); A("v_lshrrev_b32 v22, 3, v2"); A("v_add_u32 v22, s11, v22"); A("v_lshl_add_u32 v22, v22, 2, v3"); A("v_lshlrev_b32 v22, 12, v22"); A(f"v_lshl_add_u32 v{gW}, v19, 4, v22")
    A("v_lshlrev_b32 v22, 16, v16"); A(f"v_lshl_add_u32 v{gP}, v17, 4, v22")
    A("v_lshlrev_b32 v22, 11, v16"); A(f"v_lshl_add_u32 v{gS}, v24, 4, v22")
    A("v_cmp_lt_u32 s[66:67], 7, v2")
    for r_ in (47, 50, 51, 54, 55): A(f"v_mov_b32 v{r_}, {TAG}")
    A(f"v_lshlrev_b32 v{gL16}, 4, v1")
    A("s_lshl_b32 s10, s3, 6"); A(f"v_lshl_add_u32 v{aTb2}, v19, 3, s10"); A(f"v_add_u32 v{aTb2}, {STL_}, v{aTb2}")
    A("s_lshr_b32 s10, s12, 3"); A("s_and_b32 s11, s12, 7")
    A(f"s_lshl_b32 {SO[0]}, s10, 14"); A("s_lshl_b32 s9, s11, 9"); A(f"s_add_u32 {SO[0]}, {SO[0]}, s9"); A(f"s_add_u32 {SO[0]}, {SO[0]}, {W_AP}")
    for i in range(1, 4): A(f"s_add_u32 {SO[i]}, {SO[0]}, {i*4096}")
    A("s_lshl_b32 s10, s10, 9"); A("s_lshl_b32 s11, s11, 4"); A("s_add_u32 s11, s11, s10"); A(f"s_add_u32 s11, s11, {W_AS}")
    A("s_lshl_b32 s9, s13, 19"); A("s_lshl_b32 s10, s12, 7"); A("s_add_u32 s9, s9, s10"); A(f"s_add_u32 s9, s9, {W_OP}")
    A(f"s_add_u32 s10, s9, 32768"); A("s_add_u32 s12, s9, 65536"); A("s_add_u32 s13, s9, 98304")
    hu_probe_issue(g, 0, 15, 40, 41)
    A("s_waitcnt vmcnt(0)")
    A("s_barrier")
    g.stamp(4)
    GA = 192
    cl = [f"buffer_load_dwordx4 v[{GA+16}:{GA+19}], v{gS}, {WS}, s11 offen sc1"] + [f"buffer_load_dwordx4 v[{GA+4*k}:{GA+4*k+3}], v{gP}, {WS}, {SO[k]} offen sc1" for k in range(4)]
    def pre_o():
        for tt in range(8):
            a0, a1 = 12 + 2 * (tt & 1), 13 + 2 * (tt & 1)
            A(f"v_xor_b32 v{a0}, {tt*32}, v{aT}"); A(f"v_add_u32 v{a1}, 0x10000, v{a0}")
            for k in range(4):
                for q in range(2): tr(g, WF + 16 * tt + 4 * k + 2 * q, a0 if k < 2 else a1, (k & 1) * 32768 + q * 4096)
        srd(g, 40, 32, 16384)
        for p in range(2):
            A(f"v_lshlrev_b32 v{56+2*p}, 16, v{60+p}"); A(f"v_and_b32 v{57+2*p}, 0xffff0000, v{60+p}")
    staged(g, 0, 15, 40, 41, cfg.da, cl, pre_o, lambda iss: gather(g, cl, [GA + 18, GA + 19] + [GA + 4 * k + 3 for k in range(4)], 2, sleep=cfg.ps, issued=iss))
    M, Lr = GA + 16, GA + 17
    A(f"v_max_f32_dpp v36, v{M}, v{M} quad_perm:[1,0,3,2] row_mask:0xf bank_mask:0xf")
    unpack24_d(g, GA)
    A("v_max_f32_dpp v36, v36, v36 quad_perm:[2,3,0,1] row_mask:0xf bank_mask:0xf")
    A(f"v_sub_f32 v37, v{M}, v36"); A("v_exp_f32 v37, v37")
    unpack24_d(g, GA + 4)
    A(f"v_mul_f32 v38, v37, v{Lr}")
    unpack24_d(g, GA + 8)
    A("v_add_f32_dpp v38, v38, v38 quad_perm:[1,0,3,2] row_mask:0xf bank_mask:0xf")
    unpack24_d(g, GA + 12)
    A("v_add_f32_dpp v38, v38, v38 quad_perm:[2,3,0,1] row_mask:0xf bank_mask:0xf")
    for e in range(4): A(f"v_mul_f32_dpp v{40+e}, v37, v{GA+e} quad_perm:[0,0,0,0] row_mask:0xf bank_mask:0xf")
    A("v_rcp_f32 v38, v38")
    for k in range(1, 4):
        for e in range(4): A(f"v_fmac_f32_dpp v{40+e}, v37, v{GA+4*k+e} quad_perm:[{k},{k},{k},{k}] row_mask:0xf bank_mask:0xf")
    for e in range(4): A(f"v_mul_f32 v{40+e}, v{40+e}, v38")
    A("v_cvt_pk_bf16_f32 v32, v40, v41"); A("v_cvt_pk_bf16_f32 v33, v42, v43")
    A(f"ds_write_b64 v{aW}, v[32:33]")
    if cfg.dumpo:
        A(f"v_mov_b32 v34, {TAG}"); A(f"v_mov_b32 v35, {TAG}"); A("s_lshr_b32 s15, s6, 1"); A("s_lshl_b32 s15, s15, 12"); A(f"s_add_u32 s15, s15, {W_OB}")
        A(f"buffer_store_dwordx4 v[32:35], v{gT16}, {WS}, s15 offen sc1")
    A(f"s_lshl_b32 {SO[0]}, s14, 12"); A(f"s_add_u32 {SO[0]}, {SO[0]}, {W_OP}"); A(f"s_lshl_b32 {SO[1]}, s14, 10"); A(f"s_add_u32 {SO[1]}, {SO[1]}, {W_FP}")
    A(f"s_lshl_b32 {SO[2]}, s14, 7"); A(f"s_add_u32 {SO[2]}, {SO[2]}, {W_HB}"); A(f"s_lshl_b32 {SO[3]}, s6, 7"); A(f"s_add_u32 {SO[3]}, {SO[3]}, {W_HS}")
    for r_ in (35, 39, 43): A(f"v_mov_b32 v{r_}, {TAG}")
    g.stamp(8)
    A("s_waitcnt lgkmcnt(0)")
    A("s_barrier")
    for k in range(4): A(f"ds_read_b128 v[{XF+4*k}:{XF+4*k+3}], v{aF} offset:{k*64}")
    A("s_waitcnt lgkmcnt(0)")
    def fin_pair(m):
        for e in range(4): A(f"v_cndmask_b32 v{12+e}, v{AO+8*m+e}, v{AO+8*m+4+e}, s[66:67]")
        pack24(g, 32 + 4 * m, 12)
        A(f"buffer_store_dwordx4 v[{32+4*m}:{35+4*m}], v{gW}, {WS}, {['s9', 's10', 's12', 's13'][m]} offen sc1")
    for m in range(4):
        for k in range(4):
            for tl in range(2): mfma(g, AO + 8 * m + 4 * tl, WF + 16 * (2 * m + tl) + 4 * k, XF + 4 * k, k == 0)
        if m >= 1: fin_pair(m - 1)
    g.nop(1)
    fin_pair(3)
    g.stamp(9)
    def red(so, nl, stage):
        rl = [f"buffer_load_dwordx4 v[{GD+4*k}:{GD+4*k+3}], v{gL16}, {WS}, {so} offen offset:{k*1024} sc1" for k in range(nl)]
        gather(g, rl, [GD + 4 * k + 3 for k in range(nl)], stage, sleep=cfg.ps)
        for k in range(nl): unpack24_d(g, GD + 4 * k)
        if nl == 4:
            for h in range(2):
                A(f"v_pk_add_f32 v[{GD+2*h}:{GD+2*h+1}], v[{GD+2*h}:{GD+2*h+1}], v[{GD+4+2*h}:{GD+5+2*h}]"); A(f"v_pk_add_f32 v[{GD+8+2*h}:{GD+9+2*h}], v[{GD+8+2*h}:{GD+9+2*h}], v[{GD+12+2*h}:{GD+13+2*h}]")
            for h in range(2): A(f"v_pk_add_f32 v[{GD+2*h}:{GD+2*h+1}], v[{GD+2*h}:{GD+2*h+1}], v[{GD+8+2*h}:{GD+9+2*h}]")
            g.nop(1)
        xrow_reduce(g, [GD, GD + 1, GD + 2, GD + 3], steps=("ror8", "p16", "p32"), tmp=12)
        A(f"v_cvt_pk_bf16_f32 v12, v{GD}, v{GD+1}"); A(f"v_cvt_pk_bf16_f32 v13, v{GD+2}, v{GD+3}")
        for p in range(2):
            A(f"v_lshlrev_b32 v{40+2*p}, 16, v{12+p}"); A(f"v_and_b32 v{41+2*p}, 0xffff0000, v{12+p}")
        for h in range(2): A(f"v_pk_add_f32 v[{40+2*h}:{41+2*h}], v[{40+2*h}:{41+2*h}], v[{56+2*h}:{57+2*h}]")
        if nl == 4: A("v_pk_mul_f32 v[44:45], v[40:41], v[40:41]")
        A("v_cvt_pk_bf16_f32 v48, v40, v41")
        if nl == 4: A("v_pk_fma_f32 v[44:45], v[42:43], v[42:43], v[44:45]")
        A("v_cvt_pk_bf16_f32 v49, v42, v43")
    g.sleep(cfg.d4)
    red(SO[0], 4, 3)
    A("v_add_f32 v50, v44, v45")
    g.setexec(0xff)
    A(f"buffer_store_dwordx4 v[48:51], v{gL16}, {WS}, {SO[2]} offen sc1")
    A("s_cmp_lg_u32 s3, 0"); A("s_cbranch_scc1 L_nost")
    hu_post(g, 1, 55, 12)
    g.lab("L_nost")
    g.full()
    for p in range(2):
        A(f"v_lshlrev_b32 v{56+2*p}, 16, v{48+p}"); A(f"v_and_b32 v{57+2*p}, 0xffff0000, v{48+p}")
    g.stamp(10)
    if not cfg.hu: g.sleep(cfg.d7)
    hu_wait(g, 2, 15, 12, 13, cfg.dc)
    red(SO[1], 1, 6)
    g.setexec(0xff)
    A(f"buffer_store_dwordx2 v[48:49], v{gOUT}, {XO}, s68 offen")
    A("s_mov_b64 exec, 1")
    A("s_cmp_lg_u32 s14, 0"); A("s_cbranch_scc1 L_done")
    A(f"v_mov_b32 v12, {TAG}"); A("v_mov_b32 v13, 0")
    A(f"buffer_store_dword v12, v13, {WS}, 0 offen sc1")
    A("s_branch L_done")

def role_f1(g):
    A = g.A; cfg = g.cfg
    STL = "" if cfg.local else "sc1"
    HF = 224
    g.lab("L_f1")
    A("s_movk_i32 s12, 7168"); A("v_mul_lo_u32 v22, v20, s12"); A(f"v_add_u32 v{pA}, v22, v21"); A(f"v_xor_b32 v{pB}, 64, v{pA}")
    srd(g, 44, 28, 7340032)
    A("s_mul_i32 s12, s4, 7"); A("s_add_u32 s12, s12, s7"); A("s_sub_u32 s12, s12, 8"); A("s_lshl_b32 s13, s12, 7"); A(f"s_mul_i32 s14, s3, {256*7168}"); A(f"s_add_u32 {sB}, s13, s14")
    P2 = [pA, pB, pA, pB]
    g.sleep(cfg.fsl)
    if cfg.fn1: dma_loop(g, SA, 8 * 7168, P2, cfg.fn1, cfg.fw1)
    dma_loop(g, SA, 8 * 7168, P2, 8 - cfg.fn1, cfg.fw2)
    A("v_mul_u32_u24 v22, 2080, v19"); A("v_lshrrev_b32 v27, 3, v0"); A(f"v_lshl_add_u32 v{aW}, v27, 3, v22"); A(f"v_add_u32 v{aW}, {ACT}, v{aW}")
    A(f"v_lshl_add_u32 v{aF}, v3, 4, v22"); A(f"v_add_u32 v{aF}, {ACT}, v{aF}")
    A("s_lshl_b32 s13, s3, 9"); A("v_lshlrev_b32 v22, 7, v3"); A(f"v_lshl_add_u32 v{gW}, v2, 4, v22"); A(f"v_add_u32 v{gW}, s13, v{gW}")
    A(f"s_lshl_b32 s9, s12, 11"); A(f"s_add_u32 s9, s9, {W_AB}"); A(f"s_add_u32 s10, s9, {BDELTA}")
    for i in range(4): A(f"s_mov_b32 {SO[i]}, {W_HB+8192*i}")
    A(f"v_add_u32 v{aTb}, 4096, v{gT16}")
    A("v_mov_b32 v12, 0x3f803f80"); A("v_mov_b32 v13, v12"); A("v_mov_b32 v14, v12"); A("v_mov_b32 v15, v12")
    A(f"s_mov_b32 s68, {W_HS}")
    A("s_lshl_b32 s13, s3, 6"); A(f"v_lshl_add_u32 v{aTb2}, v19, 3, s13"); A(f"v_add_u32 v{aTb2}, {STL_}, v{aTb2}")
    A("v_lshlrev_b32 v27, 3, v19"); A(f"v_add_u32 v27, {STL_}, v27")
    A(f"v_mov_b32 v46, {TAG}"); A(f"v_mov_b32 v47, {TAG}")
    hu_probe_issue(g, 1, 7, 40, 41)
    A("s_waitcnt vmcnt(0)")
    A("s_barrier")
    g.stamp(4)
    hl = [f"buffer_load_dwordx4 v[{GD+4*k}:{GD+4*k+3}], v{gT16 if k % 2 == 0 else aTb}, {WS}, {SO[k>>1]} offen sc1" for k in range(8)]
    def pre_1():
        for k in range(32):
            for q in range(2): tr(g, WF + 4 * k + 2 * q, aT if k < 16 else aT2, (k & 15) * 4096 + q * 512)
            if k >= 6:
                A("s_waitcnt lgkmcnt(12)"); mfma(g, AC + 4, WF + 4 * (k - 6), 12, k == 6)
        for k in range(26, 32):
            A(f"s_waitcnt lgkmcnt({2*(31-k)})"); mfma(g, AC + 4, WF + 4 * k, 12, False)
        g.stamp(10)
    staged(g, 1, 7, 40, 41, cfg.db, hl, pre_1, lambda iss: gather(g, hl, [GD + 4 * k + 3 for k in range(8)], 4, sleep=cfg.ps, issued=iss))
    for k in range(8): A(f"ds_write_b64 v{aW}, v[{GD+4*k}:{GD+4*k+1}] offset:{k*256}")
    g.stamp(11)
    A("s_waitcnt lgkmcnt(0)")
    A("s_barrier")
    for k in range(8): A(f"ds_read_b128 v[{HF+4*k}:{HF+4*k+3}], v{aF} offset:{k*64}")
    side = {}
    for k in range(8):
        side[k] = [f"v_dot2_f32_bf16 v40, v{GD+4*k}, v12, {'0' if k == 0 else 'v40'}", f"v_dot2_f32_bf16 v42, v{GD+4*k+1}, v12, {'0' if k == 0 else 'v42'}"]
        if k: side[k].append(f"v_add_f32 v41, v{GD+4*k+2}, {f'v{GD+2}' if k == 1 else 'v41'}")
    side.update({
        9: ["v_add_f32 v40, v40, v42"],
        10: ["v_add_f32_dpp v40, v40, v40 row_ror:8 row_mask:0xf bank_mask:0xf", "v_add_f32_dpp v41, v41, v41 row_ror:8 row_mask:0xf bank_mask:0xf"],
        11: ["v_mov_b32 v42, v40", "v_mov_b32 v43, v41"],
        12: ["v_permlane16_swap_b32 v40, v42", "v_permlane16_swap_b32 v41, v43"],
        13: ["v_pk_add_f32 v[40:41], v[40:41], v[42:43]"],
        14: ["v_mov_b32 v42, v40", "v_mov_b32 v43, v41"],
        15: ["v_permlane32_swap_b32 v40, v42", "v_permlane32_swap_b32 v41, v43"],
        16: ["v_pk_add_f32 v[40:41], v[40:41], v[42:43]"],
        17: ["s_mov_b32 exec_lo, 0xff", "s_mov_b32 exec_hi, 0", f"ds_write_b64 v{aTb2}, v[40:41]", "s_mov_b64 exec, -1"],
        20: ["s_barrier"] + [f"ds_read_b64 v[{48+2*w}:{49+2*w}], v27 offset:{w*64}" for w in range(4)],
        25: ["v_pk_add_f32 v[48:49], v[48:49], v[50:51]", "v_pk_add_f32 v[52:53], v[52:53], v[54:55]", "v_pk_add_f32 v[48:49], v[48:49], v[52:53]"],
        26: ["v_mul_f32 v48, 0x3a800000, v48", "v_mul_f32 v49, 0x3a800000, v49", "v_fma_f32 v49, -v48, v48, v49"],
        27: ["v_max_f32 v49, 0, v49", "v_cvt_pk_bf16_f32 v49, v49, v49", "v_lshlrev_b32 v49, 16, v49"],
        28: ["v_add_f32 v49, 0x3727c5ac, v49", "v_cvt_pk_bf16_f32 v49, v49, v49", "v_lshlrev_b32 v49, 16, v49"],
        29: ["v_sqrt_f32 v49, v49", "v_cvt_pk_bf16_f32 v48, v48, v48"],
        30: ["v_cvt_pk_bf16_f32 v49, v49, v49", "v_lshlrev_b32 v48, 16, v48", "v_lshlrev_b32 v49, 16, v49"],
        31: ["v_rcp_f32 v49, v49"],
    })
    seq = [("f", k) for k in range(8)]
    for k in range(32):
        need = seq.index(("f", k))
        if k == 20: need = max(need, seq.index(("w", 0)))
        if k == 25: need = max(need, seq.index(("s", 3)))
        A(f"s_waitcnt lgkmcnt({len(seq) - 1 - need})")
        mfma(g, AC, WF + 4 * k, HF + 4 * (k & 7), k == 0)
        if k + 8 < 32:
            A(f"ds_read_b128 v[{HF+4*(k&7)}:{HF+4*(k&7)+3}], v{aF} offset:{(k+8)*64}"); seq.append(("f", k + 8))
        for x_ in side.get(k, []): A(x_)
        if k == 17: seq.append(("w", 0))
        if k == 20: seq += [("s", w) for w in range(4)]
    g.nop(5)
    g.setexec(0x00ff00ff00ff00ff)
    for e in range(4): A(f"v_fma_f32 v{40+e}, -v48, v{AC+4+e}, v{AC+e}")
    for e in range(4): A(f"v_mul_f32 v{40+e}, v{40+e}, v49")
    for e in range(4): A(f"v_max_f32 v{40+e}, 0, v{40+e}")
    A("v_cvt_pk_bf16_f32 v44, v40, v41"); A("v_cvt_pk_bf16_f32 v45, v42, v43")
    A(f"buffer_store_dwordx4 v[44:47], v{gW}, {WS}, s9 offen {STL}")
    if cfg.local: A(f"buffer_store_dwordx4 v[44:47], v{gW}, {WS}, s10 offen sc1")
    g.stamp(12)
    A("s_branch L_done")

def role_attn(g):
    A = g.A; cfg = g.cfg
    STL = "" if cfg.local else "sc1"
    KF, VF, QF, SC, PV, GA = 64, 128, 192, 32, 208, 128
    PF, RS = 48, 56
    pV = [244, 245]; p2 = [4, 5]
    aK, aV, gQ, aQw, aVb, aMw, aMr, aPw, aPr, gAP = range(246, 256)
    gL16 = 18
    g.lab("L_attn")
    A("s_mov_b32 s6, s68")
    nk0 = cfg.nk0
    done = nk0
    while done < 16:
        lo = done & 3
        dma4(g, SB, 1024, pK, waits=cfg.kw - 1, lo=lo)
        done += 4 - lo
    srd(g, 44, 20, 32 << 20)
    A("v_lshlrev_b32 v22, 1, v3"); A("v_xor_b32 v22, v2, v22"); A("v_lshlrev_b32 v22, 4, v22"); A(f"v_lshl_add_u32 v{pV[0]}, v3, 8, v22"); A(f"v_xor_b32 v{pV[1]}, 128, v{pV[0]}")
    A(f"s_mov_b32 {sB}, s66"); A(f"s_add_u32 {sM}, {mW}, 0x10000")
    A("s_lshr_b32 s10, s7, 2"); A("s_lshl_b32 s10, s10, 16"); A("s_lshl_b32 s11, s4, 9"); A("s_add_u32 s10, s10, s11"); A(f"s_add_u32 {SO[0]}, s10, {W_QP}")
    for i in range(1, 4): A(f"s_add_u32 {SO[i]}, {SO[0]}, {i*262144}")
    A("v_lshrrev_b32 v22, 4, v0"); A("v_lshlrev_b32 v22, 12, v22"); A(f"v_lshl_add_u32 v{gQ}, v2, 4, v22")
    PVp = [pV[0], pV[1], pV[0], pV[1]]
    QD = 192
    ql = [f"buffer_load_dwordx4 v[{QD+8*k+4*h}:{QD+8*k+4*h+3}], v{gQ}, {WS}, {SO[k]} offen offset:{256*h} sc1" for k in range(4) for h in range(2)]
    for k in range(4):
        if k == cfg.qpos:
            for s in ql: A(s)
        dma4(g, SA, 1024, PVp, waits=cfg.vw - 1 + (8 if k >= cfg.qpos else 0))
        if k == 0:
            A("v_lshl_add_u32 v27, v25, 2, v23"); A("v_lshl_add_u32 v27, v27, 5, v24"); A("v_lshl_add_u32 v22, v3, 2, v23")
            A("s_lshl_b32 s13, s3, 6"); A("v_xor_b32 v27, s13, v27")
            A(f"v_lshl_add_u32 v{aV}, v22, 8, v27"); A(f"v_add_u32 v{aV}, 0x10000, v{aV}"); A(f"v_xor_b32 v{aVb}, 32, v{aV}")
            A("v_xor_b32 v22, v3, v2"); A("v_lshlrev_b32 v22, 4, v22"); A(f"v_lshl_add_u32 v{aK}, v2, 8, v22"); A(f"v_add_u32 v{aK}, {mW}, v{aK}")
            A("v_mul_u32_u24 v22, 288, v16"); A(f"v_lshl_add_u32 v{aQw}, v17, 3, v22"); A(f"v_add_u32 v{aQw}, {QL}, v{aQw}")
            A("v_mul_u32_u24 v22, 288, v19"); A(f"v_lshl_add_u32 v{aF}, v3, 4, v22"); A(f"v_add_u32 v{aF}, {QL}, v{aF}")
            A(f"v_lshlrev_b32 v22, 4, v19"); A(f"v_add_u32 v{aMr}, {CB+4096}, v22"); A("s_lshl_b32 s13, s3, 2"); A(f"v_add_u32 v{aMw}, s13, v{aMr}")
            A(f"v_lshl_add_u32 v22, v3, 7, v22"); A(f"v_add_u32 v{aPr}, {CB}, v22"); A("s_lshl_b32 s13, s3, 10"); A(f"v_add_u32 v{aPw}, s13, v{aPr}")
            A(f"v_lshlrev_b32 v{gL16}, 4, v1")
            A("s_lshl_b32 s13, s3, 1"); A("v_lshrrev_b32 v22, 3, v2"); A("v_add_u32 v22, s13, v22"); A("v_lshl_add_u32 v22, v22, 2, v3"); A("v_lshlrev_b32 v22, 4, v22"); A(f"v_lshl_add_u32 v{gAP}, v19, 9, v22")
            A("v_cmp_lt_u32 s[66:67], 7, v2")
            for kk in range(1, 4): A(f"v_xor_b32 v{36+kk}, {kk*64}, v{aK}")
            A(f"v_mov_b32 v{RS+3}, {TAG}"); A(f"v_mov_b32 v{RS+6}, {TAG}"); A(f"v_mov_b32 v{RS+7}, {TAG}")
            A("v_mov_b32 v28, 0x3fb8aa3b"); A("v_mov_b32 v29, v28")
            A(f"v_lshl_add_u32 v{p2[0]}, v20, 11, v21"); A(f"v_xor_b32 v{p2[1]}, 64, v{p2[0]}")
    if cfg.qpos >= 4:
        A(f"s_waitcnt vmcnt({cfg.qw})")
        for s in ql: A(s)
    newer = max(0, 4 - cfg.qpos) * 4
    A(f"s_waitcnt vmcnt({16+8})")
    for tl in range(4):
        for k in range(4): A(f"ds_read_b128 v[{KF+16*tl+4*k}:{KF+16*tl+4*k+3}], v{aK if k == 0 else 36+k} offset:{tl*4096}")
    srd(g, 48, 30, 7340032)
    A("s_lshl_b32 s12, s4, 2"); A("s_add_u32 s12, s12, s3"); A(f"s_mul_i32 s12, s12, {112*2048}"); A("s_lshl_b32 s13, s7, 7"); A(f"s_add_u32 {sB}, s12, s13")
    A(f"s_mul_i32 {sM}, s3, {14*1024}")
    g.stamp(11)
    gather(g, ql, [QD + 4 * j + 2 for j in range(8)] + [QD + 4 * j + 3 for j in range(8)], 0, issued=True, newer=newer)
    g.stamp(4)
    for h in range(2):
        A(f"v_pk_add_f32 v[{12+2*h}:{13+2*h}], v[{QD+4*h}:{QD+4*h+1}], v[{QD+8+4*h}:{QD+9+4*h}]"); A(f"v_pk_add_f32 v[{32+2*h}:{33+2*h}], v[{QD+16+4*h}:{QD+17+4*h}], v[{QD+24+4*h}:{QD+25+4*h}]")
    for h in range(2): A(f"v_pk_add_f32 v[{12+2*h}:{13+2*h}], v[{12+2*h}:{13+2*h}], v[{32+2*h}:{33+2*h}]")
    A("v_cvt_pk_bf16_f32 v12, v12, v13"); A("v_cvt_pk_bf16_f32 v13, v14, v15")
    A(f"ds_write_b64 v{aQw}, v[12:13]")
    A("s_mov_b32 s9, 0x3db504f3"); A("s_mov_b32 s10, 0x3fb8aa3b")
    A("s_waitcnt lgkmcnt(0)")
    A("s_barrier")
    for k in range(4): A(f"ds_read_b128 v[{QF+4*k}:{QF+4*k+3}], v{aF} offset:{k*64}")
    P2 = [p2[0], p2[1], p2[0], p2[1]]
    n2 = cfg.w2e
    for k in range(n2 // 4): dma4(g, SB, 8 * 2048, P2)
    for k in range(4):
        A(f"s_waitcnt lgkmcnt({3-k})")
        for tl in range(4): mfma(g, SC + 4 * tl, KF + 16 * tl + 4 * k, QF + 4 * k, k == 0)
    g.nop(5)
    E = 64
    for p in range(8): A(f"v_cvt_pk_bf16_f32 v{PF+p}, v{SC+2*p}, v{SC+2*p+1}")
    for p in range(8):
        A(f"v_lshlrev_b32 v{E+2*p}, 16, v{PF+p}"); A(f"v_and_b32 v{E+2*p+1}, 0xffff0000, v{PF+p}")
    for e in range(16): A(f"v_mul_f32 v{E+e}, s9, v{E+e}")
    for p in range(8): A(f"v_cvt_pk_bf16_f32 v{PF+p}, v{E+2*p}, v{E+2*p+1}")
    for p in range(8):
        A(f"v_lshlrev_b32 v{E+2*p}, 16, v{PF+p}"); A(f"v_and_b32 v{E+2*p+1}, 0xffff0000, v{PF+p}")
    for k in range(5): A(f"v_max3_f32 v{32+k}, v{E+3*k}, v{E+3*k+1}, v{E+3*k+2}")
    A(f"v_max3_f32 v32, v32, v33, v{E+15}"); A("v_max3_f32 v34, v34, v35, v36"); A("v_max_f32 v30, v32, v34")
    xrow_reduce(g, [30], op="v_max_f32", steps=("p16", "p32"))
    g.setexec(0xff)
    A(f"ds_write_b32 v{aMw}, v30")
    g.full()
    for p in range(8): A(f"v_pk_mul_f32 v[{E+2*p}:{E+2*p+1}], v[{E+2*p}:{E+2*p+1}], v[28:29]")
    A("s_waitcnt lgkmcnt(0)")
    A("s_barrier")
    A(f"ds_read_b128 v[32:35], v{aMr}")
    A("s_lshl_b32 s9, s6, 12"); A(f"s_add_u32 s9, s9, {W_AP}"); A("s_lshl_b32 s11, s6, 7"); A(f"s_add_u32 s11, s11, {W_AS}")
    A("s_waitcnt lgkmcnt(0)")
    A("v_max3_f32 v30, v32, v33, v34"); A("v_max_f32 v30, v30, v35"); A(f"v_mul_f32 v{RS+4}, s10, v30")
    for e in range(16): A(f"v_sub_f32 v{E+e}, v{E+e}, v{RS+4}")
    for e in range(16): A(f"v_exp_f32 v{E+e}, v{E+e}")
    for p in range(8): A(f"v_cvt_pk_bf16_f32 v{PF+p}, v{E+2*p}, v{E+2*p+1}")
    g.setexec(0x00ff00ff00ff00ff)
    A(f"ds_write_b128 v{aPw}, v[{PF}:{PF+3}]"); A(f"ds_write_b128 v{aPw}, v[{PF+4}:{PF+7}] offset:512")
    g.full()
    for p in range(4): A(f"v_pk_add_f32 v[{E+4*p}:{E+4*p+1}], v[{E+4*p}:{E+4*p+1}], v[{E+4*p+2}:{E+4*p+3}]")
    A(f"v_pk_add_f32 v[{E}:{E+1}], v[{E}:{E+1}], v[{E+4}:{E+5}]"); A(f"v_pk_add_f32 v[{E+8}:{E+9}], v[{E+8}:{E+9}], v[{E+12}:{E+13}]")
    A(f"v_pk_add_f32 v[{E}:{E+1}], v[{E}:{E+1}], v[{E+8}:{E+9}]"); A(f"v_add_f32 v31, v{E}, v{E+1}")
    xrow_reduce(g, [31], steps=("p16", "p32"))
    g.setexec(0xff)
    A(f"ds_write_b32 v{aMw}, v31 offset:128")
    g.full()
    g.stamp(5)
    PFR, V0, V1, AO = 192, 128, 160, 224
    A(f"s_waitcnt vmcnt({n2+8}) lgkmcnt(0)")
    A("s_barrier")
    for h in range(4):
        A(f"ds_read_b128 v[{PFR+8*h}:{PFR+8*h+3}], v{aPr} offset:{2*h*512}")
        for tl in range(2):
            for q in range(2): tr(g, V0 + 8 * h + 4 * tl + 2 * q, [aV, aVb][tl], 2 * h * 8192 + q * 4096)
    for h in range(4):
        A(f"s_waitcnt lgkmcnt({15-5*h})")
        for tl in range(2): mfma(g, AO + 4 * tl, V0 + 8 * h + 4 * tl, PFR + 8 * h, h == 0)
    for h in range(4): A(f"ds_read_b128 v[{PFR+8*h+4}:{PFR+8*h+7}], v{aPr} offset:{(2*h+1)*512}")
    A(f"ds_read_b128 v[32:35], v{aMr} offset:128")
    A(f"s_waitcnt vmcnt({n2})")
    g.stamp(10)
    A("s_barrier")
    for h in range(4):
        for tl in range(2):
            for q in range(2): tr(g, V1 + 8 * h + 4 * tl + 2 * q, [aV, aVb][tl], (2 * h + 1) * 8192 + q * 4096)
    for h in range(4):
        A(f"s_waitcnt lgkmcnt({12-4*h})")
        for tl in range(2): mfma(g, AO + 4 * tl, V1 + 8 * h + 4 * tl, PFR + 8 * h + 4, False)
        if h == 0: A("v_pk_add_f32 v[32:33], v[32:33], v[34:35]")
        if h == 1: A(f"v_add_f32 v{RS+5}, v32, v33")
    A("s_cmp_lg_u32 s3, 0"); A("s_cbranch_scc1 L_nst")
    g.setexec(0xff)
    A(f"buffer_store_dwordx4 v[{RS+4}:{RS+7}], v{gL16}, {WS}, s11 offen sc1")
    g.full()
    g.lab("L_nst")
    g.nop(6)
    for e in range(4): A(f"v_cndmask_b32 v{40+e}, v{AO+e}, v{AO+4+e}, s[66:67]")
    pack24(g, RS, 40)
    A(f"buffer_store_dwordx4 v[{RS}:{RS+3}], v{gAP}, {WS}, s9 offen sc1")
    g.stamp(6)
    A("s_cmp_lg_u32 s3, 0"); A("s_cbranch_scc1 L_nohu0")
    hu_post(g, 0, RS + 7, 12)
    g.lab("L_nohu0")
    g.sleep(cfg.w2sl)
    for k in range(n2 // 4, 3): dma4(g, SB, 8 * 2048, P2)
    dma4(g, SB, 8 * 2048, P2, hi=2)
    A("v_mul_u32_u24 v22, 928, v19"); A(f"v_add_u32 v22, {CB}, v22"); A("v_lshrrev_b32 v27, 3, v0"); A(f"v_lshl_add_u32 v{aW}, v27, 3, v22"); A(f"v_lshl_add_u32 v{aF}, v3, 4, v22")
    A("s_lshl_b32 s13, s3, 12"); A("v_lshlrev_b32 v22, 10, v3"); A(f"v_lshl_add_u32 v{gW}, v2, 4, v22"); A(f"v_add_u32 v{gW}, s13, v{gW}")
    A(f"s_mul_i32 {SO[0]}, s4, {112*128}"); A(f"s_add_u32 {SO[0]}, {SO[0]}, {W_AB}")
    for i in range(1, 3): A(f"s_add_u32 {SO[i]}, {SO[0]}, {i*4096}")
    A(f"s_add_u32 {SO[3]}, {SO[0]}, {3*4096}"); A("s_cmp_ge_u32 s3, 2"); A(f"s_cselect_b32 {SO[3]}, {SO[0]}, {SO[3]}")
    A("s_lshl_b32 s9, s7, 14"); A("s_lshl_b32 s10, s4, 7"); A("s_add_u32 s9, s9, s10"); A(f"s_add_u32 s9, s9, {W_FP}")
    A(f"v_mov_b32 v47, {TAG}")
    A("s_waitcnt vmcnt(0)")
    A("s_barrier")
    g.stamp(12)
    for k in range(14):
        for q in range(2): tr(g, 64 + 4 * k + 2 * q, aT, k * 4096 + q * 512)
    AD = 192
    al = [f"buffer_load_dwordx4 v[{AD+4*k}:{AD+4*k+3}], v{gT16}, {WS}, {SO[k]} offen sc1" for k in range(4)]
    g.sleep(cfg.d6)
    gather(g, al, [AD + 4 * k + 2 for k in range(4)] + [AD + 4 * k + 3 for k in range(4)], 5, toggle=SO, sleep=cfg.pl)
    for k in range(3): A(f"ds_write_b64 v{aW}, v[{AD+4*k}:{AD+4*k+1}] offset:{k*256}")
    A("s_cmp_ge_u32 s3, 2"); A("s_cbranch_scc1 L_a3"); A(f"ds_write_b64 v{aW}, v[{AD+12}:{AD+13}] offset:768"); g.lab("L_a3")
    g.stamp(13)
    A("s_waitcnt lgkmcnt(0)")
    A("s_barrier")
    for k in range(14): A(f"ds_read_b128 v[{128+4*k}:{131+4*k}], v{aF} offset:{k*64}")
    for k in range(14):
        A(f"s_waitcnt lgkmcnt({13-k})")
        mfma(g, 32, 64 + 4 * k, 128 + 4 * k, k == 0)
    g.setexec(0x00ff00ff00ff00ff)
    g.nop(6)
    pack24(g, 44, 32)
    A(f"buffer_store_dwordx4 v[44:47], v{gW}, {WS}, s9 offen sc1")
    g.full()
    A("s_cmp_lg_u32 s3, 0"); A("s_cbranch_scc1 L_nohu")
    hu_post(g, 2, 47, 12)
    g.lab("L_nohu")
    g.stamp(14)

def parse(argv=None):
    ap = argparse.ArgumentParser()
    ap.add_argument("-o", default="sequential_preLN__sliding_block_cached__dense_activation_relu__decode.s")
    D = dict(stamps=0, nt=1, pref=1, local=1, wc=1, wr=2, fb=300, early=1, nopoll=0, hu=1, hun=400, dumpo=0, huearly=1, swap=0,
             nk0=8, kwin=2, kw=10, vw=10, qpos=2, qw=8, w2e=0, w2sl=0,
             osl=40, on1=0, ow1=2, ow2=10, fsl=70, fn1=0, fw1=2, fw2=8,
             d2=3, d4=14, d6=0, d7=60, dt=12, da=6, db=6, dc=6, ps=4, pl=1)
    for k, d in D.items(): ap.add_argument(f"--{k}", type=int, default=d)
    return ap.parse_args(argv)

if __name__ == "__main__":
    cfg = parse()
    open(cfg.o, "w").write(gen(cfg))
```

```python
import sys, argparse
sys.path.insert(0, "bench")
from asmlib import wrap

RQ = 98304
SCR = 131072
ACT = SCR
STL_ = SCR + 8 * 2080
QL = SCR + 8 * 544
CB = QL + 8 * 288
LDS_END = CB + 4 * 8 * 528
assert STL_ + 256 <= LDS_END <= 163840

W_QP = 0x100000
W_AP = 0x200000
W_AS = 0x280000
W_OB = 0x290000
W_HB = 0x2C0000
W_HS = 0x2D0000
W_HU = 0x2E0000
W_OP = 0x500000
W_AB = 0x340000
W_FP = 0x380000
BDELTA = 0x400000
STAMP_OFF = 128 << 20

WS, XO, SA, SB = "s[36:39]", "s[40:43]", "s[44:47]", "s[48:51]"
TAG = "s8"
PK0, PK1, PK2, UP0, UP1, PCNT = "s52", "s53", "s54", "s55", "s56", "s57"
SO = ["s58", "s59", "s60", "s61"]
mW, sB, sM, sI = "s62", "s63", "s64", "s65"

class G:
    def __init__(self, cfg):
        self.L = []; self.cfg = cfg; self.nlab = 0
    def A(self, s): self.L.append("    " + s)
    def lab(self, s): self.L.append(s + ":")
    def newlab(self, p="L"):
        self.nlab += 1; return f"{p}_{self.nlab}"
    def nop(self, n):
        while n > 0:
            k = min(n, 16); self.A(f"s_nop {k-1}"); n -= k
    def setexec(self, m):
        lo, hi = m & 0xffffffff, m >> 32
        if hi == 0 and lo <= 64: self.A(f"s_mov_b64 exec, {lo}")
        else:
            self.A(f"s_mov_b32 exec_lo, {hex(lo)}"); self.A(f"s_mov_b32 exec_hi, {hex(hi)}")
    def full(self): self.A("s_mov_b64 exec, -1")
    def stamp(self, idx):
        if self.cfg.stamps: self.A(f"s_memrealtime s[{70+2*idx}:{71+2*idx}]")
    def sleep(self, n):
        while n > 0:
            k = min(n, 127); self.A(f"s_sleep {k}"); n -= k

def srd(g, d, p, n):
    if d != p: g.A(f"s_mov_b32 s{d}, s{p}"); g.A(f"s_mov_b32 s{d+1}, s{p+1}")
    g.A(f"s_mov_b32 s{d+2}, {n}"); g.A(f"s_mov_b32 s{d+3}, 0x20000")

def dma4(g, sr, step, pats, waits=None, lo=0, hi=4, adv=True):
    nt = " nt" if g.cfg.nt else ""
    g.A(f"s_mov_b32 m0, {sM}")
    for jj in range(lo, hi):
        w = None if waits is None else (waits if isinstance(waits, int) else waits[jj])
        if w is not None: g.A(f"s_waitcnt vmcnt({w})")
        off = jj * (step - 1024)
        if off: g.A(f"s_add_u32 s15, {sB}, {off}")
        elif w is None and jj == lo: g.A("s_nop 0")
        g.A(f"buffer_load_dwordx4 v{pats[jj]}, {sr}, {'s15' if off else sB} offen offset:{jj*1024}{nt} lds")
    if adv: g.A(f"s_add_u32 {sB}, {sB}, {4*step}"); g.A(f"s_add_u32 {sM}, {sM}, 4096")

def dma_loop(g, sr, step, pats, ngroups, win):
    l = g.newlab("L_dl")
    g.A(f"s_mov_b32 {sI}, 0")
    g.lab(l)
    dma4(g, sr, step, pats, waits=win - 1)
    g.A(f"s_add_u32 {sI}, {sI}, 1"); g.A(f"s_cmp_lt_u32 {sI}, {ngroups}"); g.A(f"s_cbranch_scc1 {l}")

def tagcheck(g, tagregs, tmp=10):
    g.A(f"v_xor_b32 v{tmp}, {TAG}, v{tagregs[0]}")
    for t in tagregs[1:]: g.A(f"v_bitop3_b32 v{tmp}, v{tmp}, v{t}, {TAG} bitop3:0xF6")
    g.A(f"v_cmp_ne_u32 vcc, 0, v{tmp}")

def gather(g, loads, tagregs, stage, issued=False, newer=0, late=None, toggle=(), sleep=0):
    l = g.newlab("L_g"); e = g.newlab("L_ge")
    if g.cfg.nopoll:
        g.A(f"s_waitcnt vmcnt({newer})"); return
    if not issued:
        for s in loads: g.A(s)
    g.A(f"s_mov_b32 {PCNT}, 0")
    g.A(f"s_waitcnt vmcnt({newer})")
    tagcheck(g, tagregs)
    g.A(f"s_cbranch_vccz {e}")
    g.lab(l)
    g.sleep(sleep)
    for s in loads: g.A(s)
    g.A(f"s_add_u32 {PCNT}, {PCNT}, 1")
    g.A("s_waitcnt vmcnt(0)")
    tagcheck(g, tagregs)
    g.A(f"s_cbranch_vccz {e}")
    if g.cfg.local and (late or toggle):
        sk = g.newlab("L_gl")
        g.A(f"s_cmp_lt_u32 {PCNT}, {g.cfg.fb}"); g.A(f"s_cbranch_scc1 {sk}")
        for t in toggle: g.A(f"s_xor_b32 {t}, {t}, {BDELTA}")
        if late:
            g.A(f"s_cmp_lg_u32 {PCNT}, {g.cfg.fb}"); g.A(f"s_cbranch_scc1 {sk}")
            late()
        g.lab(sk)
    g.A(f"s_cmp_lt_u32 {PCNT}, 40000")
    g.A(f"s_cbranch_scc1 {l}")
    g.lab(e)
    if g.cfg.stamps: g.A(f"s_min_u32 {PCNT}, {PCNT}, 15"); g.A(f"s_lshl_b32 {PCNT}, {PCNT}, {4*stage}"); g.A(f"s_add_u32 s69, s69, {PCNT}")

def hu_wait(g, which, nmask, addr, dst, delay, backoff=0):
    if not g.cfg.hu or g.cfg.nopoll: return
    l = g.newlab("L_hu"); e = g.newlab("L_hue")
    g.A(f"v_and_b32 v{addr}, {nmask}, v1"); g.A(f"v_lshlrev_b32 v{addr}, 4, v{addr}")
    g.A("s_lshl_b32 s15, s4, 8"); g.A(f"s_add_u32 s15, s15, {W_HU + which*2048}")
    g.A(f"s_mov_b32 {PCNT}, 0")
    g.lab(l)
    g.sleep(backoff)
    g.A(f"buffer_load_dword v{dst}, v{addr}, {WS}, s15 offen sc1")
    g.A(f"s_add_u32 {PCNT}, {PCNT}, 1")
    g.A("s_waitcnt vmcnt(0)")
    g.A(f"v_cmp_ne_u32 vcc, {TAG}, v{dst}")
    g.A(f"s_cbranch_vccz {e}")
    g.A(f"s_cmp_lt_u32 {PCNT}, {g.cfg.hun}"); g.A(f"s_cbranch_scc1 {l}")
    g.lab(e)
    g.sleep(delay)

def hu_probe_issue(g, which, nmask, addr, dst):
    if not (g.cfg.hu and g.cfg.huearly) or g.cfg.nopoll: return
    g.A(f"v_and_b32 v{addr}, {nmask}, v1"); g.A(f"v_lshlrev_b32 v{addr}, 4, v{addr}")
    g.A("s_lshl_b32 s15, s4, 8"); g.A(f"s_add_u32 s15, s15, {W_HU + which*2048}")
    g.A(f"buffer_load_dword v{dst}, v{addr}, {WS}, s15 offen sc1")

def staged(g, which, nmask, addr, dst, delay, loads, preload, fin):
    if not (g.cfg.hu and g.cfg.huearly) or g.cfg.nopoll:
        preload(); hu_wait(g, which, nmask, addr, dst, delay); fin(False); return
    late = g.newlab("L_st"); go = g.newlab("L_sg")
    g.A(f"v_cmp_ne_u32 vcc, {TAG}, v{dst}")
    g.A(f"s_cbranch_vccnz {late}")
    for x_ in loads: g.A(x_)
    g.A("s_mov_b32 s67, 1") if False else None
    g.lab(late)
    g.A("s_mov_b64 s[88:89], vcc") if False else None
    g.A("s_cselect_b32 s0, 0, 0") if False else None
    g.A("s_mov_b64 s[0:1], vcc")
    preload()
    g.A("s_cmp_eq_u64 s[0:1], 0"); g.A(f"s_cbranch_scc1 {go}")
    hu_wait(g, which, nmask, addr, dst, delay)
    for x_ in loads: g.A(x_)
    g.lab(go)
    fin(True)

def hu_post(g, which, tagreg, tmp):
    if not g.cfg.hu: return
    g.A("s_lshl_b32 s15, s4, 4"); g.A("s_add_u32 s15, s15, s7"); g.A("s_lshl_b32 s15, s15, 4"); g.A(f"s_add_u32 s15, s15, {W_HU + which*2048}")
    g.A(f"v_mov_b32 v{tmp}, 0"); g.A("s_mov_b64 exec, 1")
    g.A(f"buffer_store_dword v{tagreg}, v{tmp}, {WS}, s15 offen")
    g.full()

def hu_post0(g, which, tagreg, tmp):
    if not (g.cfg.hu and g.cfg.gate): return
    sk = g.newlab("L_hp")
    g.A("s_cmp_lg_u32 s3, 0"); g.A(f"s_cbranch_scc1 {sk}")
    hu_post(g, which, tagreg, tmp)
    g.lab(sk)

def pack24(g, d, a):
    g.A(f"v_perm_b32 v{d}, v{a}, v{a+3}, {PK0}"); g.A(f"v_perm_b32 v{d+1}, v{a+1}, v{a+3}, {PK1}"); g.A(f"v_perm_b32 v{d+2}, v{a+2}, v{a+3}, {PK2}")
def unpack24_d(g, b):
    g.A(f"v_perm_b32 v{b+3}, v{b+1}, v{b}, {UP0}"); g.A(f"v_perm_b32 v{b+3}, v{b+2}, v{b+3}, {UP1}")
def bf16_round(g, d, s):
    g.A(f"v_cvt_pk_bf16_f32 v{d}, v{s}, v{s}"); g.A(f"v_lshlrev_b32 v{d}, 16, v{d}")
def xrow_reduce(g, regs, op="v_add_f32", steps=("ror8", "p16", "p32"), tmp=11):
    n = len(regs)
    for st in steps:
        if st.startswith("ror"):
            g.nop(max(0, 3 - n))
            for r in regs: g.A(f"{op}_dpp v{r}, v{r}, v{r} row_ror:{st[3:]} row_mask:0xf bank_mask:0xf")
        else:
            ins = "v_permlane16_swap_b32" if st == "p16" else "v_permlane32_swap_b32"
            for k, r in enumerate(regs): g.A(f"v_mov_b32 v{tmp+k}, v{r}")
            g.nop(max(0, 3 - n))
            for k, r in enumerate(regs): g.A(f"{ins} v{r}, v{tmp+k}")
            g.nop(max(0, 2 - n))
            for k, r in enumerate(regs): g.A(f"{op} v{r}, v{r}, v{tmp+k}")
def mfma(g, d, a, b, first):
    g.A(f"v_mfma_f32_16x16x32_bf16 v[{d}:{d+3}], v[{a}:{a+3}], v[{b}:{b+3}], {'0' if first else f'v[{d}:{d+3}]'}")
def tr(g, d, addr, off):
    g.A(f"ds_read_b64_tr_b16 v[{d}:{d+1}], v{addr} offset:{off}")

pA, pB, aT, aT2, aF, gT16 = 4, 5, 6, 7, 8, 9
gW, aW, aTb, aTb2 = 28, 29, 30, 31
WF, AC, GD = 64, 32, 192
pK = [240, 241, 242, 243]

def gen(cfg):
    g = G(cfg); A = g.A
    g.stamp(0)
    A("s_load_dwordx16 s[16:31], s[0:1], 0")
    A("s_load_dwordx4 s[32:35], s[0:1], 64")
    A("s_load_dwordx2 s[36:37], s[0:1], 80")
    A("s_cmp_ge_u32 s2, 256"); A("s_cbranch_scc1 L_end")
    A("v_lshrrev_b32 v7, 6, v0"); A("v_and_b32 v1, 63, v0")
    A("s_lshr_b32 s5, s2, 3")
    if cfg.pref:
        A("s_getpc_b64 s[10:11]"); g.lab("L_begin")
        A("s_lshl_b32 s9, s5, 8"); A("v_add_u32 v10, s9, v0"); A("v_and_b32 v10, 1023, v10"); A("v_lshlrev_b32 v10, 4, v10")
        A("s_mov_b32 s9, L_end - L_begin - 64"); A("v_min_u32 v10, s9, v10")
        A("global_load_dwordx4 v[12:15], v10, s[10:11]")
    A("v_readfirstlane_b32 s3, v7")
    A("s_and_b32 s4, s2, 7"); A("s_and_b32 s7, s5, 15"); A("s_lshl_b32 s6, s4, 5"); A("s_add_u32 s6, s6, s5")
    if cfg.swap: A("s_xor_b32 s5, s5, 16")
    A("v_and_b32 v2, 15, v1"); A("v_lshrrev_b32 v3, 4, v1")
    A("v_lshrrev_b32 v16, 5, v0"); A("v_and_b32 v17, 31, v0")
    A("v_lshlrev_b32 v18, 11, v16"); A("v_lshl_add_u32 v18, v17, 4, v18")
    A("s_lshr_b32 s9, s6, 6")
    A("v_lshrrev_b32 v20, 3, v1"); A("v_and_b32 v19, 7, v1")
    A("v_bfe_u32 v21, v1, 4, 1"); A("v_lshlrev_b32 v21, 1, v21"); A("v_xor_b32 v21, v19, v21"); A("v_lshlrev_b32 v21, 4, v21")
    A(f"v_lshl_add_u32 v{pA}, v20, 13, v21"); A(f"v_xor_b32 v{pB}, 64, v{pA}")
    A("s_lshl_b32 s12, s9, 2"); A("s_add_u32 s12, s12, s3"); A("s_lshl_b32 s12, s12, 19"); A("s_and_b32 s13, s6, 63"); A("s_lshl_b32 s13, s13, 7"); A(f"s_add_u32 {sB}, s12, s13")
    A(f"s_lshl_b32 {sM}, s3, 13"); A(f"s_add_u32 {sM}, {sM}, {RQ}")
    A("s_lshl_b32 s13, s9, 9"); A("s_add_u32 s14, s13, 512"); A("s_and_b32 s14, s14, 0x600"); A("s_xor_b32 s12, s13, 1024"); A("s_xor_b32 s9, s14, 1024")
    A("s_waitcnt lgkmcnt(0)")
    srd(g, 40, 16, 16384)
    for i, s in enumerate(["s13", "s14", "s12", "s9"]): A(f"buffer_load_dwordx4 v[{GD+4*i}:{GD+4*i+3}], v18, {XO}, {s} offen")
    srd(g, 44, 22, 8 << 20)
    A("s_load_dword s8, s[36:37], 0")
    for k in range(2): dma4(g, SA, 8 * 8192, [pA, pB, pA, pB])
    g.stamp(1)
    srd(g, 36, 36, 256 << 20); srd(g, 48, 18, 32 << 20)
    A(f"s_mov_b32 {PK0}, 0x07060501"); A(f"s_mov_b32 {PK1}, 0x07060502"); A(f"s_mov_b32 {PK2}, 0x07060503"); A(f"s_mov_b32 {UP0}, 0x0C04000C"); A(f"s_mov_b32 {UP1}, 0x0402010C")
    if cfg.stamps: A("s_mov_b32 s69, 0")
    A("v_mul_u32_u24 v22, 544, v16"); A(f"v_lshl_add_u32 v{aW}, v17, 4, v22"); A(f"v_add_u32 v{aW}, {ACT}, v{aW}")
    A("v_mul_u32_u24 v22, 544, v19"); A(f"v_lshl_add_u32 v{aF}, v3, 4, v22"); A(f"v_add_u32 v{aF}, {ACT}, v{aF}")
    A("v_bfe_u32 v23, v1, 2, 2"); A("v_and_b32 v24, 3, v1"); A("v_lshlrev_b32 v24, 3, v24"); A("v_and_b32 v25, 1, v3"); A("v_lshl_add_u32 v26, v3, 3, v23")
    A("v_lshrrev_b32 v27, 1, v23"); A("v_lshl_add_u32 v27, v25, 1, v27"); A("v_xor_b32 v27, s3, v27"); A("v_lshl_add_u32 v27, v27, 5, v24"); A(f"v_lshl_add_u32 v{aT}, v26, 7, v27")
    A(f"v_add_u32 v{aT2}, 0x10000, v{aT}")
    A(f"v_lshlrev_b32 v{gT16}, 4, v0")
    A("s_lshl_b32 s13, s3, 6"); A("v_lshlrev_b32 v27, 9, v2"); A(f"v_lshl_add_u32 v{gW}, v3, 4, v27"); A(f"v_add_u32 v{gW}, s13, v{gW}")
    A("v_xor_b32 v27, v2, v3"); A("v_lshlrev_b32 v27, 4, v27"); A(f"v_lshl_add_u32 v{pK[0]}, v3, 8, v27")
    for k in range(1, 4): A(f"v_xor_b32 v{pK[k]}, {k*64}, v{pK[0]}")
    A("s_lshl_b32 s68, s4, 4"); A("s_add_u32 s68, s68, s7")
    A("s_lshr_b32 s12, s68, 2"); A("s_lshl_b32 s12, s12, 20"); A("s_and_b32 s13, s68, 3"); A("s_lshl_b32 s13, s13, 16"); A("s_add_u32 s12, s12, s13")
    A(f"s_lshl_b32 {mW}, s3, 14"); A(f"s_add_u32 s12, s12, {mW}"); A("s_add_u32 s66, s12, 0xC0000")
    A(f"s_mov_b32 {sB}, s66"); A(f"s_mov_b32 {sM}, {mW}")
    A("s_lshl_b32 s9, s6, 12"); A(f"s_add_u32 s9, s9, {W_QP}")
    A("s_waitcnt lgkmcnt(0)")
    A("s_mul_i32 s8, s8, 0x9E3779B1"); A("s_add_u32 s8, s8, 0x7F4A7C15")
    U = 96
    A("s_waitcnt vmcnt(8)")
    g.stamp(5)
    for d in range(16):
        A(f"v_lshlrev_b32 v{U+2*d}, 16, v{GD+d}"); A(f"v_and_b32 v{U+2*d+1}, 0xffff0000, v{GD+d}")
    A(f"v_pk_add_f32 v[40:41], v[{U}:{U+1}], v[{U+2}:{U+3}]"); A(f"v_pk_add_f32 v[42:43], v[{U+4}:{U+5}], v[{U+6}:{U+7}]")
    for d in range(4, 16): A(f"v_pk_add_f32 v[{40+2*(d&1)}:{41+2*(d&1)}], v[{40+2*(d&1)}:{41+2*(d&1)}], v[{U+2*d}:{U+2*d+1}]")
    A("v_pk_add_f32 v[40:41], v[40:41], v[42:43]"); A("v_add_f32 v40, v40, v41")
    xrow_reduce(g, [40], steps=("ror8", "ror4", "ror2", "ror1", "p16"))
    A("v_mul_f32 v40, 0xba800000, v40"); A("v_mov_b32 v41, v40")
    for d in range(16):
        r = WF + 2 * (d & 7)
        A(f"v_pk_add_f32 v[{r}:{r+1}], v[{U+2*d}:{U+2*d+1}], v[40:41]")
        a = 44 + 2 * (d & 1)
        if d < 2: A(f"v_pk_mul_f32 v[{a}:{a+1}], v[{r}:{r+1}], v[{r}:{r+1}]")
        else: A(f"v_pk_fma_f32 v[{a}:{a+1}], v[{r}:{r+1}], v[{r}:{r+1}], v[{a}:{a+1}]")
    A("v_pk_add_f32 v[44:45], v[44:45], v[46:47]"); A("v_add_f32 v44, v44, v45")
    xrow_reduce(g, [44], steps=("ror8", "ror4", "ror2", "ror1", "p16"))
    A("v_mul_f32 v44, 0x3a800000, v44")
    bf16_round(g, 40, 40); bf16_round(g, 44, 44)
    A("v_add_f32 v44, 0x3727c5ac, v44"); bf16_round(g, 44, 44)
    A("v_sqrt_f32 v44, v44"); A("v_mov_b32 v41, v40")
    for d in range(4): A(f"v_pk_add_f32 v[{U+2*d}:{U+2*d+1}], v[{U+2*d}:{U+2*d+1}], v[40:41]")
    bf16_round(g, 44, 44)
    A("v_rcp_f32 v46, v44"); A("v_sub_f32 v44, 0, v44"); A("v_mov_b32 v45, v44")
    for d in range(4): A(f"v_cvt_pk_bf16_f32 v{48+d}, v{U+2*d}, v{U+2*d+1}")
    A("v_mov_b32 v47, v46")
    for d in range(4):
        A(f"v_lshlrev_b32 v{U+2*d}, 16, v{48+d}"); A(f"v_and_b32 v{U+2*d+1}, 0xffff0000, v{48+d}")
    for d in range(4): A(f"v_pk_mul_f32 v[{U+16+2*d}:{U+17+2*d}], v[{U+2*d}:{U+2*d+1}], v[46:47]")
    for d in range(4): A(f"v_pk_fma_f32 v[{U+2*d}:{U+2*d+1}], v[{U+16+2*d}:{U+17+2*d}], v[44:45], v[{U+2*d}:{U+2*d+1}]")
    for d in range(4): A(f"v_pk_fma_f32 v[{U+16+2*d}:{U+17+2*d}], v[{U+2*d}:{U+2*d+1}], v[46:47], v[{U+16+2*d}:{U+17+2*d}]")
    for d in range(4): A(f"v_cvt_pk_bf16_f32 v{48+d}, v{U+16+2*d}, v{U+17+2*d}")
    A(f"ds_write_b128 v{aW}, v[48:51]")
    g.stamp(2)
    A(f"v_mov_b32 v14, {TAG}"); A(f"v_mov_b32 v15, {TAG}"); A(f"v_mov_b32 v42, {TAG}"); A(f"v_mov_b32 v43, {TAG}")
    nk0 = cfg.nk0
    A("s_cmp_lt_u32 s5, 16"); A("s_cbranch_scc1 L_nok")
    done = 0
    while done < nk0:
        n = min(4, nk0 - done)
        dma4(g, SB, 1024, pK, waits=[max(0, 7 - min(7, done + jj + cfg.kwin)) + done + jj for jj in range(4)], hi=n, adv=(n == 4))
        done += n
    A(f"s_waitcnt vmcnt({nk0}) lgkmcnt(0)"); A("s_branch L_qb")
    g.lab("L_nok")
    A("s_waitcnt vmcnt(0) lgkmcnt(0)")
    g.lab("L_qb")
    A("s_barrier")
    XFq = 192
    for k in range(8):
        A(f"ds_read_b128 v[{XFq+4*k}:{XFq+4*k+3}], v{aF} offset:{k*64}")
        for q in range(2): tr(g, WF + 4 * k + 2 * q, aT2, RQ - 65536 + k * 4096 + q * 512)
        if k >= 4:
            A("s_waitcnt lgkmcnt(12)"); mfma(g, AC, WF + 4 * (k - 4), XFq + 4 * (k - 4), k == 4)
    for k in range(4, 8):
        A(f"s_waitcnt lgkmcnt({3*(7-k)})"); mfma(g, AC, WF + 4 * k, XFq + 4 * k, False)
    g.setexec(0x00ff00ff00ff00ff)
    g.nop(6)
    A(f"v_mov_b32 v12, v{AC}"); A(f"v_mov_b32 v13, v{AC+1}"); A(f"v_mov_b32 v40, v{AC+2}"); A(f"v_mov_b32 v41, v{AC+3}")
    A(f"buffer_store_dwordx4 v[12:15], v{gW}, {WS}, s9 offen sc1")
    A(f"buffer_store_dwordx4 v[40:43], v{gW}, {WS}, s9 offen offset:256 sc1")
    g.full()
    g.stamp(3)
    A("s_cmp_eq_u32 s5, 15"); A("s_cbranch_scc1 L_done")
    A("s_barrier")
    A("s_cmp_ge_u32 s5, 16"); A("s_cbranch_scc1 L_attn")
    A(f"s_lshl_b32 {sM}, s3, 15")
    A("s_cmp_ge_u32 s5, 8"); A("s_cbranch_scc1 L_f1")
    role_o(g)
    role_f1(g)
    role_attn(g)
    g.lab("L_done")
    g.stamp(15)
    if cfg.stamps == 2:
        g.full()
        A("s_cmp_ge_u32 s5, 8"); A("s_cbranch_scc1 L_end")
        A("s_waitcnt lgkmcnt(0)"); A("s_not_b32 s70, s70")
        for i in range(16): A(f"v_writelane_b32 v10, s{70+2*i}, {i}")
        srd(g, 44, 34, 256); A("v_lshlrev_b32 v11, 2, v1"); g.setexec(0xffff)
        A("buffer_atomic_umax v10, v11, s[44:47], 0 offen sc1")
    if cfg.stamps == 1:
        g.full()
        A("s_waitcnt lgkmcnt(0)"); A("s_mov_b32 s72, s69")
        for i in range(16): A(f"v_writelane_b32 v10, s{70+2*i}, {i}")
        A("s_lshl_b32 s9, s2, 4"); A("s_add_u32 s9, s9, s3"); A("s_lshl_b32 s9, s9, 6"); A(f"s_add_u32 s9, s9, {STAMP_OFF}")
        A("v_lshlrev_b32 v11, 2, v1"); g.setexec(0xffff)
        A(f"buffer_store_dword v10, v11, {WS}, s9 offen")
    g.lab("L_end"); A("s_endpgm")
    return wrap("\n".join(g.L), 256, 256, LDS_END, vgpr=256, sgpr=102)

def role_o(g):
    A = g.A; cfg = g.cfg
    gOUT, gL16, gP, gS = 62, 63, 18, 27
    PO = [240, 241, 242, 243]
    AO, XF = 208, 192
    A("s_lshr_b32 s12, s7, 1"); A("s_lshl_b32 s11, s4, 2"); A("s_add_u32 s12, s12, s11"); A("s_and_b32 s13, s7, 1")
    for k in range(4): A(f"v_xor_b32 v{PO[k]}, {2*k}, v1");
    for k in range(4): A(f"v_lshlrev_b32 v{PO[k]}, 4, v{PO[k]}")
    srd(g, 44, 24, 8 << 20)
    A("s_lshl_b32 s6, s4, 3"); A("s_add_u32 s6, s6, s7"); A("s_lshl_b32 s14, s6, 2"); A("s_add_u32 s14, s14, s3")
    A(f"v_lshlrev_b32 v{gOUT}, 11, v19"); A("s_lshl_b32 s68, s14, 3")
    A(f"buffer_load_dwordx2 v[60:61], v{gOUT}, {XO}, s68 offen")
    A("s_lshl_b32 s10, s12, 2"); A("s_add_u32 s10, s10, s3"); A("s_lshl_b32 s10, s10, 16"); A("s_lshl_b32 s11, s13, 10"); A(f"s_add_u32 {sB}, s10, s11")
    if not cfg.gate: g.sleep(cfg.osl)
    w0 = [cfg.ow1 - 1 if k < cfg.on1 else cfg.ow2 - 1 for k in range(8)]
    dma4(g, SA, 2048, PO, waits=w0[:4]); dma4(g, SA, 2048, PO, waits=w0[4:])
    A(f"s_mov_b32 {sI}, 1")
    l = g.newlab("L_dl")
    g.lab(l)
    for k in range(4): A(f"v_xor_b32 v{PO[k]}, 128, v{PO[k]}")
    dma4(g, SA, 2048, PO, waits=cfg.ow2 - 1); dma4(g, SA, 2048, PO, waits=cfg.ow2 - 1)
    A(f"s_add_u32 {sI}, {sI}, 1"); A(f"s_cmp_lt_u32 {sI}, 4"); A(f"s_cbranch_scc1 {l}")
    A("v_lshl_add_u32 v22, v25, 2, v23"); A("v_lshl_add_u32 v22, v22, 5, v24"); A("s_lshl_b32 s11, s3, 8")
    A(f"v_lshl_add_u32 v{aT}, v26, 10, v22"); A(f"v_add_u32 v{aT}, s11, v{aT}")
    A("v_mul_u32_u24 v22, 288, v16"); A(f"v_lshl_add_u32 v{aW}, v17, 3, v22"); A(f"v_add_u32 v{aW}, {ACT}, v{aW}")
    A("v_mul_u32_u24 v22, 288, v19"); A(f"v_lshl_add_u32 v{aF}, v3, 4, v22"); A(f"v_add_u32 v{aF}, {ACT}, v{aF}")
    A("s_lshl_b32 s11, s3, 3"); A("v_lshrrev_b32 v22, 3, v2"); A("v_add_u32 v22, s11, v22"); A("v_lshl_add_u32 v22, v22, 2, v3"); A("v_lshlrev_b32 v22, 12, v22"); A(f"v_lshl_add_u32 v{gW}, v19, 4, v22")
    A("v_lshlrev_b32 v22, 16, v16"); A(f"v_lshl_add_u32 v{gP}, v17, 4, v22")
    A("v_lshlrev_b32 v22, 11, v16"); A(f"v_lshl_add_u32 v{gS}, v24, 4, v22")
    A("v_cmp_lt_u32 s[66:67], 7, v2")
    for r_ in (47, 50, 51, 54, 55): A(f"v_mov_b32 v{r_}, {TAG}")
    A(f"v_lshlrev_b32 v{gL16}, 4, v1")
    A("s_lshl_b32 s10, s3, 6"); A(f"v_lshl_add_u32 v{aTb2}, v19, 3, s10"); A(f"v_add_u32 v{aTb2}, {STL_}, v{aTb2}")
    A("s_lshr_b32 s10, s12, 3"); A("s_and_b32 s11, s12, 7")
    A(f"s_lshl_b32 {SO[0]}, s10, 14"); A("s_lshl_b32 s9, s11, 9"); A(f"s_add_u32 {SO[0]}, {SO[0]}, s9"); A(f"s_add_u32 {SO[0]}, {SO[0]}, {W_AP}")
    for i in range(1, 4): A(f"s_add_u32 {SO[i]}, {SO[0]}, {i*4096}")
    A("s_lshl_b32 s10, s10, 9"); A("s_lshl_b32 s11, s11, 4"); A("s_add_u32 s11, s11, s10"); A(f"s_add_u32 s11, s11, {W_AS}")
    A("s_lshl_b32 s9, s13, 19"); A("s_lshl_b32 s10, s12, 7"); A("s_add_u32 s9, s9, s10"); A(f"s_add_u32 s9, s9, {W_OP}")
    A(f"s_add_u32 s10, s9, 32768"); A("s_add_u32 s12, s9, 65536"); A("s_add_u32 s13, s9, 98304")
    hu_probe_issue(g, 0, 15, 40, 41)
    A("s_waitcnt vmcnt(0)")
    A("s_barrier")
    g.stamp(4)
    hu_post0(g, 5, 55, 12)
    GA = 192
    cl = [f"buffer_load_dwordx4 v[{GA+16}:{GA+19}], v{gS}, {WS}, s11 offen sc1"] + [f"buffer_load_dwordx4 v[{GA+4*k}:{GA+4*k+3}], v{gP}, {WS}, {SO[k]} offen sc1" for k in range(4)]
    def pre_o():
        for tt in range(8):
            a0, a1 = 12 + 2 * (tt & 1), 13 + 2 * (tt & 1)
            A(f"v_xor_b32 v{a0}, {tt*32}, v{aT}"); A(f"v_add_u32 v{a1}, 0x10000, v{a0}")
            for k in range(4):
                for q in range(2): tr(g, WF + 16 * tt + 4 * k + 2 * q, a0 if k < 2 else a1, (k & 1) * 32768 + q * 4096)
        srd(g, 40, 32, 16384)
        for p in range(2):
            A(f"v_lshlrev_b32 v{56+2*p}, 16, v{60+p}"); A(f"v_and_b32 v{57+2*p}, 0xffff0000, v{60+p}")
    staged(g, 0, 15, 40, 41, cfg.da, cl, pre_o, lambda iss: gather(g, cl, [GA + 18, GA + 19] + [GA + 4 * k + 3 for k in range(4)], 2, sleep=cfg.ps, issued=iss))
    M, Lr = GA + 16, GA + 17
    A(f"v_max_f32_dpp v36, v{M}, v{M} quad_perm:[1,0,3,2] row_mask:0xf bank_mask:0xf")
    unpack24_d(g, GA)
    A("v_max_f32_dpp v36, v36, v36 quad_perm:[2,3,0,1] row_mask:0xf bank_mask:0xf")
    A(f"v_sub_f32 v37, v{M}, v36"); A("v_exp_f32 v37, v37")
    unpack24_d(g, GA + 4)
    A(f"v_mul_f32 v38, v37, v{Lr}")
    unpack24_d(g, GA + 8)
    A("v_add_f32_dpp v38, v38, v38 quad_perm:[1,0,3,2] row_mask:0xf bank_mask:0xf")
    unpack24_d(g, GA + 12)
    A("v_add_f32_dpp v38, v38, v38 quad_perm:[2,3,0,1] row_mask:0xf bank_mask:0xf")
    for e in range(4): A(f"v_mul_f32_dpp v{40+e}, v37, v{GA+e} quad_perm:[0,0,0,0] row_mask:0xf bank_mask:0xf")
    A("v_rcp_f32 v38, v38")
    for k in range(1, 4):
        for e in range(4): A(f"v_fmac_f32_dpp v{40+e}, v37, v{GA+4*k+e} quad_perm:[{k},{k},{k},{k}] row_mask:0xf bank_mask:0xf")
    for e in range(4): A(f"v_mul_f32 v{40+e}, v{40+e}, v38")
    A("v_cvt_pk_bf16_f32 v32, v40, v41"); A("v_cvt_pk_bf16_f32 v33, v42, v43")
    A(f"ds_write_b64 v{aW}, v[32:33]")
    if cfg.dumpo:
        A(f"v_mov_b32 v34, {TAG}"); A(f"v_mov_b32 v35, {TAG}"); A("s_lshr_b32 s15, s6, 1"); A("s_lshl_b32 s15, s15, 12"); A(f"s_add_u32 s15, s15, {W_OB}")
        A(f"buffer_store_dwordx4 v[32:35], v{gT16}, {WS}, s15 offen sc1")
    A(f"s_lshl_b32 {SO[0]}, s14, 12"); A(f"s_add_u32 {SO[0]}, {SO[0]}, {W_OP}"); A(f"s_lshl_b32 {SO[1]}, s14, 10"); A(f"s_add_u32 {SO[1]}, {SO[1]}, {W_FP}")
    A(f"s_lshl_b32 {SO[2]}, s14, 7"); A(f"s_add_u32 {SO[2]}, {SO[2]}, {W_HB}"); A(f"s_lshl_b32 {SO[3]}, s6, 7"); A(f"s_add_u32 {SO[3]}, {SO[3]}, {W_HS}")
    for r_ in (35, 39, 43): A(f"v_mov_b32 v{r_}, {TAG}")
    g.stamp(8)
    A("s_waitcnt lgkmcnt(0)")
    A("s_barrier")
    for k in range(4): A(f"ds_read_b128 v[{XF+4*k}:{XF+4*k+3}], v{aF} offset:{k*64}")
    A("s_waitcnt lgkmcnt(0)")
    def fin_pair(m):
        for e in range(4): A(f"v_cndmask_b32 v{12+e}, v{AO+8*m+e}, v{AO+8*m+4+e}, s[66:67]")
        pack24(g, 32 + 4 * m, 12)
        A(f"buffer_store_dwordx4 v[{32+4*m}:{35+4*m}], v{gW}, {WS}, {['s9', 's10', 's12', 's13'][m]} offen sc1")
    for m in range(4):
        for k in range(4):
            for tl in range(2): mfma(g, AO + 8 * m + 4 * tl, WF + 16 * (2 * m + tl) + 4 * k, XF + 4 * k, k == 0)
        if m >= 1: fin_pair(m - 1)
    g.nop(1)
    fin_pair(3)
    g.stamp(9)
    def red(so, nl, stage):
        rl = [f"buffer_load_dwordx4 v[{GD+4*k}:{GD+4*k+3}], v{gL16}, {WS}, {so} offen offset:{k*1024} sc1" for k in range(nl)]
        gather(g, rl, [GD + 4 * k + 3 for k in range(nl)], stage, sleep=cfg.ps)
        for k in range(nl): unpack24_d(g, GD + 4 * k)
        if nl == 4:
            for h in range(2):
                A(f"v_pk_add_f32 v[{GD+2*h}:{GD+2*h+1}], v[{GD+2*h}:{GD+2*h+1}], v[{GD+4+2*h}:{GD+5+2*h}]"); A(f"v_pk_add_f32 v[{GD+8+2*h}:{GD+9+2*h}], v[{GD+8+2*h}:{GD+9+2*h}], v[{GD+12+2*h}:{GD+13+2*h}]")
            for h in range(2): A(f"v_pk_add_f32 v[{GD+2*h}:{GD+2*h+1}], v[{GD+2*h}:{GD+2*h+1}], v[{GD+8+2*h}:{GD+9+2*h}]")
            g.nop(1)
        xrow_reduce(g, [GD, GD + 1, GD + 2, GD + 3], steps=("ror8", "p16", "p32"), tmp=12)
        A(f"v_cvt_pk_bf16_f32 v12, v{GD}, v{GD+1}"); A(f"v_cvt_pk_bf16_f32 v13, v{GD+2}, v{GD+3}")
        for p in range(2):
            A(f"v_lshlrev_b32 v{40+2*p}, 16, v{12+p}"); A(f"v_and_b32 v{41+2*p}, 0xffff0000, v{12+p}")
        for h in range(2): A(f"v_pk_add_f32 v[{40+2*h}:{41+2*h}], v[{40+2*h}:{41+2*h}], v[{56+2*h}:{57+2*h}]")
        if nl == 4: A("v_pk_mul_f32 v[44:45], v[40:41], v[40:41]")
        A("v_cvt_pk_bf16_f32 v48, v40, v41")
        if nl == 4: A("v_pk_fma_f32 v[44:45], v[42:43], v[42:43], v[44:45]")
        A("v_cvt_pk_bf16_f32 v49, v42, v43")
    g.sleep(cfg.d4)
    red(SO[0], 4, 3)
    A("v_add_f32 v50, v44, v45")
    g.setexec(0xff)
    A(f"buffer_store_dwordx4 v[48:51], v{gL16}, {WS}, {SO[2]} offen sc1")
    A("s_cmp_lg_u32 s3, 0"); A("s_cbranch_scc1 L_nost")
    hu_post(g, 1, 55, 12)
    g.lab("L_nost")
    g.full()
    for p in range(2):
        A(f"v_lshlrev_b32 v{56+2*p}, 16, v{48+p}"); A(f"v_and_b32 v{57+2*p}, 0xffff0000, v{48+p}")
    g.stamp(10)
    if not cfg.hu: g.sleep(cfg.d7)
    hu_wait(g, 2, 15, 12, 13, cfg.dc)
    red(SO[1], 1, 6)
    g.setexec(0xff)
    A(f"buffer_store_dwordx2 v[48:49], v{gOUT}, {XO}, s68 offen")
    A("s_mov_b64 exec, 1")
    A("s_cmp_lg_u32 s14, 0"); A("s_cbranch_scc1 L_done")
    A(f"v_mov_b32 v12, {TAG}"); A("v_mov_b32 v13, 0")
    A(f"buffer_store_dword v12, v13, {WS}, 0 offen sc1")
    A("s_branch L_done")

def role_f1(g):
    A = g.A; cfg = g.cfg
    STL = "" if cfg.local else "sc1"
    HF = 224
    g.lab("L_f1")
    A("s_movk_i32 s12, 7168"); A("v_mul_lo_u32 v22, v20, s12"); A(f"v_add_u32 v{pA}, v22, v21"); A(f"v_xor_b32 v{pB}, 64, v{pA}")
    srd(g, 44, 28, 7340032)
    A("s_mul_i32 s12, s4, 7"); A("s_add_u32 s12, s12, s7"); A("s_sub_u32 s12, s12, 8"); A("s_lshl_b32 s13, s12, 7"); A(f"s_mul_i32 s14, s3, {256*7168}"); A(f"s_add_u32 {sB}, s13, s14")
    P2 = [pA, pB, pA, pB]
    if cfg.gate: hu_wait(g, 4, cfg.gmask, 40, 41, 0, backoff=2)
    else: g.sleep(cfg.fsl)
    w0 = [cfg.fw1 - 1 if k < cfg.fn1 else cfg.fw2 - 1 for k in range(8)]
    dma4(g, SA, 8 * 7168, P2, waits=w0[:4]); dma4(g, SA, 8 * 7168, P2, waits=w0[4:])
    dma_loop(g, SA, 8 * 7168, P2, 6, cfg.fw2)
    A("v_mul_u32_u24 v22, 2080, v19"); A("v_lshrrev_b32 v27, 3, v0"); A(f"v_lshl_add_u32 v{aW}, v27, 3, v22"); A(f"v_add_u32 v{aW}, {ACT}, v{aW}")
    A(f"v_lshl_add_u32 v{aF}, v3, 4, v22"); A(f"v_add_u32 v{aF}, {ACT}, v{aF}")
    A("s_lshl_b32 s13, s3, 9"); A("v_lshlrev_b32 v22, 7, v3"); A(f"v_lshl_add_u32 v{gW}, v2, 4, v22"); A(f"v_add_u32 v{gW}, s13, v{gW}")
    A(f"s_lshl_b32 s9, s12, 11"); A(f"s_add_u32 s9, s9, {W_AB}"); A(f"s_add_u32 s10, s9, {BDELTA}")
    for i in range(4): A(f"s_mov_b32 {SO[i]}, {W_HB+8192*i}")
    A(f"v_add_u32 v{aTb}, 4096, v{gT16}")
    A("v_mov_b32 v12, 0x3f803f80"); A("v_mov_b32 v13, v12"); A("v_mov_b32 v14, v12"); A("v_mov_b32 v15, v12")
    A(f"s_mov_b32 s68, {W_HS}")
    A("s_lshl_b32 s13, s3, 6"); A(f"v_lshl_add_u32 v{aTb2}, v19, 3, s13"); A(f"v_add_u32 v{aTb2}, {STL_}, v{aTb2}")
    A("v_lshlrev_b32 v27, 3, v19"); A(f"v_add_u32 v27, {STL_}, v27")
    A(f"v_mov_b32 v46, {TAG}"); A(f"v_mov_b32 v47, {TAG}")
    hu_probe_issue(g, 1, 7, 40, 41)
    A("s_waitcnt vmcnt(0)")
    A("s_barrier")
    g.stamp(4)
    hl = [f"buffer_load_dwordx4 v[{GD+4*k}:{GD+4*k+3}], v{gT16 if k % 2 == 0 else aTb}, {WS}, {SO[k>>1]} offen sc1" for k in range(8)]
    def pre_1():
        for k in range(32):
            for q in range(2): tr(g, WF + 4 * k + 2 * q, aT if k < 16 else aT2, (k & 15) * 4096 + q * 512)
            if k >= 6:
                A("s_waitcnt lgkmcnt(12)"); mfma(g, AC + 4, WF + 4 * (k - 6), 12, k == 6)
        for k in range(26, 32):
            A(f"s_waitcnt lgkmcnt({2*(31-k)})"); mfma(g, AC + 4, WF + 4 * k, 12, False)
        g.stamp(10)
    staged(g, 1, 7, 40, 41, cfg.db, hl, pre_1, lambda iss: gather(g, hl, [GD + 4 * k + 3 for k in range(8)], 4, sleep=cfg.ps, issued=iss))
    for k in range(8): A(f"ds_write_b64 v{aW}, v[{GD+4*k}:{GD+4*k+1}] offset:{k*256}")
    g.stamp(11)
    A("s_waitcnt lgkmcnt(0)")
    A("s_barrier")
    for k in range(8): A(f"ds_read_b128 v[{HF+4*k}:{HF+4*k+3}], v{aF} offset:{k*64}")
    side = {}
    for k in range(8):
        side[k] = [f"v_dot2_f32_bf16 v40, v{GD+4*k}, v12, {'0' if k == 0 else 'v40'}", f"v_dot2_f32_bf16 v42, v{GD+4*k+1}, v12, {'0' if k == 0 else 'v42'}"]
        if k: side[k].append(f"v_add_f32 v41, v{GD+4*k+2}, {f'v{GD+2}' if k == 1 else 'v41'}")
    side.update({
        9: ["v_add_f32 v40, v40, v42"],
        10: ["v_add_f32_dpp v40, v40, v40 row_ror:8 row_mask:0xf bank_mask:0xf", "v_add_f32_dpp v41, v41, v41 row_ror:8 row_mask:0xf bank_mask:0xf"],
        11: ["v_mov_b32 v42, v40", "v_mov_b32 v43, v41"],
        12: ["v_permlane16_swap_b32 v40, v42", "v_permlane16_swap_b32 v41, v43"],
        13: ["v_pk_add_f32 v[40:41], v[40:41], v[42:43]"],
        14: ["v_mov_b32 v42, v40", "v_mov_b32 v43, v41"],
        15: ["v_permlane32_swap_b32 v40, v42", "v_permlane32_swap_b32 v41, v43"],
        16: ["v_pk_add_f32 v[40:41], v[40:41], v[42:43]"],
        17: ["s_mov_b32 exec_lo, 0xff", "s_mov_b32 exec_hi, 0", f"ds_write_b64 v{aTb2}, v[40:41]", "s_mov_b64 exec, -1"],
        20: ["s_barrier"] + [f"ds_read_b64 v[{48+2*w}:{49+2*w}], v27 offset:{w*64}" for w in range(4)],
        25: ["v_pk_add_f32 v[48:49], v[48:49], v[50:51]", "v_pk_add_f32 v[52:53], v[52:53], v[54:55]", "v_pk_add_f32 v[48:49], v[48:49], v[52:53]"],
        26: ["v_mul_f32 v48, 0x3a800000, v48", "v_mul_f32 v49, 0x3a800000, v49", "v_fma_f32 v49, -v48, v48, v49"],
        27: ["v_max_f32 v49, 0, v49", "v_cvt_pk_bf16_f32 v49, v49, v49", "v_lshlrev_b32 v49, 16, v49"],
        28: ["v_add_f32 v49, 0x3727c5ac, v49", "v_cvt_pk_bf16_f32 v49, v49, v49", "v_lshlrev_b32 v49, 16, v49"],
        29: ["v_sqrt_f32 v49, v49", "v_cvt_pk_bf16_f32 v48, v48, v48"],
        30: ["v_cvt_pk_bf16_f32 v49, v49, v49", "v_lshlrev_b32 v48, 16, v48", "v_lshlrev_b32 v49, 16, v49"],
        31: ["v_rcp_f32 v49, v49"],
    })
    seq = [("f", k) for k in range(8)]
    for k in range(32):
        need = seq.index(("f", k))
        if k == 20: need = max(need, seq.index(("w", 0)))
        if k == 25: need = max(need, seq.index(("s", 3)))
        A(f"s_waitcnt lgkmcnt({len(seq) - 1 - need})")
        mfma(g, AC, WF + 4 * k, HF + 4 * (k & 7), k == 0)
        if k + 8 < 32:
            A(f"ds_read_b128 v[{HF+4*(k&7)}:{HF+4*(k&7)+3}], v{aF} offset:{(k+8)*64}"); seq.append(("f", k + 8))
        for x_ in side.get(k, []): A(x_)
        if k == 17: seq.append(("w", 0))
        if k == 20: seq += [("s", w) for w in range(4)]
    g.nop(5)
    g.setexec(0x00ff00ff00ff00ff)
    for e in range(4): A(f"v_fma_f32 v{40+e}, -v48, v{AC+4+e}, v{AC+e}")
    for e in range(4): A(f"v_mul_f32 v{40+e}, v{40+e}, v49")
    for e in range(4): A(f"v_max_f32 v{40+e}, 0, v{40+e}")
    A("v_cvt_pk_bf16_f32 v44, v40, v41"); A("v_cvt_pk_bf16_f32 v45, v42, v43")
    A(f"buffer_store_dwordx4 v[44:47], v{gW}, {WS}, s9 offen {STL}")
    if cfg.local: A(f"buffer_store_dwordx4 v[44:47], v{gW}, {WS}, s10 offen sc1")
    g.stamp(12)
    A("s_branch L_done")

def role_attn(g):
    A = g.A; cfg = g.cfg
    STL = "" if cfg.local else "sc1"
    KF, VF, QF, SC, PV, GA = 64, 128, 192, 32, 208, 128
    PF, RS = 48, 56
    pV = [244, 245]; p2 = [4, 5]
    aK, aV, gQ, aQw, aVb, aMw, aMr, aPw, aPr, gAP = range(246, 256)
    gL16 = 18
    g.lab("L_attn")
    A("s_mov_b32 s6, s68")
    nk0 = cfg.nk0
    done = nk0
    npost = 0
    while done < 16:
        lo = done & 3
        dma4(g, SB, 1024, pK, waits=cfg.kw - 1, lo=lo)
        done += 4 - lo
        if done == cfg.g4: hu_post0(g, 4, 43, 12)
    srd(g, 44, 20, 32 << 20)
    A("v_lshlrev_b32 v22, 1, v3"); A("v_xor_b32 v22, v2, v22"); A("v_lshlrev_b32 v22, 4, v22"); A(f"v_lshl_add_u32 v{pV[0]}, v3, 8, v22"); A(f"v_xor_b32 v{pV[1]}, 128, v{pV[0]}")
    A(f"s_mov_b32 {sB}, s66"); A(f"s_add_u32 {sM}, {mW}, 0x10000")
    A("s_lshr_b32 s10, s7, 2"); A("s_lshl_b32 s10, s10, 16"); A("s_lshl_b32 s11, s4, 9"); A("s_add_u32 s10, s10, s11"); A(f"s_add_u32 {SO[0]}, s10, {W_QP}")
    for i in range(1, 4): A(f"s_add_u32 {SO[i]}, {SO[0]}, {i*262144}")
    A("v_lshrrev_b32 v22, 4, v0"); A("v_lshlrev_b32 v22, 12, v22"); A(f"v_lshl_add_u32 v{gQ}, v2, 4, v22")
    PVp = [pV[0], pV[1], pV[0], pV[1]]
    QD = 192
    ql = [f"buffer_load_dwordx4 v[{QD+8*k+4*h}:{QD+8*k+4*h+3}], v{gQ}, {WS}, {SO[k]} offen offset:{256*h} sc1" for k in range(4) for h in range(2)]
    for k in range(4):
        if k == cfg.qpos:
            for s in ql: A(s)
        dma4(g, SA, 1024, PVp, waits=cfg.vw - 1 + (8 if k >= cfg.qpos else 0))
        if 20 + 4 * k == cfg.g4: hu_post0(g, 4, 43, 12)
        if k == 0:
            A("v_lshl_add_u32 v27, v25, 2, v23"); A("v_lshl_add_u32 v27, v27, 5, v24"); A("v_lshl_add_u32 v22, v3, 2, v23")
            A("s_lshl_b32 s13, s3, 6"); A("v_xor_b32 v27, s13, v27")
            A(f"v_lshl_add_u32 v{aV}, v22, 8, v27"); A(f"v_add_u32 v{aV}, 0x10000, v{aV}"); A(f"v_xor_b32 v{aVb}, 32, v{aV}")
            A("v_xor_b32 v22, v3, v2"); A("v_lshlrev_b32 v22, 4, v22"); A(f"v_lshl_add_u32 v{aK}, v2, 8, v22"); A(f"v_add_u32 v{aK}, {mW}, v{aK}")
            A("v_mul_u32_u24 v22, 288, v16"); A(f"v_lshl_add_u32 v{aQw}, v17, 3, v22"); A(f"v_add_u32 v{aQw}, {QL}, v{aQw}")
            A("v_mul_u32_u24 v22, 288, v19"); A(f"v_lshl_add_u32 v{aF}, v3, 4, v22"); A(f"v_add_u32 v{aF}, {QL}, v{aF}")
            A(f"v_lshlrev_b32 v22, 4, v19"); A(f"v_add_u32 v{aMr}, {CB+4096}, v22"); A("s_lshl_b32 s13, s3, 2"); A(f"v_add_u32 v{aMw}, s13, v{aMr}")
            A(f"v_lshl_add_u32 v22, v3, 7, v22"); A(f"v_add_u32 v{aPr}, {CB}, v22"); A("s_lshl_b32 s13, s3, 10"); A(f"v_add_u32 v{aPw}, s13, v{aPr}")
            A(f"v_lshlrev_b32 v{gL16}, 4, v1")
            A("s_lshl_b32 s13, s3, 1"); A("v_lshrrev_b32 v22, 3, v2"); A("v_add_u32 v22, s13, v22"); A("v_lshl_add_u32 v22, v22, 2, v3"); A("v_lshlrev_b32 v22, 4, v22"); A(f"v_lshl_add_u32 v{gAP}, v19, 9, v22")
            A("v_cmp_lt_u32 s[66:67], 7, v2")
            for kk in range(1, 4): A(f"v_xor_b32 v{36+kk}, {kk*64}, v{aK}")
            A(f"v_mov_b32 v{RS+3}, {TAG}"); A(f"v_mov_b32 v{RS+6}, {TAG}"); A(f"v_mov_b32 v{RS+7}, {TAG}")
            A("v_mov_b32 v28, 0x3fb8aa3b"); A("v_mov_b32 v29, v28")
            A(f"v_lshl_add_u32 v{p2[0]}, v20, 11, v21"); A(f"v_xor_b32 v{p2[1]}, 64, v{p2[0]}")
    if cfg.qpos >= 4:
        A(f"s_waitcnt vmcnt({cfg.qw})")
        for s in ql: A(s)
    newer = max(0, 4 - cfg.qpos) * 4
    A(f"s_waitcnt vmcnt({16+8})")
    for tl in range(4):
        for k in range(4): A(f"ds_read_b128 v[{KF+16*tl+4*k}:{KF+16*tl+4*k+3}], v{aK if k == 0 else 36+k} offset:{tl*4096}")
    srd(g, 48, 30, 7340032)
    A("s_lshl_b32 s12, s4, 2"); A("s_add_u32 s12, s12, s3"); A(f"s_mul_i32 s12, s12, {112*2048}"); A("s_lshl_b32 s13, s7, 7"); A(f"s_add_u32 {sB}, s12, s13")
    A(f"s_mul_i32 {sM}, s3, {14*1024}")
    g.stamp(11)
    gather(g, ql, [QD + 4 * j + 2 for j in range(8)] + [QD + 4 * j + 3 for j in range(8)], 0, issued=True, newer=newer)
    g.stamp(4)
    for h in range(2):
        A(f"v_pk_add_f32 v[{12+2*h}:{13+2*h}], v[{QD+4*h}:{QD+4*h+1}], v[{QD+8+4*h}:{QD+9+4*h}]"); A(f"v_pk_add_f32 v[{32+2*h}:{33+2*h}], v[{QD+16+4*h}:{QD+17+4*h}], v[{QD+24+4*h}:{QD+25+4*h}]")
    for h in range(2): A(f"v_pk_add_f32 v[{12+2*h}:{13+2*h}], v[{12+2*h}:{13+2*h}], v[{32+2*h}:{33+2*h}]")
    A("v_cvt_pk_bf16_f32 v12, v12, v13"); A("v_cvt_pk_bf16_f32 v13, v14, v15")
    A(f"ds_write_b64 v{aQw}, v[12:13]")
    A("s_mov_b32 s9, 0x3db504f3"); A("s_mov_b32 s10, 0x3fb8aa3b")
    A("s_waitcnt lgkmcnt(0)")
    A("s_barrier")
    for k in range(4): A(f"ds_read_b128 v[{QF+4*k}:{QF+4*k+3}], v{aF} offset:{k*64}")
    P2 = [p2[0], p2[1], p2[0], p2[1]]
    n2 = cfg.w2e
    for k in range(n2 // 4): dma4(g, SB, 8 * 2048, P2)
    for k in range(4):
        A(f"s_waitcnt lgkmcnt({3-k})")
        for tl in range(4): mfma(g, SC + 4 * tl, KF + 16 * tl + 4 * k, QF + 4 * k, k == 0)
    g.nop(5)
    E = 64
    for p in range(8): A(f"v_cvt_pk_bf16_f32 v{PF+p}, v{SC+2*p}, v{SC+2*p+1}")
    for p in range(8):
        A(f"v_lshlrev_b32 v{E+2*p}, 16, v{PF+p}"); A(f"v_and_b32 v{E+2*p+1}, 0xffff0000, v{PF+p}")
    for e in range(16): A(f"v_mul_f32 v{E+e}, s9, v{E+e}")
    for p in range(8): A(f"v_cvt_pk_bf16_f32 v{PF+p}, v{E+2*p}, v{E+2*p+1}")
    for p in range(8):
        A(f"v_lshlrev_b32 v{E+2*p}, 16, v{PF+p}"); A(f"v_and_b32 v{E+2*p+1}, 0xffff0000, v{PF+p}")
    for k in range(5): A(f"v_max3_f32 v{32+k}, v{E+3*k}, v{E+3*k+1}, v{E+3*k+2}")
    A(f"v_max3_f32 v32, v32, v33, v{E+15}"); A("v_max3_f32 v34, v34, v35, v36"); A("v_max_f32 v30, v32, v34")
    xrow_reduce(g, [30], op="v_max_f32", steps=("p16", "p32"))
    g.setexec(0xff)
    A(f"ds_write_b32 v{aMw}, v30")
    g.full()
    for p in range(8): A(f"v_pk_mul_f32 v[{E+2*p}:{E+2*p+1}], v[{E+2*p}:{E+2*p+1}], v[28:29]")
    A("s_waitcnt lgkmcnt(0)")
    A("s_barrier")
    A(f"ds_read_b128 v[32:35], v{aMr}")
    A("s_lshl_b32 s9, s6, 12"); A(f"s_add_u32 s9, s9, {W_AP}"); A("s_lshl_b32 s11, s6, 7"); A(f"s_add_u32 s11, s11, {W_AS}")
    A("s_waitcnt lgkmcnt(0)")
    A("v_max3_f32 v30, v32, v33, v34"); A("v_max_f32 v30, v30, v35"); A(f"v_mul_f32 v{RS+4}, s10, v30")
    for e in range(16): A(f"v_sub_f32 v{E+e}, v{E+e}, v{RS+4}")
    for e in range(16): A(f"v_exp_f32 v{E+e}, v{E+e}")
    for p in range(8): A(f"v_cvt_pk_bf16_f32 v{PF+p}, v{E+2*p}, v{E+2*p+1}")
    g.setexec(0x00ff00ff00ff00ff)
    A(f"ds_write_b128 v{aPw}, v[{PF}:{PF+3}]"); A(f"ds_write_b128 v{aPw}, v[{PF+4}:{PF+7}] offset:512")
    g.full()
    for p in range(4): A(f"v_pk_add_f32 v[{E+4*p}:{E+4*p+1}], v[{E+4*p}:{E+4*p+1}], v[{E+4*p+2}:{E+4*p+3}]")
    A(f"v_pk_add_f32 v[{E}:{E+1}], v[{E}:{E+1}], v[{E+4}:{E+5}]"); A(f"v_pk_add_f32 v[{E+8}:{E+9}], v[{E+8}:{E+9}], v[{E+12}:{E+13}]")
    A(f"v_pk_add_f32 v[{E}:{E+1}], v[{E}:{E+1}], v[{E+8}:{E+9}]"); A(f"v_add_f32 v31, v{E}, v{E+1}")
    xrow_reduce(g, [31], steps=("p16", "p32"))
    g.setexec(0xff)
    A(f"ds_write_b32 v{aMw}, v31 offset:128")
    g.full()
    g.stamp(5)
    PFR, V0, V1, AO = 192, 128, 160, 224
    A(f"s_waitcnt vmcnt({n2+8}) lgkmcnt(0)")
    A("s_barrier")
    for h in range(4):
        A(f"ds_read_b128 v[{PFR+8*h}:{PFR+8*h+3}], v{aPr} offset:{2*h*512}")
        for tl in range(2):
            for q in range(2): tr(g, V0 + 8 * h + 4 * tl + 2 * q, [aV, aVb][tl], 2 * h * 8192 + q * 4096)
    for h in range(4):
        A(f"s_waitcnt lgkmcnt({15-5*h})")
        for tl in range(2): mfma(g, AO + 4 * tl, V0 + 8 * h + 4 * tl, PFR + 8 * h, h == 0)
    for h in range(4): A(f"ds_read_b128 v[{PFR+8*h+4}:{PFR+8*h+7}], v{aPr} offset:{(2*h+1)*512}")
    A(f"ds_read_b128 v[32:35], v{aMr} offset:128")
    A(f"s_waitcnt vmcnt({n2})")
    g.stamp(10)
    A("s_barrier")
    for h in range(4):
        for tl in range(2):
            for q in range(2): tr(g, V1 + 8 * h + 4 * tl + 2 * q, [aV, aVb][tl], (2 * h + 1) * 8192 + q * 4096)
    for h in range(4):
        A(f"s_waitcnt lgkmcnt({12-4*h})")
        for tl in range(2): mfma(g, AO + 4 * tl, V1 + 8 * h + 4 * tl, PFR + 8 * h + 4, False)
        if h == 0: A("v_pk_add_f32 v[32:33], v[32:33], v[34:35]")
        if h == 1: A(f"v_add_f32 v{RS+5}, v32, v33")
    A("s_cmp_lg_u32 s3, 0"); A("s_cbranch_scc1 L_nst")
    g.setexec(0xff)
    A(f"buffer_store_dwordx4 v[{RS+4}:{RS+7}], v{gL16}, {WS}, s11 offen sc1")
    g.full()
    g.lab("L_nst")
    g.nop(6)
    for e in range(4): A(f"v_cndmask_b32 v{40+e}, v{AO+e}, v{AO+4+e}, s[66:67]")
    pack24(g, RS, 40)
    A(f"buffer_store_dwordx4 v[{RS}:{RS+3}], v{gAP}, {WS}, s9 offen sc1")
    g.stamp(6)
    A("s_cmp_lg_u32 s3, 0"); A("s_cbranch_scc1 L_nohu0")
    hu_post(g, 0, RS + 7, 12)
    g.lab("L_nohu0")
    if cfg.gate: hu_wait(g, 5, 7, 40, 41, 0, backoff=2)
    else: g.sleep(cfg.w2sl)
    for k in range(n2 // 4, 3): dma4(g, SB, 8 * 2048, P2, waits=[0 if 4 * k + jj < cfg.w2n else None for jj in range(4)])
    dma4(g, SB, 8 * 2048, P2, hi=2)
    A("v_mul_u32_u24 v22, 928, v19"); A(f"v_add_u32 v22, {CB}, v22"); A("v_lshrrev_b32 v27, 3, v0"); A(f"v_lshl_add_u32 v{aW}, v27, 3, v22"); A(f"v_lshl_add_u32 v{aF}, v3, 4, v22")
    A("s_lshl_b32 s13, s3, 12"); A("v_lshlrev_b32 v22, 10, v3"); A(f"v_lshl_add_u32 v{gW}, v2, 4, v22"); A(f"v_add_u32 v{gW}, s13, v{gW}")
    A(f"s_mul_i32 {SO[0]}, s4, {112*128}"); A(f"s_add_u32 {SO[0]}, {SO[0]}, {W_AB}")
    for i in range(1, 3): A(f"s_add_u32 {SO[i]}, {SO[0]}, {i*4096}")
    A(f"s_add_u32 {SO[3]}, {SO[0]}, {3*4096}"); A("s_cmp_ge_u32 s3, 2"); A(f"s_cselect_b32 {SO[3]}, {SO[0]}, {SO[3]}")
    A("s_lshl_b32 s9, s7, 14"); A("s_lshl_b32 s10, s4, 7"); A("s_add_u32 s9, s9, s10"); A(f"s_add_u32 s9, s9, {W_FP}")
    A(f"v_mov_b32 v47, {TAG}")
    A("s_waitcnt vmcnt(0)")
    A("s_barrier")
    g.stamp(12)
    for k in range(14):
        for q in range(2): tr(g, 64 + 4 * k + 2 * q, aT, k * 4096 + q * 512)
    AD = 192
    al = [f"buffer_load_dwordx4 v[{AD+4*k}:{AD+4*k+3}], v{gT16}, {WS}, {SO[k]} offen sc1" for k in range(4)]
    g.sleep(cfg.d6)
    gather(g, al, [AD + 4 * k + 2 for k in range(4)] + [AD + 4 * k + 3 for k in range(4)], 5, toggle=SO, sleep=cfg.pl)
    for k in range(3): A(f"ds_write_b64 v{aW}, v[{AD+4*k}:{AD+4*k+1}] offset:{k*256}")
    A("s_cmp_ge_u32 s3, 2"); A("s_cbranch_scc1 L_a3"); A(f"ds_write_b64 v{aW}, v[{AD+12}:{AD+13}] offset:768"); g.lab("L_a3")
    g.stamp(13)
    A("s_waitcnt lgkmcnt(0)")
    A("s_barrier")
    for k in range(14): A(f"ds_read_b128 v[{128+4*k}:{131+4*k}], v{aF} offset:{k*64}")
    for k in range(14):
        A(f"s_waitcnt lgkmcnt({13-k})")
        mfma(g, 32, 64 + 4 * k, 128 + 4 * k, k == 0)
    g.setexec(0x00ff00ff00ff00ff)
    g.nop(6)
    pack24(g, 44, 32)
    A(f"buffer_store_dwordx4 v[44:47], v{gW}, {WS}, s9 offen sc1")
    g.full()
    A("s_cmp_lg_u32 s3, 0"); A("s_cbranch_scc1 L_nohu")
    hu_post(g, 2, 47, 12)
    g.lab("L_nohu")
    g.stamp(14)

def parse(argv=None):
    ap = argparse.ArgumentParser()
    ap.add_argument("-o", default="sequential_preLN__sliding_block_cached__dense_activation_relu__decode.s")
    D = dict(stamps=0, nt=1, pref=1, local=1, wc=1, wr=2, fb=300, early=1, nopoll=0, hu=1, hun=400, dumpo=0, huearly=1, swap=0,
             gate=0, gmask=15, g3=16, g4=32,
             nk0=8, kwin=2, kw=10, vw=10, qpos=1, qw=8, w2e=0, w2sl=0, w2n=4,
             osl=0, on1=4, ow1=2, ow2=10, fsl=0, fn1=5, fw1=1, fw2=10,
             d2=3, d4=16, d6=0, d7=60, dt=12, da=2, db=3, dc=3, ps=4, pl=1)
    for k, d in D.items(): ap.add_argument(f"--{k}", type=int, default=d)
    return ap.parse_args(argv)

if __name__ == "__main__":
    cfg = parse()
    open(cfg.o, "w").write(gen(cfg))
```

```python
import sys, argparse
sys.path.insert(0, "bench")
from asmlib import wrap

RQ = 98304
SCR = 131072
ACT = SCR
STL_ = SCR + 8 * 2080
QL = SCR + 8 * 544
CB = QL + 8 * 288
LDS_END = CB + 4 * 8 * 528
assert STL_ + 256 <= LDS_END <= 163840

W_QP = 0x100000
W_AP = 0x200000
W_AS = 0x280000
W_OB = 0x290000
W_HB = 0x2C0000
W_HS = 0x2D0000
W_HU = 0x2E0000
W_OP = 0x500000
W_AB = 0x340000
W_FP = 0x380000
BDELTA = 0x400000
STAMP_OFF = 128 << 20

WS, XO, SA, SB = "s[36:39]", "s[40:43]", "s[44:47]", "s[48:51]"
TAG = "s8"
PK0, PK1, PK2, UP0, UP1, PCNT = "s52", "s53", "s54", "s55", "s56", "s57"
SO = ["s58", "s59", "s60", "s61"]
mW, sB, sM, sI = "s62", "s63", "s64", "s65"

class G:
    def __init__(self, cfg):
        self.L = []; self.cfg = cfg; self.nlab = 0
    def A(self, s): self.L.append("    " + s)
    def lab(self, s): self.L.append(s + ":")
    def newlab(self, p="L"):
        self.nlab += 1; return f"{p}_{self.nlab}"
    def nop(self, n):
        while n > 0:
            k = min(n, 16); self.A(f"s_nop {k-1}"); n -= k
    def setexec(self, m):
        lo, hi = m & 0xffffffff, m >> 32
        if hi == 0 and lo <= 64: self.A(f"s_mov_b64 exec, {lo}")
        else:
            self.A(f"s_mov_b32 exec_lo, {hex(lo)}"); self.A(f"s_mov_b32 exec_hi, {hex(hi)}")
    def full(self): self.A("s_mov_b64 exec, -1")
    def stamp(self, idx):
        if self.cfg.stamps: self.A(f"s_memrealtime s[{70+2*idx}:{71+2*idx}]")
    def sleep(self, n):
        while n > 0:
            k = min(n, 127); self.A(f"s_sleep {k}"); n -= k

def srd(g, d, p, n):
    if d != p: g.A(f"s_mov_b32 s{d}, s{p}"); g.A(f"s_mov_b32 s{d+1}, s{p+1}")
    g.A(f"s_mov_b32 s{d+2}, {n}"); g.A(f"s_mov_b32 s{d+3}, 0x20000")

def dma4(g, sr, step, pats, waits=None, lo=0, hi=4, adv=True):
    nt = " nt" if g.cfg.nt else ""
    g.A(f"s_mov_b32 m0, {sM}")
    for jj in range(lo, hi):
        w = None if waits is None else (waits if isinstance(waits, int) else waits[jj])
        if w is not None: g.A(f"s_waitcnt vmcnt({w})")
        off = jj * (step - 1024)
        if off: g.A(f"s_add_u32 s15, {sB}, {off}")
        elif w is None and jj == lo: g.A("s_nop 0")
        g.A(f"buffer_load_dwordx4 v{pats[jj]}, {sr}, {'s15' if off else sB} offen offset:{jj*1024}{nt} lds")
    if adv: g.A(f"s_add_u32 {sB}, {sB}, {4*step}"); g.A(f"s_add_u32 {sM}, {sM}, 4096")

def dma_loop(g, sr, step, pats, ngroups, win):
    l = g.newlab("L_dl")
    g.A(f"s_mov_b32 {sI}, 0")
    g.lab(l)
    dma4(g, sr, step, pats, waits=win - 1)
    g.A(f"s_add_u32 {sI}, {sI}, 1"); g.A(f"s_cmp_lt_u32 {sI}, {ngroups}"); g.A(f"s_cbranch_scc1 {l}")

def tagcheck(g, tagregs, tmp=10):
    g.A(f"v_xor_b32 v{tmp}, {TAG}, v{tagregs[0]}")
    for t in tagregs[1:]: g.A(f"v_bitop3_b32 v{tmp}, v{tmp}, v{t}, {TAG} bitop3:0xF6")
    g.A(f"v_cmp_ne_u32 vcc, 0, v{tmp}")

def gather(g, loads, tagregs, stage, issued=False, newer=0, late=None, toggle=(), sleep=0):
    l = g.newlab("L_g"); e = g.newlab("L_ge")
    if g.cfg.nopoll:
        g.A(f"s_waitcnt vmcnt({newer})"); return
    if not issued:
        for s in loads: g.A(s)
    g.A(f"s_mov_b32 {PCNT}, 0")
    g.A(f"s_waitcnt vmcnt({newer})")
    tagcheck(g, tagregs)
    g.A(f"s_cbranch_vccz {e}")
    g.lab(l)
    g.sleep(sleep)
    for s in loads: g.A(s)
    g.A(f"s_add_u32 {PCNT}, {PCNT}, 1")
    g.A("s_waitcnt vmcnt(0)")
    tagcheck(g, tagregs)
    g.A(f"s_cbranch_vccz {e}")
    if g.cfg.local and (late or toggle):
        sk = g.newlab("L_gl")
        g.A(f"s_cmp_lt_u32 {PCNT}, {g.cfg.fb}"); g.A(f"s_cbranch_scc1 {sk}")
        for t in toggle: g.A(f"s_xor_b32 {t}, {t}, {BDELTA}")
        if late:
            g.A(f"s_cmp_lg_u32 {PCNT}, {g.cfg.fb}"); g.A(f"s_cbranch_scc1 {sk}")
            late()
        g.lab(sk)
    g.A(f"s_cmp_lt_u32 {PCNT}, 40000")
    g.A(f"s_cbranch_scc1 {l}")
    g.lab(e)
    if g.cfg.stamps: g.A(f"s_min_u32 {PCNT}, {PCNT}, 15"); g.A(f"s_lshl_b32 {PCNT}, {PCNT}, {4*stage}"); g.A(f"s_add_u32 s69, s69, {PCNT}")

def hu_wait(g, which, nmask, addr, dst, delay, backoff=0):
    if not g.cfg.hu or g.cfg.nopoll: return
    l = g.newlab("L_hu"); e = g.newlab("L_hue")
    g.A(f"v_and_b32 v{addr}, {nmask}, v1"); g.A(f"v_lshlrev_b32 v{addr}, 4, v{addr}")
    g.A("s_lshl_b32 s15, s4, 8"); g.A(f"s_add_u32 s15, s15, {W_HU + which*2048}")
    g.A(f"s_mov_b32 {PCNT}, 0")
    g.lab(l)
    g.sleep(backoff)
    g.A(f"buffer_load_dword v{dst}, v{addr}, {WS}, s15 offen sc1")
    g.A(f"s_add_u32 {PCNT}, {PCNT}, 1")
    g.A("s_waitcnt vmcnt(0)")
    g.A(f"v_cmp_ne_u32 vcc, {TAG}, v{dst}")
    g.A(f"s_cbranch_vccz {e}")
    g.A(f"s_cmp_lt_u32 {PCNT}, {g.cfg.hun}"); g.A(f"s_cbranch_scc1 {l}")
    g.lab(e)
    g.sleep(delay)

def hu_probe_issue(g, which, nmask, addr, dst):
    if not (g.cfg.hu and g.cfg.huearly) or g.cfg.nopoll: return
    g.A(f"v_and_b32 v{addr}, {nmask}, v1"); g.A(f"v_lshlrev_b32 v{addr}, 4, v{addr}")
    g.A("s_lshl_b32 s15, s4, 8"); g.A(f"s_add_u32 s15, s15, {W_HU + which*2048}")
    g.A(f"buffer_load_dword v{dst}, v{addr}, {WS}, s15 offen sc1")

def staged(g, which, nmask, addr, dst, delay, loads, preload, fin):
    if not (g.cfg.hu and g.cfg.huearly) or g.cfg.nopoll:
        preload(); hu_wait(g, which, nmask, addr, dst, delay); fin(False); return
    late = g.newlab("L_st"); go = g.newlab("L_sg")
    g.A(f"v_cmp_ne_u32 vcc, {TAG}, v{dst}")
    g.A(f"s_cbranch_vccnz {late}")
    for x_ in loads: g.A(x_)
    g.A("s_mov_b32 s67, 1") if False else None
    g.lab(late)
    g.A("s_mov_b64 s[88:89], vcc") if False else None
    g.A("s_cselect_b32 s0, 0, 0") if False else None
    g.A("s_mov_b64 s[0:1], vcc")
    preload()
    g.A("s_cmp_eq_u64 s[0:1], 0"); g.A(f"s_cbranch_scc1 {go}")
    hu_wait(g, which, nmask, addr, dst, delay)
    for x_ in loads: g.A(x_)
    g.lab(go)
    fin(True)

def hu_post(g, which, tagreg, tmp):
    if not g.cfg.hu: return
    g.A("s_lshl_b32 s15, s4, 4"); g.A("s_add_u32 s15, s15, s7"); g.A("s_lshl_b32 s15, s15, 4"); g.A(f"s_add_u32 s15, s15, {W_HU + which*2048}")
    g.A(f"v_mov_b32 v{tmp}, 0"); g.A("s_mov_b64 exec, 1")
    g.A(f"buffer_store_dword v{tagreg}, v{tmp}, {WS}, s15 offen")
    g.full()

def hu_post0(g, which, tagreg, tmp):
    if not (g.cfg.hu and g.cfg.gate): return
    sk = g.newlab("L_hp")
    g.A("s_cmp_lg_u32 s3, 0"); g.A(f"s_cbranch_scc1 {sk}")
    hu_post(g, which, tagreg, tmp)
    g.lab(sk)

def pack24(g, d, a):
    g.A(f"v_perm_b32 v{d}, v{a}, v{a+3}, {PK0}"); g.A(f"v_perm_b32 v{d+1}, v{a+1}, v{a+3}, {PK1}"); g.A(f"v_perm_b32 v{d+2}, v{a+2}, v{a+3}, {PK2}")
def unpack24_d(g, b):
    g.A(f"v_perm_b32 v{b+3}, v{b+1}, v{b}, {UP0}"); g.A(f"v_perm_b32 v{b+3}, v{b+2}, v{b+3}, {UP1}")
def bf16_round(g, d, s):
    g.A(f"v_cvt_pk_bf16_f32 v{d}, v{s}, v{s}"); g.A(f"v_lshlrev_b32 v{d}, 16, v{d}")
def xrow_reduce(g, regs, op="v_add_f32", steps=("ror8", "p16", "p32"), tmp=11):
    n = len(regs)
    for st in steps:
        if st.startswith("ror"):
            g.nop(max(0, 3 - n))
            for r in regs: g.A(f"{op}_dpp v{r}, v{r}, v{r} row_ror:{st[3:]} row_mask:0xf bank_mask:0xf")
        else:
            ins = "v_permlane16_swap_b32" if st == "p16" else "v_permlane32_swap_b32"
            for k, r in enumerate(regs): g.A(f"v_mov_b32 v{tmp+k}, v{r}")
            g.nop(max(0, 3 - n))
            for k, r in enumerate(regs): g.A(f"{ins} v{r}, v{tmp+k}")
            g.nop(max(0, 2 - n))
            for k, r in enumerate(regs): g.A(f"{op} v{r}, v{r}, v{tmp+k}")
def mfma(g, d, a, b, first):
    g.A(f"v_mfma_f32_16x16x32_bf16 v[{d}:{d+3}], v[{a}:{a+3}], v[{b}:{b+3}], {'0' if first else f'v[{d}:{d+3}]'}")
def tr(g, d, addr, off):
    g.A(f"ds_read_b64_tr_b16 v[{d}:{d+1}], v{addr} offset:{off}")

pA, pB, aT, aT2, aF, gT16 = 4, 5, 6, 7, 8, 9
gW, aW, aTb, aTb2 = 28, 29, 30, 31
WF, AC, GD = 64, 32, 192
pK = [240, 241, 242, 243]

def gen(cfg):
    g = G(cfg); A = g.A
    g.stamp(0)
    A("s_load_dwordx16 s[16:31], s[0:1], 0")
    A("s_load_dwordx4 s[32:35], s[0:1], 64")
    A("s_load_dwordx2 s[36:37], s[0:1], 80")
    A("s_cmp_ge_u32 s2, 256"); A("s_cbranch_scc1 L_end")
    A("v_lshrrev_b32 v7, 6, v0"); A("v_and_b32 v1, 63, v0")
    A("s_lshr_b32 s5, s2, 3")
    if cfg.pref:
        A("s_getpc_b64 s[10:11]"); g.lab("L_begin")
        A("s_lshl_b32 s9, s5, 8"); A("v_add_u32 v10, s9, v0"); A("v_and_b32 v10, 1023, v10"); A("v_lshlrev_b32 v10, 4, v10")
        A("s_mov_b32 s9, L_end - L_begin - 64"); A("v_min_u32 v10, s9, v10")
        A("global_load_dwordx4 v[12:15], v10, s[10:11]")
    A("v_readfirstlane_b32 s3, v7")
    A("s_and_b32 s4, s2, 7"); A("s_and_b32 s7, s5, 15"); A("s_lshl_b32 s6, s4, 5"); A("s_add_u32 s6, s6, s5")
    if cfg.swap: A("s_xor_b32 s5, s5, 16")
    A("v_and_b32 v2, 15, v1"); A("v_lshrrev_b32 v3, 4, v1")
    A("v_lshrrev_b32 v16, 5, v0"); A("v_and_b32 v17, 31, v0")
    A("v_lshlrev_b32 v18, 11, v16"); A("v_lshl_add_u32 v18, v17, 4, v18")
    A("s_lshr_b32 s9, s6, 6")
    A("v_lshrrev_b32 v20, 3, v1"); A("v_and_b32 v19, 7, v1")
    A("v_bfe_u32 v21, v1, 4, 1"); A("v_lshlrev_b32 v21, 1, v21"); A("v_xor_b32 v21, v19, v21"); A("v_lshlrev_b32 v21, 4, v21")
    A(f"v_lshl_add_u32 v{pA}, v20, 13, v21"); A(f"v_xor_b32 v{pB}, 64, v{pA}")
    A("s_lshl_b32 s12, s9, 2"); A("s_add_u32 s12, s12, s3"); A("s_lshl_b32 s12, s12, 19"); A("s_and_b32 s13, s6, 63"); A("s_lshl_b32 s13, s13, 7"); A(f"s_add_u32 {sB}, s12, s13")
    A(f"s_lshl_b32 {sM}, s3, 13"); A(f"s_add_u32 {sM}, {sM}, {RQ}")
    A("s_lshl_b32 s13, s9, 9"); A("s_add_u32 s14, s13, 512"); A("s_and_b32 s14, s14, 0x600"); A("s_xor_b32 s12, s13, 1024"); A("s_xor_b32 s9, s14, 1024")
    A("s_waitcnt lgkmcnt(0)")
    srd(g, 40, 16, 16384)
    for i, s in enumerate(["s13", "s14", "s12", "s9"]): A(f"buffer_load_dwordx4 v[{GD+4*i}:{GD+4*i+3}], v18, {XO}, {s} offen")
    srd(g, 44, 22, 8 << 20)
    A("s_load_dword s8, s[36:37], 0")
    for k in range(2): dma4(g, SA, 8 * 8192, [pA, pB, pA, pB])
    g.stamp(1)
    srd(g, 36, 36, 256 << 20); srd(g, 48, 18, 32 << 20)
    A(f"s_mov_b32 {PK0}, 0x07060501"); A(f"s_mov_b32 {PK1}, 0x07060502"); A(f"s_mov_b32 {PK2}, 0x07060503"); A(f"s_mov_b32 {UP0}, 0x0C04000C"); A(f"s_mov_b32 {UP1}, 0x0402010C")
    if cfg.stamps: A("s_mov_b32 s69, 0")
    A("v_mul_u32_u24 v22, 544, v16"); A(f"v_lshl_add_u32 v{aW}, v17, 4, v22"); A(f"v_add_u32 v{aW}, {ACT}, v{aW}")
    A("v_mul_u32_u24 v22, 544, v19"); A(f"v_lshl_add_u32 v{aF}, v3, 4, v22"); A(f"v_add_u32 v{aF}, {ACT}, v{aF}")
    A("v_bfe_u32 v23, v1, 2, 2"); A("v_and_b32 v24, 3, v1"); A("v_lshlrev_b32 v24, 3, v24"); A("v_and_b32 v25, 1, v3"); A("v_lshl_add_u32 v26, v3, 3, v23")
    A("v_lshrrev_b32 v27, 1, v23"); A("v_lshl_add_u32 v27, v25, 1, v27"); A("v_xor_b32 v27, s3, v27"); A("v_lshl_add_u32 v27, v27, 5, v24"); A(f"v_lshl_add_u32 v{aT}, v26, 7, v27")
    A(f"v_add_u32 v{aT2}, 0x10000, v{aT}")
    A(f"v_lshlrev_b32 v{gT16}, 4, v0")
    A("s_lshl_b32 s13, s3, 6"); A("v_lshlrev_b32 v27, 9, v2"); A(f"v_lshl_add_u32 v{gW}, v3, 4, v27"); A(f"v_add_u32 v{gW}, s13, v{gW}")
    A("v_xor_b32 v27, v2, v3"); A("v_lshlrev_b32 v27, 4, v27"); A(f"v_lshl_add_u32 v{pK[0]}, v3, 8, v27")
    for k in range(1, 4): A(f"v_xor_b32 v{pK[k]}, {k*64}, v{pK[0]}")
    A("s_lshl_b32 s68, s4, 4"); A("s_add_u32 s68, s68, s7")
    A("s_lshr_b32 s12, s68, 2"); A("s_lshl_b32 s12, s12, 20"); A("s_and_b32 s13, s68, 3"); A("s_lshl_b32 s13, s13, 16"); A("s_add_u32 s12, s12, s13")
    A(f"s_lshl_b32 {mW}, s3, 14"); A(f"s_add_u32 s12, s12, {mW}"); A("s_add_u32 s66, s12, 0xC0000")
    A(f"s_mov_b32 {sB}, s66"); A(f"s_mov_b32 {sM}, {mW}")
    A("s_lshl_b32 s9, s6, 12"); A(f"s_add_u32 s9, s9, {W_QP}")
    A("s_waitcnt lgkmcnt(0)")
    A("s_mul_i32 s8, s8, 0x9E3779B1"); A("s_add_u32 s8, s8, 0x7F4A7C15")
    U = 96
    A("s_waitcnt vmcnt(8)")
    g.stamp(5)
    for d in range(16):
        A(f"v_lshlrev_b32 v{U+2*d}, 16, v{GD+d}"); A(f"v_and_b32 v{U+2*d+1}, 0xffff0000, v{GD+d}")
    A(f"v_pk_add_f32 v[40:41], v[{U}:{U+1}], v[{U+2}:{U+3}]"); A(f"v_pk_add_f32 v[42:43], v[{U+4}:{U+5}], v[{U+6}:{U+7}]")
    for d in range(4, 16): A(f"v_pk_add_f32 v[{40+2*(d&1)}:{41+2*(d&1)}], v[{40+2*(d&1)}:{41+2*(d&1)}], v[{U+2*d}:{U+2*d+1}]")
    A("v_pk_add_f32 v[40:41], v[40:41], v[42:43]"); A("v_add_f32 v40, v40, v41")
    xrow_reduce(g, [40], steps=("ror8", "ror4", "ror2", "ror1", "p16"))
    A("v_mul_f32 v40, 0xba800000, v40"); A("v_mov_b32 v41, v40")
    for d in range(16):
        r = WF + 2 * (d & 7)
        A(f"v_pk_add_f32 v[{r}:{r+1}], v[{U+2*d}:{U+2*d+1}], v[40:41]")
        a = 44 + 2 * (d & 1)
        if d < 2: A(f"v_pk_mul_f32 v[{a}:{a+1}], v[{r}:{r+1}], v[{r}:{r+1}]")
        else: A(f"v_pk_fma_f32 v[{a}:{a+1}], v[{r}:{r+1}], v[{r}:{r+1}], v[{a}:{a+1}]")
    A("v_pk_add_f32 v[44:45], v[44:45], v[46:47]"); A("v_add_f32 v44, v44, v45")
    xrow_reduce(g, [44], steps=("ror8", "ror4", "ror2", "ror1", "p16"))
    A("v_mul_f32 v44, 0x3a800000, v44")
    bf16_round(g, 40, 40); bf16_round(g, 44, 44)
    A("v_add_f32 v44, 0x3727c5ac, v44"); bf16_round(g, 44, 44)
    A("v_sqrt_f32 v44, v44"); A("v_mov_b32 v41, v40")
    for d in range(4): A(f"v_pk_add_f32 v[{U+2*d}:{U+2*d+1}], v[{U+2*d}:{U+2*d+1}], v[40:41]")
    bf16_round(g, 44, 44)
    A("v_rcp_f32 v46, v44"); A("v_sub_f32 v44, 0, v44"); A("v_mov_b32 v45, v44")
    for d in range(4): A(f"v_cvt_pk_bf16_f32 v{48+d}, v{U+2*d}, v{U+2*d+1}")
    A("v_mov_b32 v47, v46")
    for d in range(4):
        A(f"v_lshlrev_b32 v{U+2*d}, 16, v{48+d}"); A(f"v_and_b32 v{U+2*d+1}, 0xffff0000, v{48+d}")
    for d in range(4): A(f"v_pk_mul_f32 v[{U+16+2*d}:{U+17+2*d}], v[{U+2*d}:{U+2*d+1}], v[46:47]")
    for d in range(4): A(f"v_pk_fma_f32 v[{U+2*d}:{U+2*d+1}], v[{U+16+2*d}:{U+17+2*d}], v[44:45], v[{U+2*d}:{U+2*d+1}]")
    for d in range(4): A(f"v_pk_fma_f32 v[{U+16+2*d}:{U+17+2*d}], v[{U+2*d}:{U+2*d+1}], v[46:47], v[{U+16+2*d}:{U+17+2*d}]")
    for d in range(4): A(f"v_cvt_pk_bf16_f32 v{48+d}, v{U+16+2*d}, v{U+17+2*d}")
    A(f"ds_write_b128 v{aW}, v[48:51]")
    g.stamp(2)
    A(f"v_mov_b32 v14, {TAG}"); A(f"v_mov_b32 v15, {TAG}"); A(f"v_mov_b32 v42, {TAG}"); A(f"v_mov_b32 v43, {TAG}")
    nk0 = cfg.nk0
    A("s_cmp_lt_u32 s5, 16"); A("s_cbranch_scc1 L_nok")
    done = 0
    while done < nk0:
        n = min(4, nk0 - done)
        dma4(g, SB, 1024, pK, waits=[max(0, 7 - min(7, done + jj + cfg.kwin)) + done + jj for jj in range(4)], hi=n, adv=(n == 4))
        done += n
    A(f"s_waitcnt vmcnt({nk0}) lgkmcnt(0)"); A("s_branch L_qb")
    g.lab("L_nok")
    A("s_waitcnt vmcnt(0) lgkmcnt(0)")
    g.lab("L_qb")
    A("s_barrier")
    XFq = 192
    for k in range(8):
        A(f"ds_read_b128 v[{XFq+4*k}:{XFq+4*k+3}], v{aF} offset:{k*64}")
        for q in range(2): tr(g, WF + 4 * k + 2 * q, aT2, RQ - 65536 + k * 4096 + q * 512)
        if k >= 4:
            A("s_waitcnt lgkmcnt(12)"); mfma(g, AC, WF + 4 * (k - 4), XFq + 4 * (k - 4), k == 4)
    for k in range(4, 8):
        A(f"s_waitcnt lgkmcnt({3*(7-k)})"); mfma(g, AC, WF + 4 * k, XFq + 4 * k, False)
    g.setexec(0x00ff00ff00ff00ff)
    g.nop(6)
    A(f"v_mov_b32 v12, v{AC}"); A(f"v_mov_b32 v13, v{AC+1}"); A(f"v_mov_b32 v40, v{AC+2}"); A(f"v_mov_b32 v41, v{AC+3}")
    A(f"buffer_store_dwordx4 v[12:15], v{gW}, {WS}, s9 offen sc1")
    A(f"buffer_store_dwordx4 v[40:43], v{gW}, {WS}, s9 offen offset:256 sc1")
    g.full()
    g.stamp(3)
    A("s_cmp_eq_u32 s5, 15"); A("s_cbranch_scc1 L_done")
    A("s_barrier")
    A("s_cmp_ge_u32 s5, 16"); A("s_cbranch_scc1 L_attn")
    A(f"s_lshl_b32 {sM}, s3, 15")
    A("s_cmp_ge_u32 s5, 8"); A("s_cbranch_scc1 L_f1")
    role_o(g)
    role_f1(g)
    role_attn(g)
    g.lab("L_done")
    g.stamp(15)
    if cfg.stamps == 2:
        g.full()
        A("s_cmp_ge_u32 s5, 8"); A("s_cbranch_scc1 L_end")
        A("s_waitcnt lgkmcnt(0)"); A("s_not_b32 s70, s70")
        for i in range(16): A(f"v_writelane_b32 v10, s{70+2*i}, {i}")
        srd(g, 44, 34, 256); A("v_lshlrev_b32 v11, 2, v1"); g.setexec(0xffff)
        A("buffer_atomic_umax v10, v11, s[44:47], 0 offen sc1")
    if cfg.stamps == 1:
        g.full()
        A("s_waitcnt lgkmcnt(0)"); A("s_mov_b32 s72, s69")
        for i in range(16): A(f"v_writelane_b32 v10, s{70+2*i}, {i}")
        A("s_lshl_b32 s9, s2, 4"); A("s_add_u32 s9, s9, s3"); A("s_lshl_b32 s9, s9, 6"); A(f"s_add_u32 s9, s9, {STAMP_OFF}")
        A("v_lshlrev_b32 v11, 2, v1"); g.setexec(0xffff)
        A(f"buffer_store_dword v10, v11, {WS}, s9 offen")
    g.lab("L_end"); A("s_endpgm")
    return wrap("\n".join(g.L), 256, 256, LDS_END, vgpr=256, sgpr=102)

def role_o(g):
    A = g.A; cfg = g.cfg
    gOUT, gL16, gP, gS = 62, 63, 18, 27
    PO = [240, 241, 242, 243]
    AO, XF = 208, 192
    A("s_lshr_b32 s12, s7, 1"); A("s_lshl_b32 s11, s4, 2"); A("s_add_u32 s12, s12, s11"); A("s_and_b32 s13, s7, 1")
    for k in range(4): A(f"v_xor_b32 v{PO[k]}, {2*k}, v1");
    for k in range(4): A(f"v_lshlrev_b32 v{PO[k]}, 4, v{PO[k]}")
    srd(g, 44, 24, 8 << 20)
    A("s_lshl_b32 s6, s4, 3"); A("s_add_u32 s6, s6, s7"); A("s_lshl_b32 s14, s6, 2"); A("s_add_u32 s14, s14, s3")
    A(f"v_lshlrev_b32 v{gOUT}, 11, v19"); A("s_lshl_b32 s68, s14, 3")
    A(f"buffer_load_dwordx2 v[60:61], v{gOUT}, {XO}, s68 offen")
    A("s_lshl_b32 s10, s12, 2"); A("s_add_u32 s10, s10, s3"); A("s_lshl_b32 s10, s10, 16"); A("s_lshl_b32 s11, s13, 10"); A(f"s_add_u32 {sB}, s10, s11")
    if not cfg.gate: g.sleep(cfg.osl)
    w0 = [cfg.ow1 - 1 if k < cfg.on1 else cfg.ow2 - 1 for k in range(8)]
    dma4(g, SA, 2048, PO, waits=w0[:4]); dma4(g, SA, 2048, PO, waits=w0[4:])
    A(f"s_mov_b32 {sI}, 1")
    l = g.newlab("L_dl")
    g.lab(l)
    for k in range(4): A(f"v_xor_b32 v{PO[k]}, 128, v{PO[k]}")
    dma4(g, SA, 2048, PO, waits=cfg.ow2 - 1); dma4(g, SA, 2048, PO, waits=cfg.ow2 - 1)
    A(f"s_add_u32 {sI}, {sI}, 1"); A(f"s_cmp_lt_u32 {sI}, 4"); A(f"s_cbranch_scc1 {l}")
    A("v_lshl_add_u32 v22, v25, 2, v23"); A("v_lshl_add_u32 v22, v22, 5, v24"); A("s_lshl_b32 s11, s3, 8")
    A(f"v_lshl_add_u32 v{aT}, v26, 10, v22"); A(f"v_add_u32 v{aT}, s11, v{aT}")
    A("v_mul_u32_u24 v22, 288, v16"); A(f"v_lshl_add_u32 v{aW}, v17, 3, v22"); A(f"v_add_u32 v{aW}, {ACT}, v{aW}")
    A("v_mul_u32_u24 v22, 288, v19"); A(f"v_lshl_add_u32 v{aF}, v3, 4, v22"); A(f"v_add_u32 v{aF}, {ACT}, v{aF}")
    A("s_lshl_b32 s11, s3, 3"); A("v_lshrrev_b32 v22, 3, v2"); A("v_add_u32 v22, s11, v22"); A("v_lshl_add_u32 v22, v22, 2, v3"); A("v_lshlrev_b32 v22, 12, v22"); A(f"v_lshl_add_u32 v{gW}, v19, 4, v22")
    A("v_lshlrev_b32 v22, 16, v16"); A(f"v_lshl_add_u32 v{gP}, v17, 4, v22")
    A("v_lshlrev_b32 v22, 11, v16"); A(f"v_lshl_add_u32 v{gS}, v24, 4, v22")
    A("v_cmp_lt_u32 s[66:67], 7, v2")
    for r_ in (47, 50, 51, 54, 55): A(f"v_mov_b32 v{r_}, {TAG}")
    A(f"v_lshlrev_b32 v{gL16}, 4, v1")
    A("s_lshl_b32 s10, s3, 6"); A(f"v_lshl_add_u32 v{aTb2}, v19, 3, s10"); A(f"v_add_u32 v{aTb2}, {STL_}, v{aTb2}")
    A("s_lshr_b32 s10, s12, 3"); A("s_and_b32 s11, s12, 7")
    A(f"s_lshl_b32 {SO[0]}, s10, 14"); A("s_lshl_b32 s9, s11, 9"); A(f"s_add_u32 {SO[0]}, {SO[0]}, s9"); A(f"s_add_u32 {SO[0]}, {SO[0]}, {W_AP}")
    for i in range(1, 4): A(f"s_add_u32 {SO[i]}, {SO[0]}, {i*4096}")
    A("s_lshl_b32 s10, s10, 9"); A("s_lshl_b32 s11, s11, 4"); A("s_add_u32 s11, s11, s10"); A(f"s_add_u32 s11, s11, {W_AS}")
    A("s_lshl_b32 s9, s13, 19"); A("s_lshl_b32 s10, s12, 7"); A("s_add_u32 s9, s9, s10"); A(f"s_add_u32 s9, s9, {W_OP}")
    A(f"s_add_u32 s10, s9, 32768"); A("s_add_u32 s12, s9, 65536"); A("s_add_u32 s13, s9, 98304")
    hu_probe_issue(g, 0, 15, 40, 41)
    A("s_waitcnt vmcnt(0)")
    A("s_barrier")
    g.stamp(4)
    hu_post0(g, 5, 55, 12)
    GA = 192
    cl = [f"buffer_load_dwordx4 v[{GA+16}:{GA+19}], v{gS}, {WS}, s11 offen sc1"] + [f"buffer_load_dwordx4 v[{GA+4*k}:{GA+4*k+3}], v{gP}, {WS}, {SO[k]} offen sc1" for k in range(4)]
    def pre_o():
        for tt in range(8):
            a0, a1 = 12 + 2 * (tt & 1), 13 + 2 * (tt & 1)
            A(f"v_xor_b32 v{a0}, {tt*32}, v{aT}"); A(f"v_add_u32 v{a1}, 0x10000, v{a0}")
            for k in range(4):
                for q in range(2): tr(g, WF + 16 * tt + 4 * k + 2 * q, a0 if k < 2 else a1, (k & 1) * 32768 + q * 4096)
        srd(g, 40, 32, 16384)
        for p in range(2):
            A(f"v_lshlrev_b32 v{56+2*p}, 16, v{60+p}"); A(f"v_and_b32 v{57+2*p}, 0xffff0000, v{60+p}")
    staged(g, 0, 15, 40, 41, cfg.da, cl, pre_o, lambda iss: gather(g, cl, [GA + 18, GA + 19] + [GA + 4 * k + 3 for k in range(4)], 2, sleep=cfg.ps, issued=iss))
    M, Lr = GA + 16, GA + 17
    A(f"v_max_f32_dpp v36, v{M}, v{M} quad_perm:[1,0,3,2] row_mask:0xf bank_mask:0xf")
    unpack24_d(g, GA)
    A("v_max_f32_dpp v36, v36, v36 quad_perm:[2,3,0,1] row_mask:0xf bank_mask:0xf")
    A(f"v_sub_f32 v37, v{M}, v36"); A("v_exp_f32 v37, v37")
    unpack24_d(g, GA + 4)
    A(f"v_mul_f32 v38, v37, v{Lr}")
    unpack24_d(g, GA + 8)
    A("v_add_f32_dpp v38, v38, v38 quad_perm:[1,0,3,2] row_mask:0xf bank_mask:0xf")
    unpack24_d(g, GA + 12)
    A("v_add_f32_dpp v38, v38, v38 quad_perm:[2,3,0,1] row_mask:0xf bank_mask:0xf")
    for e in range(4): A(f"v_mul_f32_dpp v{40+e}, v37, v{GA+e} quad_perm:[0,0,0,0] row_mask:0xf bank_mask:0xf")
    A("v_rcp_f32 v38, v38")
    for k in range(1, 4):
        for e in range(4): A(f"v_fmac_f32_dpp v{40+e}, v37, v{GA+4*k+e} quad_perm:[{k},{k},{k},{k}] row_mask:0xf bank_mask:0xf")
    for e in range(4): A(f"v_mul_f32 v{40+e}, v{40+e}, v38")
    A("v_cvt_pk_bf16_f32 v32, v40, v41"); A("v_cvt_pk_bf16_f32 v33, v42, v43")
    A(f"ds_write_b64 v{aW}, v[32:33]")
    if cfg.dumpo:
        A(f"v_mov_b32 v34, {TAG}"); A(f"v_mov_b32 v35, {TAG}"); A("s_lshr_b32 s15, s6, 1"); A("s_lshl_b32 s15, s15, 12"); A(f"s_add_u32 s15, s15, {W_OB}")
        A(f"buffer_store_dwordx4 v[32:35], v{gT16}, {WS}, s15 offen sc1")
    A(f"s_lshl_b32 {SO[0]}, s14, 12"); A(f"s_add_u32 {SO[0]}, {SO[0]}, {W_OP}"); A(f"s_lshl_b32 {SO[1]}, s14, 10"); A(f"s_add_u32 {SO[1]}, {SO[1]}, {W_FP}")
    A(f"s_lshl_b32 {SO[2]}, s14, 7"); A(f"s_add_u32 {SO[2]}, {SO[2]}, {W_HB}"); A(f"s_lshl_b32 {SO[3]}, s6, 7"); A(f"s_add_u32 {SO[3]}, {SO[3]}, {W_HS}")
    for r_ in (35, 39, 43): A(f"v_mov_b32 v{r_}, {TAG}")
    g.stamp(8)
    A("s_waitcnt lgkmcnt(0)")
    A("s_barrier")
    for k in range(4): A(f"ds_read_b128 v[{XF+4*k}:{XF+4*k+3}], v{aF} offset:{k*64}")
    A("s_waitcnt lgkmcnt(0)")
    def fin_pair(m):
        for e in range(4): A(f"v_cndmask_b32 v{12+e}, v{AO+8*m+e}, v{AO+8*m+4+e}, s[66:67]")
        pack24(g, 32 + 4 * m, 12)
        A(f"buffer_store_dwordx4 v[{32+4*m}:{35+4*m}], v{gW}, {WS}, {['s9', 's10', 's12', 's13'][m]} offen sc1")
    for m in range(4):
        for k in range(4):
            for tl in range(2): mfma(g, AO + 8 * m + 4 * tl, WF + 16 * (2 * m + tl) + 4 * k, XF + 4 * k, k == 0)
        if m >= 1: fin_pair(m - 1)
    g.nop(1)
    fin_pair(3)
    g.stamp(9)
    def red(so, nl, stage):
        rl = [f"buffer_load_dwordx4 v[{GD+4*k}:{GD+4*k+3}], v{gL16}, {WS}, {so} offen offset:{k*1024} sc1" for k in range(nl)]
        gather(g, rl, [GD + 4 * k + 3 for k in range(nl)], stage, sleep=cfg.ps)
        for k in range(nl): unpack24_d(g, GD + 4 * k)
        if nl == 4:
            for h in range(2):
                A(f"v_pk_add_f32 v[{GD+2*h}:{GD+2*h+1}], v[{GD+2*h}:{GD+2*h+1}], v[{GD+4+2*h}:{GD+5+2*h}]"); A(f"v_pk_add_f32 v[{GD+8+2*h}:{GD+9+2*h}], v[{GD+8+2*h}:{GD+9+2*h}], v[{GD+12+2*h}:{GD+13+2*h}]")
            for h in range(2): A(f"v_pk_add_f32 v[{GD+2*h}:{GD+2*h+1}], v[{GD+2*h}:{GD+2*h+1}], v[{GD+8+2*h}:{GD+9+2*h}]")
            g.nop(1)
        xrow_reduce(g, [GD, GD + 1, GD + 2, GD + 3], steps=("ror8", "p16", "p32"), tmp=12)
        A(f"v_cvt_pk_bf16_f32 v12, v{GD}, v{GD+1}"); A(f"v_cvt_pk_bf16_f32 v13, v{GD+2}, v{GD+3}")
        for p in range(2):
            A(f"v_lshlrev_b32 v{40+2*p}, 16, v{12+p}"); A(f"v_and_b32 v{41+2*p}, 0xffff0000, v{12+p}")
        for h in range(2): A(f"v_pk_add_f32 v[{40+2*h}:{41+2*h}], v[{40+2*h}:{41+2*h}], v[{56+2*h}:{57+2*h}]")
        if nl == 4: A("v_pk_mul_f32 v[44:45], v[40:41], v[40:41]")
        A("v_cvt_pk_bf16_f32 v48, v40, v41")
        if nl == 4: A("v_pk_fma_f32 v[44:45], v[42:43], v[42:43], v[44:45]")
        A("v_cvt_pk_bf16_f32 v49, v42, v43")
    g.sleep(cfg.d4)
    red(SO[0], 4, 3)
    A("v_add_f32 v50, v44, v45")
    g.setexec(0xff)
    A(f"buffer_store_dwordx4 v[48:51], v{gL16}, {WS}, {SO[2]} offen sc1")
    A("s_cmp_lg_u32 s3, 0"); A("s_cbranch_scc1 L_nost")
    hu_post(g, 1, 55, 12)
    g.lab("L_nost")
    g.full()
    for p in range(2):
        A(f"v_lshlrev_b32 v{56+2*p}, 16, v{48+p}"); A(f"v_and_b32 v{57+2*p}, 0xffff0000, v{48+p}")
    g.stamp(10)
    if not cfg.hu: g.sleep(cfg.d7)
    hu_wait(g, 2, 15, 12, 13, cfg.dc)
    red(SO[1], 1, 6)
    g.setexec(0xff)
    A(f"buffer_store_dwordx2 v[48:49], v{gOUT}, {XO}, s68 offen {['', 'sc1', 'nt', 'sc0 sc1'][cfg.outst]}")
    A("s_mov_b64 exec, 1")
    A("s_cmp_lg_u32 s14, 0"); A("s_cbranch_scc1 L_done")
    A(f"v_mov_b32 v12, {TAG}"); A("v_mov_b32 v13, 0")
    A(f"buffer_store_dword v12, v13, {WS}, 0 offen sc1")
    A("s_branch L_done")

def role_f1(g):
    A = g.A; cfg = g.cfg
    STL = "" if cfg.local else "sc1"
    HF = 224
    g.lab("L_f1")
    A("s_movk_i32 s12, 7168"); A("v_mul_lo_u32 v22, v20, s12"); A(f"v_add_u32 v{pA}, v22, v21"); A(f"v_xor_b32 v{pB}, 64, v{pA}")
    srd(g, 44, 28, 7340032)
    A("s_mul_i32 s12, s4, 7"); A("s_add_u32 s12, s12, s7"); A("s_sub_u32 s12, s12, 8"); A("s_lshl_b32 s13, s12, 7"); A(f"s_mul_i32 s14, s3, {256*7168}"); A(f"s_add_u32 {sB}, s13, s14")
    P2 = [pA, pB, pA, pB]
    if cfg.gate: hu_wait(g, 4, cfg.gmask, 40, 41, 0, backoff=2)
    else: g.sleep(cfg.fsl)
    w0 = [cfg.fw1 - 1 if k < cfg.fn1 else cfg.fw2 - 1 for k in range(8)]
    dma4(g, SA, 8 * 7168, P2, waits=w0[:4]); dma4(g, SA, 8 * 7168, P2, waits=w0[4:])
    dma_loop(g, SA, 8 * 7168, P2, 6, cfg.fw2)
    A("v_mul_u32_u24 v22, 2080, v19"); A("v_lshrrev_b32 v27, 3, v0"); A(f"v_lshl_add_u32 v{aW}, v27, 3, v22"); A(f"v_add_u32 v{aW}, {ACT}, v{aW}")
    A(f"v_lshl_add_u32 v{aF}, v3, 4, v22"); A(f"v_add_u32 v{aF}, {ACT}, v{aF}")
    A("s_lshl_b32 s13, s3, 9"); A("v_lshlrev_b32 v22, 7, v3"); A(f"v_lshl_add_u32 v{gW}, v2, 4, v22"); A(f"v_add_u32 v{gW}, s13, v{gW}")
    A(f"s_lshl_b32 s9, s12, 11"); A(f"s_add_u32 s9, s9, {W_AB}"); A(f"s_add_u32 s10, s9, {BDELTA}")
    for i in range(4): A(f"s_mov_b32 {SO[i]}, {W_HB+8192*i}")
    A(f"v_add_u32 v{aTb}, 4096, v{gT16}")
    A("v_mov_b32 v12, 0x3f803f80"); A("v_mov_b32 v13, v12"); A("v_mov_b32 v14, v12"); A("v_mov_b32 v15, v12")
    A(f"s_mov_b32 s68, {W_HS}")
    A("s_lshl_b32 s13, s3, 6"); A(f"v_lshl_add_u32 v{aTb2}, v19, 3, s13"); A(f"v_add_u32 v{aTb2}, {STL_}, v{aTb2}")
    A("v_lshlrev_b32 v27, 3, v19"); A(f"v_add_u32 v27, {STL_}, v27")
    A(f"v_mov_b32 v46, {TAG}"); A(f"v_mov_b32 v47, {TAG}")
    hu_probe_issue(g, 1, 7, 40, 41)
    A("s_waitcnt vmcnt(0)")
    A("s_barrier")
    g.stamp(4)
    hl = [f"buffer_load_dwordx4 v[{GD+4*k}:{GD+4*k+3}], v{gT16 if k % 2 == 0 else aTb}, {WS}, {SO[k>>1]} offen sc1" for k in range(8)]
    def pre_1():
        for k in range(32):
            for q in range(2): tr(g, WF + 4 * k + 2 * q, aT if k < 16 else aT2, (k & 15) * 4096 + q * 512)
            if k >= 6:
                A("s_waitcnt lgkmcnt(12)"); mfma(g, AC + 4, WF + 4 * (k - 6), 12, k == 6)
        for k in range(26, 32):
            A(f"s_waitcnt lgkmcnt({2*(31-k)})"); mfma(g, AC + 4, WF + 4 * k, 12, False)
        g.stamp(10)
    staged(g, 1, 7, 40, 41, cfg.db, hl, pre_1, lambda iss: gather(g, hl, [GD + 4 * k + 3 for k in range(8)], 4, sleep=cfg.ps, issued=iss))
    for k in range(8): A(f"ds_write_b64 v{aW}, v[{GD+4*k}:{GD+4*k+1}] offset:{k*256}")
    g.stamp(11)
    A("s_waitcnt lgkmcnt(0)")
    A("s_barrier")
    for k in range(8): A(f"ds_read_b128 v[{HF+4*k}:{HF+4*k+3}], v{aF} offset:{k*64}")
    side = {}
    for k in range(8):
        side[k] = [f"v_dot2_f32_bf16 v40, v{GD+4*k}, v12, {'0' if k == 0 else 'v40'}", f"v_dot2_f32_bf16 v42, v{GD+4*k+1}, v12, {'0' if k == 0 else 'v42'}"]
        if k: side[k].append(f"v_add_f32 v41, v{GD+4*k+2}, {f'v{GD+2}' if k == 1 else 'v41'}")
    side.update({
        9: ["v_add_f32 v40, v40, v42"],
        10: ["v_add_f32_dpp v40, v40, v40 row_ror:8 row_mask:0xf bank_mask:0xf", "v_add_f32_dpp v41, v41, v41 row_ror:8 row_mask:0xf bank_mask:0xf"],
        11: ["v_mov_b32 v42, v40", "v_mov_b32 v43, v41"],
        12: ["v_permlane16_swap_b32 v40, v42", "v_permlane16_swap_b32 v41, v43"],
        13: ["v_pk_add_f32 v[40:41], v[40:41], v[42:43]"],
        14: ["v_mov_b32 v42, v40", "v_mov_b32 v43, v41"],
        15: ["v_permlane32_swap_b32 v40, v42", "v_permlane32_swap_b32 v41, v43"],
        16: ["v_pk_add_f32 v[40:41], v[40:41], v[42:43]"],
        17: ["s_mov_b32 exec_lo, 0xff", "s_mov_b32 exec_hi, 0", f"ds_write_b64 v{aTb2}, v[40:41]", "s_mov_b64 exec, -1"],
        20: ["s_barrier"] + [f"ds_read_b64 v[{48+2*w}:{49+2*w}], v27 offset:{w*64}" for w in range(4)],
        25: ["v_pk_add_f32 v[48:49], v[48:49], v[50:51]", "v_pk_add_f32 v[52:53], v[52:53], v[54:55]", "v_pk_add_f32 v[48:49], v[48:49], v[52:53]"],
        26: ["v_mul_f32 v48, 0x3a800000, v48", "v_mul_f32 v49, 0x3a800000, v49", "v_fma_f32 v49, -v48, v48, v49"],
        27: ["v_max_f32 v49, 0, v49", "v_cvt_pk_bf16_f32 v49, v49, v49", "v_lshlrev_b32 v49, 16, v49"],
        28: ["v_add_f32 v49, 0x3727c5ac, v49", "v_cvt_pk_bf16_f32 v49, v49, v49", "v_lshlrev_b32 v49, 16, v49"],
        29: ["v_sqrt_f32 v49, v49", "v_cvt_pk_bf16_f32 v48, v48, v48"],
        30: ["v_cvt_pk_bf16_f32 v49, v49, v49", "v_lshlrev_b32 v48, 16, v48", "v_lshlrev_b32 v49, 16, v49"],
        31: ["v_rcp_f32 v49, v49"],
    })
    seq = [("f", k) for k in range(8)]
    for k in range(32):
        need = seq.index(("f", k))
        if k == 20: need = max(need, seq.index(("w", 0)))
        if k == 25: need = max(need, seq.index(("s", 3)))
        A(f"s_waitcnt lgkmcnt({len(seq) - 1 - need})")
        mfma(g, AC, WF + 4 * k, HF + 4 * (k & 7), k == 0)
        if k + 8 < 32:
            A(f"ds_read_b128 v[{HF+4*(k&7)}:{HF+4*(k&7)+3}], v{aF} offset:{(k+8)*64}"); seq.append(("f", k + 8))
        for x_ in side.get(k, []): A(x_)
        if k == 17: seq.append(("w", 0))
        if k == 20: seq += [("s", w) for w in range(4)]
    g.nop(5)
    g.setexec(0x00ff00ff00ff00ff)
    for e in range(4): A(f"v_fma_f32 v{40+e}, -v48, v{AC+4+e}, v{AC+e}")
    for e in range(4): A(f"v_mul_f32 v{40+e}, v{40+e}, v49")
    for e in range(4): A(f"v_max_f32 v{40+e}, 0, v{40+e}")
    A("v_cvt_pk_bf16_f32 v44, v40, v41"); A("v_cvt_pk_bf16_f32 v45, v42, v43")
    A(f"buffer_store_dwordx4 v[44:47], v{gW}, {WS}, s9 offen {STL}")
    if cfg.local: A(f"buffer_store_dwordx4 v[44:47], v{gW}, {WS}, s10 offen sc1")
    g.stamp(12)
    A("s_branch L_done")

def role_attn(g):
    A = g.A; cfg = g.cfg
    STL = "" if cfg.local else "sc1"
    KF, VF, QF, SC, PV, GA = 64, 128, 192, 32, 208, 128
    PF, RS = 48, 56
    pV = [244, 245]; p2 = [4, 5]
    aK, aV, gQ, aQw, aVb, aMw, aMr, aPw, aPr, gAP = range(246, 256)
    gL16 = 18
    g.lab("L_attn")
    A("s_mov_b32 s6, s68")
    nk0 = cfg.nk0
    done = nk0
    npost = 0
    while done < 16:
        lo = done & 3
        dma4(g, SB, 1024, pK, waits=cfg.kw - 1, lo=lo)
        done += 4 - lo
        if done == cfg.g4: hu_post0(g, 4, 43, 12)
    srd(g, 44, 20, 32 << 20)
    A("v_lshlrev_b32 v22, 1, v3"); A("v_xor_b32 v22, v2, v22"); A("v_lshlrev_b32 v22, 4, v22"); A(f"v_lshl_add_u32 v{pV[0]}, v3, 8, v22"); A(f"v_xor_b32 v{pV[1]}, 128, v{pV[0]}")
    A(f"s_mov_b32 {sB}, s66"); A(f"s_add_u32 {sM}, {mW}, 0x10000")
    A("s_lshr_b32 s10, s7, 2"); A("s_lshl_b32 s10, s10, 16"); A("s_lshl_b32 s11, s4, 9"); A("s_add_u32 s10, s10, s11"); A(f"s_add_u32 {SO[0]}, s10, {W_QP}")
    for i in range(1, 4): A(f"s_add_u32 {SO[i]}, {SO[0]}, {i*262144}")
    A("v_lshrrev_b32 v22, 4, v0"); A("v_lshlrev_b32 v22, 12, v22"); A(f"v_lshl_add_u32 v{gQ}, v2, 4, v22")
    PVp = [pV[0], pV[1], pV[0], pV[1]]
    QD = 192
    ql = [f"buffer_load_dwordx4 v[{QD+8*k+4*h}:{QD+8*k+4*h+3}], v{gQ}, {WS}, {SO[k]} offen offset:{256*h} sc1" for k in range(4) for h in range(2)]
    for k in range(4):
        if k == cfg.qpos:
            for s in ql: A(s)
        dma4(g, SA, 1024, PVp, waits=cfg.vw - 1 + (8 if k >= cfg.qpos else 0))
        if 20 + 4 * k == cfg.g4: hu_post0(g, 4, 43, 12)
        if k == 0:
            A("v_lshl_add_u32 v27, v25, 2, v23"); A("v_lshl_add_u32 v27, v27, 5, v24"); A("v_lshl_add_u32 v22, v3, 2, v23")
            A("s_lshl_b32 s13, s3, 6"); A("v_xor_b32 v27, s13, v27")
            A(f"v_lshl_add_u32 v{aV}, v22, 8, v27"); A(f"v_add_u32 v{aV}, 0x10000, v{aV}"); A(f"v_xor_b32 v{aVb}, 32, v{aV}")
            A("v_xor_b32 v22, v3, v2"); A("v_lshlrev_b32 v22, 4, v22"); A(f"v_lshl_add_u32 v{aK}, v2, 8, v22"); A(f"v_add_u32 v{aK}, {mW}, v{aK}")
            A("v_mul_u32_u24 v22, 288, v16"); A(f"v_lshl_add_u32 v{aQw}, v17, 3, v22"); A(f"v_add_u32 v{aQw}, {QL}, v{aQw}")
            A("v_mul_u32_u24 v22, 288, v19"); A(f"v_lshl_add_u32 v{aF}, v3, 4, v22"); A(f"v_add_u32 v{aF}, {QL}, v{aF}")
            A(f"v_lshlrev_b32 v22, 4, v19"); A(f"v_add_u32 v{aMr}, {CB+4096}, v22"); A("s_lshl_b32 s13, s3, 2"); A(f"v_add_u32 v{aMw}, s13, v{aMr}")
            A(f"v_lshl_add_u32 v22, v3, 7, v22"); A(f"v_add_u32 v{aPr}, {CB}, v22"); A("s_lshl_b32 s13, s3, 10"); A(f"v_add_u32 v{aPw}, s13, v{aPr}")
            A(f"v_lshlrev_b32 v{gL16}, 4, v1")
            A("s_lshl_b32 s13, s3, 1"); A("v_lshrrev_b32 v22, 3, v2"); A("v_add_u32 v22, s13, v22"); A("v_lshl_add_u32 v22, v22, 2, v3"); A("v_lshlrev_b32 v22, 4, v22"); A(f"v_lshl_add_u32 v{gAP}, v19, 9, v22")
            A("v_cmp_lt_u32 s[66:67], 7, v2")
            for kk in range(1, 4): A(f"v_xor_b32 v{36+kk}, {kk*64}, v{aK}")
            A(f"v_mov_b32 v{RS+3}, {TAG}"); A(f"v_mov_b32 v{RS+6}, {TAG}"); A(f"v_mov_b32 v{RS+7}, {TAG}")
            A("v_mov_b32 v28, 0x3fb8aa3b"); A("v_mov_b32 v29, v28")
            A(f"v_lshl_add_u32 v{p2[0]}, v20, 11, v21"); A(f"v_xor_b32 v{p2[1]}, 64, v{p2[0]}")
    if cfg.qpos >= 4:
        A(f"s_waitcnt vmcnt({cfg.qw})")
        for s in ql: A(s)
    newer = max(0, 4 - cfg.qpos) * 4
    A(f"s_waitcnt vmcnt({16+8})")
    for tl in range(4):
        for k in range(4): A(f"ds_read_b128 v[{KF+16*tl+4*k}:{KF+16*tl+4*k+3}], v{aK if k == 0 else 36+k} offset:{tl*4096}")
    srd(g, 48, 30, 7340032)
    A("s_lshl_b32 s12, s4, 2"); A("s_add_u32 s12, s12, s3"); A(f"s_mul_i32 s12, s12, {112*2048}"); A("s_lshl_b32 s13, s7, 7"); A(f"s_add_u32 {sB}, s12, s13")
    A(f"s_mul_i32 {sM}, s3, {14*1024}")
    g.stamp(11)
    gather(g, ql, [QD + 4 * j + 2 for j in range(8)] + [QD + 4 * j + 3 for j in range(8)], 0, issued=True, newer=newer)
    g.stamp(4)
    for h in range(2):
        A(f"v_pk_add_f32 v[{12+2*h}:{13+2*h}], v[{QD+4*h}:{QD+4*h+1}], v[{QD+8+4*h}:{QD+9+4*h}]"); A(f"v_pk_add_f32 v[{32+2*h}:{33+2*h}], v[{QD+16+4*h}:{QD+17+4*h}], v[{QD+24+4*h}:{QD+25+4*h}]")
    for h in range(2): A(f"v_pk_add_f32 v[{12+2*h}:{13+2*h}], v[{12+2*h}:{13+2*h}], v[{32+2*h}:{33+2*h}]")
    A("v_cvt_pk_bf16_f32 v12, v12, v13"); A("v_cvt_pk_bf16_f32 v13, v14, v15")
    A(f"ds_write_b64 v{aQw}, v[12:13]")
    A("s_mov_b32 s9, 0x3db504f3"); A("s_mov_b32 s10, 0x3fb8aa3b")
    A("s_waitcnt lgkmcnt(0)")
    A("s_barrier")
    for k in range(4): A(f"ds_read_b128 v[{QF+4*k}:{QF+4*k+3}], v{aF} offset:{k*64}")
    P2 = [p2[0], p2[1], p2[0], p2[1]]
    n2 = cfg.w2e
    for k in range(n2 // 4): dma4(g, SB, 8 * 2048, P2)
    for k in range(4):
        A(f"s_waitcnt lgkmcnt({3-k})")
        for tl in range(4): mfma(g, SC + 4 * tl, KF + 16 * tl + 4 * k, QF + 4 * k, k == 0)
    g.nop(5)
    E = 64
    for p in range(8): A(f"v_cvt_pk_bf16_f32 v{PF+p}, v{SC+2*p}, v{SC+2*p+1}")
    for p in range(8):
        A(f"v_lshlrev_b32 v{E+2*p}, 16, v{PF+p}"); A(f"v_and_b32 v{E+2*p+1}, 0xffff0000, v{PF+p}")
    for e in range(16): A(f"v_mul_f32 v{E+e}, s9, v{E+e}")
    for p in range(8): A(f"v_cvt_pk_bf16_f32 v{PF+p}, v{E+2*p}, v{E+2*p+1}")
    for p in range(8):
        A(f"v_lshlrev_b32 v{E+2*p}, 16, v{PF+p}"); A(f"v_and_b32 v{E+2*p+1}, 0xffff0000, v{PF+p}")
    for k in range(5): A(f"v_max3_f32 v{32+k}, v{E+3*k}, v{E+3*k+1}, v{E+3*k+2}")
    A(f"v_max3_f32 v32, v32, v33, v{E+15}"); A("v_max3_f32 v34, v34, v35, v36"); A("v_max_f32 v30, v32, v34")
    xrow_reduce(g, [30], op="v_max_f32", steps=("p16", "p32"))
    g.setexec(0xff)
    A(f"ds_write_b32 v{aMw}, v30")
    g.full()
    for p in range(8): A(f"v_pk_mul_f32 v[{E+2*p}:{E+2*p+1}], v[{E+2*p}:{E+2*p+1}], v[28:29]")
    A("s_waitcnt lgkmcnt(0)")
    A("s_barrier")
    A(f"ds_read_b128 v[32:35], v{aMr}")
    A("s_lshl_b32 s9, s6, 12"); A(f"s_add_u32 s9, s9, {W_AP}"); A("s_lshl_b32 s11, s6, 7"); A(f"s_add_u32 s11, s11, {W_AS}")
    A("s_waitcnt lgkmcnt(0)")
    A("v_max3_f32 v30, v32, v33, v34"); A("v_max_f32 v30, v30, v35"); A(f"v_mul_f32 v{RS+4}, s10, v30")
    for e in range(16): A(f"v_sub_f32 v{E+e}, v{E+e}, v{RS+4}")
    for e in range(16): A(f"v_exp_f32 v{E+e}, v{E+e}")
    for p in range(8): A(f"v_cvt_pk_bf16_f32 v{PF+p}, v{E+2*p}, v{E+2*p+1}")
    g.setexec(0x00ff00ff00ff00ff)
    A(f"ds_write_b128 v{aPw}, v[{PF}:{PF+3}]"); A(f"ds_write_b128 v{aPw}, v[{PF+4}:{PF+7}] offset:512")
    g.full()
    for p in range(4): A(f"v_pk_add_f32 v[{E+4*p}:{E+4*p+1}], v[{E+4*p}:{E+4*p+1}], v[{E+4*p+2}:{E+4*p+3}]")
    A(f"v_pk_add_f32 v[{E}:{E+1}], v[{E}:{E+1}], v[{E+4}:{E+5}]"); A(f"v_pk_add_f32 v[{E+8}:{E+9}], v[{E+8}:{E+9}], v[{E+12}:{E+13}]")
    A(f"v_pk_add_f32 v[{E}:{E+1}], v[{E}:{E+1}], v[{E+8}:{E+9}]"); A(f"v_add_f32 v31, v{E}, v{E+1}")
    xrow_reduce(g, [31], steps=("p16", "p32"))
    g.setexec(0xff)
    A(f"ds_write_b32 v{aMw}, v31 offset:128")
    g.full()
    g.stamp(5)
    PFR, V0, V1, AO = 192, 128, 160, 224
    A(f"s_waitcnt vmcnt({n2+8}) lgkmcnt(0)")
    A("s_barrier")
    for h in range(4):
        A(f"ds_read_b128 v[{PFR+8*h}:{PFR+8*h+3}], v{aPr} offset:{2*h*512}")
        for tl in range(2):
            for q in range(2): tr(g, V0 + 8 * h + 4 * tl + 2 * q, [aV, aVb][tl], 2 * h * 8192 + q * 4096)
    for h in range(4):
        A(f"s_waitcnt lgkmcnt({15-5*h})")
        for tl in range(2): mfma(g, AO + 4 * tl, V0 + 8 * h + 4 * tl, PFR + 8 * h, h == 0)
    for h in range(4): A(f"ds_read_b128 v[{PFR+8*h+4}:{PFR+8*h+7}], v{aPr} offset:{(2*h+1)*512}")
    A(f"ds_read_b128 v[32:35], v{aMr} offset:128")
    A(f"s_waitcnt vmcnt({n2})")
    g.stamp(10)
    A("s_barrier")
    for h in range(4):
        for tl in range(2):
            for q in range(2): tr(g, V1 + 8 * h + 4 * tl + 2 * q, [aV, aVb][tl], (2 * h + 1) * 8192 + q * 4096)
    for h in range(4):
        A(f"s_waitcnt lgkmcnt({12-4*h})")
        for tl in range(2): mfma(g, AO + 4 * tl, V1 + 8 * h + 4 * tl, PFR + 8 * h + 4, False)
        if h == 0: A("v_pk_add_f32 v[32:33], v[32:33], v[34:35]")
        if h == 1: A(f"v_add_f32 v{RS+5}, v32, v33")
    A("s_cmp_lg_u32 s3, 0"); A("s_cbranch_scc1 L_nst")
    g.setexec(0xff)
    A(f"buffer_store_dwordx4 v[{RS+4}:{RS+7}], v{gL16}, {WS}, s11 offen sc1")
    g.full()
    g.lab("L_nst")
    g.nop(6)
    for e in range(4): A(f"v_cndmask_b32 v{40+e}, v{AO+e}, v{AO+4+e}, s[66:67]")
    pack24(g, RS, 40)
    A(f"buffer_store_dwordx4 v[{RS}:{RS+3}], v{gAP}, {WS}, s9 offen sc1")
    g.stamp(6)
    A("s_cmp_lg_u32 s3, 0"); A("s_cbranch_scc1 L_nohu0")
    hu_post(g, 0, RS + 7, 12)
    g.lab("L_nohu0")
    if cfg.gate: hu_wait(g, 5, 7, 40, 41, 0, backoff=2)
    else: g.sleep(cfg.w2sl)
    for k in range(n2 // 4, 3): dma4(g, SB, 8 * 2048, P2, waits=[0 if 4 * k + jj < cfg.w2n else None for jj in range(4)])
    dma4(g, SB, 8 * 2048, P2, hi=2)
    A("v_mul_u32_u24 v22, 928, v19"); A(f"v_add_u32 v22, {CB}, v22"); A("v_lshrrev_b32 v27, 3, v0"); A(f"v_lshl_add_u32 v{aW}, v27, 3, v22"); A(f"v_lshl_add_u32 v{aF}, v3, 4, v22")
    A("s_lshl_b32 s13, s3, 12"); A("v_lshlrev_b32 v22, 10, v3"); A(f"v_lshl_add_u32 v{gW}, v2, 4, v22"); A(f"v_add_u32 v{gW}, s13, v{gW}")
    A(f"s_mul_i32 {SO[0]}, s4, {112*128}"); A(f"s_add_u32 {SO[0]}, {SO[0]}, {W_AB}")
    for i in range(1, 3): A(f"s_add_u32 {SO[i]}, {SO[0]}, {i*4096}")
    A(f"s_add_u32 {SO[3]}, {SO[0]}, {3*4096}"); A("s_cmp_ge_u32 s3, 2"); A(f"s_cselect_b32 {SO[3]}, {SO[0]}, {SO[3]}")
    A("s_lshl_b32 s9, s7, 14"); A("s_lshl_b32 s10, s4, 7"); A("s_add_u32 s9, s9, s10"); A(f"s_add_u32 s9, s9, {W_FP}")
    A(f"v_mov_b32 v47, {TAG}")
    A("s_waitcnt vmcnt(0)")
    A("s_barrier")
    g.stamp(12)
    for k in range(14):
        for q in range(2): tr(g, 64 + 4 * k + 2 * q, aT, k * 4096 + q * 512)
    AD = 192
    al = [f"buffer_load_dwordx4 v[{AD+4*k}:{AD+4*k+3}], v{gT16}, {WS}, {SO[k]} offen sc1" for k in range(4)]
    g.sleep(cfg.d6)
    gather(g, al, [AD + 4 * k + 2 for k in range(4)] + [AD + 4 * k + 3 for k in range(4)], 5, toggle=SO, sleep=cfg.pl)
    for k in range(3): A(f"ds_write_b64 v{aW}, v[{AD+4*k}:{AD+4*k+1}] offset:{k*256}")
    A("s_cmp_ge_u32 s3, 2"); A("s_cbranch_scc1 L_a3"); A(f"ds_write_b64 v{aW}, v[{AD+12}:{AD+13}] offset:768"); g.lab("L_a3")
    g.stamp(13)
    A("s_waitcnt lgkmcnt(0)")
    A("s_barrier")
    for k in range(14): A(f"ds_read_b128 v[{128+4*k}:{131+4*k}], v{aF} offset:{k*64}")
    for k in range(14):
        A(f"s_waitcnt lgkmcnt({13-k})")
        mfma(g, 32, 64 + 4 * k, 128 + 4 * k, k == 0)
    g.setexec(0x00ff00ff00ff00ff)
    g.nop(6)
    pack24(g, 44, 32)
    A(f"buffer_store_dwordx4 v[44:47], v{gW}, {WS}, s9 offen sc1")
    g.full()
    A("s_cmp_lg_u32 s3, 0"); A("s_cbranch_scc1 L_nohu")
    hu_post(g, 2, 47, 12)
    g.lab("L_nohu")
    g.stamp(14)

def parse(argv=None):
    ap = argparse.ArgumentParser()
    ap.add_argument("-o", default="sequential_preLN__sliding_block_cached__dense_activation_relu__decode.s")
    D = dict(stamps=0, nt=1, pref=1, local=1, wc=1, wr=2, fb=300, early=1, nopoll=0, hu=1, hun=400, dumpo=0, huearly=1, swap=0, outst=0,
             gate=0, gmask=15, g3=16, g4=32,
             nk0=8, kwin=2, kw=8, vw=8, qpos=1, qw=8, w2e=0, w2sl=0, w2n=4,
             osl=0, on1=4, ow1=2, ow2=10, fsl=0, fn1=5, fw1=1, fw2=10,
             d2=3, d4=12, d6=0, d7=60, dt=12, da=0, db=0, dc=0, ps=4, pl=1)
    for k, d in D.items(): ap.add_argument(f"--{k}", type=int, default=d)
    return ap.parse_args(argv)

if __name__ == "__main__":
    cfg = parse()
    open(cfg.o, "w").write(gen(cfg))
```

```python
import sys, argparse
sys.path.insert(0, "bench")
from asmlib import wrap

RQ = 98304
SCR = 131072
ACT = SCR
STL_ = SCR + 8 * 2080
QL = SCR + 8 * 544
CB = QL + 8 * 288
LDS_END = CB + 4 * 8 * 528
assert STL_ + 256 <= LDS_END <= 163840

W_QP = 0x100000
W_AP = 0x200000
W_AS = 0x280000
W_OB = 0x290000
W_HB = 0x2C0000
W_HS = 0x2D0000
W_HU = 0x2E0000
W_OP = 0x500000
W_AB = 0x340000
W_FP = 0x380000
BDELTA = 0x400000
STAMP_OFF = 128 << 20

WS, XO, SA, SB = "s[36:39]", "s[40:43]", "s[44:47]", "s[48:51]"
TAG = "s8"
PK0, PK1, PK2, UP0, UP1, PCNT = "s52", "s53", "s54", "s55", "s56", "s57"
SO = ["s58", "s59", "s60", "s61"]
mW, sB, sM, sI = "s62", "s63", "s64", "s65"

DOC = '''    ; One persistent launch, 256 workgroups (one per CU), 4 waves each.  x = wg&7, r = wg>>3.
'''

class G:
    def __init__(self, cfg):
        self.L = []; self.cfg = cfg; self.nlab = 0
    def A(self, s): self.L.append("    " + s)
    def lab(self, s): self.L.append(s + ":")
    def newlab(self, p="L"):
        self.nlab += 1; return f"{p}_{self.nlab}"
    def nop(self, n):
        while n > 0:
            k = min(n, 16); self.A(f"s_nop {k-1}"); n -= k
    def setexec(self, m):
        lo, hi = m & 0xffffffff, m >> 32
        if hi == 0 and lo <= 64: self.A(f"s_mov_b64 exec, {lo}")
        else:
            self.A(f"s_mov_b32 exec_lo, {hex(lo)}"); self.A(f"s_mov_b32 exec_hi, {hex(hi)}")
    def full(self): self.A("s_mov_b64 exec, -1")
    def stamp(self, idx):
        if self.cfg.stamps: self.A(f"s_memrealtime s[{70+2*idx}:{71+2*idx}]")
    def sleep(self, n):
        while n > 0:
            k = min(n, 127); self.A(f"s_sleep {k}"); n -= k

def srd(g, d, p, n):
    if d != p: g.A(f"s_mov_b32 s{d}, s{p}"); g.A(f"s_mov_b32 s{d+1}, s{p+1}")
    g.A(f"s_mov_b32 s{d+2}, {n}"); g.A(f"s_mov_b32 s{d+3}, 0x20000")

def dma4(g, sr, step, pats, waits=None, lo=0, hi=4, adv=True):
    nt = " nt" if g.cfg.nt else ""
    g.A(f"s_mov_b32 m0, {sM}")
    for jj in range(lo, hi):
        w = None if waits is None else (waits if isinstance(waits, int) else waits[jj])
        if w is not None: g.A(f"s_waitcnt vmcnt({w})")
        off = jj * (step - 1024)
        if off: g.A(f"s_add_u32 s15, {sB}, {off}")
        elif w is None and jj == lo: g.A("s_nop 0")
        g.A(f"buffer_load_dwordx4 v{pats[jj]}, {sr}, {'s15' if off else sB} offen offset:{jj*1024}{nt} lds")
    if adv: g.A(f"s_add_u32 {sB}, {sB}, {4*step}"); g.A(f"s_add_u32 {sM}, {sM}, 4096")

def dma_loop(g, sr, step, pats, ngroups, win):
    l = g.newlab("L_dl")
    g.A(f"s_mov_b32 {sI}, 0")
    g.lab(l)
    dma4(g, sr, step, pats, waits=win - 1)
    g.A(f"s_add_u32 {sI}, {sI}, 1"); g.A(f"s_cmp_lt_u32 {sI}, {ngroups}"); g.A(f"s_cbranch_scc1 {l}")

def tagcheck(g, tagregs, tmp=10):
    g.A(f"v_xor_b32 v{tmp}, {TAG}, v{tagregs[0]}")
    for t in tagregs[1:]: g.A(f"v_bitop3_b32 v{tmp}, v{tmp}, v{t}, {TAG} bitop3:0xF6")
    g.A(f"v_cmp_ne_u32 vcc, 0, v{tmp}")

def gather(g, loads, tagregs, stage, issued=False, newer=0, late=None, toggle=(), sleep=0):
    l = g.newlab("L_g"); e = g.newlab("L_ge")
    if g.cfg.nopoll:
        g.A(f"s_waitcnt vmcnt({newer})"); return
    if not issued:
        for s in loads: g.A(s)
    g.A(f"s_mov_b32 {PCNT}, 0")
    g.A(f"s_waitcnt vmcnt({newer})")
    tagcheck(g, tagregs)
    g.A(f"s_cbranch_vccz {e}")
    g.lab(l)
    g.sleep(sleep)
    for s in loads: g.A(s)
    g.A(f"s_add_u32 {PCNT}, {PCNT}, 1")
    g.A("s_waitcnt vmcnt(0)")
    tagcheck(g, tagregs)
    g.A(f"s_cbranch_vccz {e}")
    if g.cfg.local and (late or toggle):
        sk = g.newlab("L_gl")
        g.A(f"s_cmp_lt_u32 {PCNT}, {g.cfg.fb}"); g.A(f"s_cbranch_scc1 {sk}")
        for t in toggle: g.A(f"s_xor_b32 {t}, {t}, {BDELTA}")
        if late:
            g.A(f"s_cmp_lg_u32 {PCNT}, {g.cfg.fb}"); g.A(f"s_cbranch_scc1 {sk}")
            late()
        g.lab(sk)
    g.A(f"s_cmp_lt_u32 {PCNT}, 150000")
    g.A(f"s_cbranch_scc1 {l}")
    g.lab(e)
    if g.cfg.stamps: g.A(f"s_min_u32 {PCNT}, {PCNT}, 15"); g.A(f"s_lshl_b32 {PCNT}, {PCNT}, {4*stage}"); g.A(f"s_add_u32 s69, s69, {PCNT}")

def hu_wait(g, which, nmask, addr, dst, delay, backoff=0):
    if not g.cfg.hu or g.cfg.nopoll: return
    l = g.newlab("L_hu"); e = g.newlab("L_hue")
    g.A(f"v_and_b32 v{addr}, {nmask}, v1"); g.A(f"v_lshlrev_b32 v{addr}, 4, v{addr}")
    g.A("s_lshl_b32 s15, s4, 8"); g.A(f"s_add_u32 s15, s15, {W_HU + which*2048}")
    g.A(f"s_mov_b32 {PCNT}, 0")
    g.lab(l)
    g.sleep(backoff)
    g.A(f"buffer_load_dword v{dst}, v{addr}, {WS}, s15 offen sc1")
    g.A(f"s_add_u32 {PCNT}, {PCNT}, 1")
    g.A("s_waitcnt vmcnt(0)")
    g.A(f"v_cmp_ne_u32 vcc, {TAG}, v{dst}")
    g.A(f"s_cbranch_vccz {e}")
    g.A(f"s_cmp_lt_u32 {PCNT}, {g.cfg.hun}"); g.A(f"s_cbranch_scc1 {l}")
    g.lab(e)
    g.sleep(delay)

def hu_probe_issue(g, which, nmask, addr, dst):
    if not (g.cfg.hu and g.cfg.huearly) or g.cfg.nopoll: return
    g.A(f"v_and_b32 v{addr}, {nmask}, v1"); g.A(f"v_lshlrev_b32 v{addr}, 4, v{addr}")
    g.A("s_lshl_b32 s15, s4, 8"); g.A(f"s_add_u32 s15, s15, {W_HU + which*2048}")
    g.A(f"buffer_load_dword v{dst}, v{addr}, {WS}, s15 offen sc1")

def staged(g, which, nmask, addr, dst, delay, loads, preload, fin):
    if not (g.cfg.hu and g.cfg.huearly) or g.cfg.nopoll:
        preload(); hu_wait(g, which, nmask, addr, dst, delay); fin(False); return
    late = g.newlab("L_st"); go = g.newlab("L_sg")
    g.A(f"v_cmp_ne_u32 vcc, {TAG}, v{dst}")
    g.A(f"s_cbranch_vccnz {late}")
    for x_ in loads: g.A(x_)
    g.A("s_mov_b32 s67, 1") if False else None
    g.lab(late)
    g.A("s_mov_b64 s[88:89], vcc") if False else None
    g.A("s_cselect_b32 s0, 0, 0") if False else None
    g.A("s_mov_b64 s[0:1], vcc")
    preload()
    g.A("s_cmp_eq_u64 s[0:1], 0"); g.A(f"s_cbranch_scc1 {go}")
    hu_wait(g, which, nmask, addr, dst, delay)
    for x_ in loads: g.A(x_)
    g.lab(go)
    fin(True)

def hu_post(g, which, tagreg, tmp):
    if not g.cfg.hu: return
    g.A("s_lshl_b32 s15, s4, 4"); g.A("s_add_u32 s15, s15, s7"); g.A("s_lshl_b32 s15, s15, 4"); g.A(f"s_add_u32 s15, s15, {W_HU + which*2048}")
    g.A(f"v_mov_b32 v{tmp}, 0"); g.A("s_mov_b64 exec, 1")
    g.A(f"buffer_store_dword v{tagreg}, v{tmp}, {WS}, s15 offen")
    g.full()

def hu_post0(g, which, tagreg, tmp, force=False):
    if not (g.cfg.hu and (g.cfg.gate or force)): return
    sk = g.newlab("L_hp")
    g.A("s_cmp_lg_u32 s3, 0"); g.A(f"s_cbranch_scc1 {sk}")
    hu_post(g, which, tagreg, tmp)
    g.lab(sk)

def pack24(g, d, a):
    g.A(f"v_perm_b32 v{d}, v{a}, v{a+3}, {PK0}"); g.A(f"v_perm_b32 v{d+1}, v{a+1}, v{a+3}, {PK1}"); g.A(f"v_perm_b32 v{d+2}, v{a+2}, v{a+3}, {PK2}")
def unpack24_d(g, b):
    g.A(f"v_perm_b32 v{b+3}, v{b+1}, v{b}, {UP0}"); g.A(f"v_perm_b32 v{b+3}, v{b+2}, v{b+3}, {UP1}")
def bf16_round(g, d, s):
    g.A(f"v_cvt_pk_bf16_f32 v{d}, v{s}, v{s}"); g.A(f"v_lshlrev_b32 v{d}, 16, v{d}")
def xrow_reduce(g, regs, op="v_add_f32", steps=("ror8", "p16", "p32"), tmp=11):
    n = len(regs)
    for st in steps:
        if st.startswith("ror"):
            g.nop(max(0, 3 - n))
            for r in regs: g.A(f"{op}_dpp v{r}, v{r}, v{r} row_ror:{st[3:]} row_mask:0xf bank_mask:0xf")
        else:
            ins = "v_permlane16_swap_b32" if st == "p16" else "v_permlane32_swap_b32"
            for k, r in enumerate(regs): g.A(f"v_mov_b32 v{tmp+k}, v{r}")
            g.nop(max(0, 3 - n))
            for k, r in enumerate(regs): g.A(f"{ins} v{r}, v{tmp+k}")
            g.nop(max(0, 2 - n))
            for k, r in enumerate(regs): g.A(f"{op} v{r}, v{r}, v{tmp+k}")
def mfma(g, d, a, b, first):
    g.A(f"v_mfma_f32_16x16x32_bf16 v[{d}:{d+3}], v[{a}:{a+3}], v[{b}:{b+3}], {'0' if first else f'v[{d}:{d+3}]'}")
def tr(g, d, addr, off):
    g.A(f"ds_read_b64_tr_b16 v[{d}:{d+1}], v{addr} offset:{off}")

pA, pB, aT, aT2, aF, gT16 = 4, 5, 6, 7, 8, 9
gW, aW, aTb, aTb2 = 28, 29, 30, 31
WF, AC, GD = 64, 32, 192
pK = [240, 241, 242, 243]

def gen(cfg):
    g = G(cfg); A = g.A
    g.stamp(0)
    A("s_load_dwordx16 s[16:31], s[0:1], 0")
    A("s_load_dwordx4 s[32:35], s[0:1], 64")
    A("s_load_dwordx2 s[36:37], s[0:1], 80")
    A("s_cmp_ge_u32 s2, 256"); A("s_cbranch_scc1 L_end")
    A("v_lshrrev_b32 v7, 6, v0"); A("v_and_b32 v1, 63, v0")
    A("s_lshr_b32 s5, s2, 3")
    if cfg.pref:
        A("s_getpc_b64 s[10:11]"); g.lab("L_begin")
        A("s_lshl_b32 s9, s5, 8"); A("v_add_u32 v10, s9, v0"); A("v_and_b32 v10, 1023, v10"); A("v_lshlrev_b32 v10, 4, v10")
        A("s_mov_b32 s9, L_end - L_begin - 64"); A("v_min_u32 v10, s9, v10")
        A("global_load_dwordx4 v[12:15], v10, s[10:11]")
    A("v_readfirstlane_b32 s3, v7")
    A("s_and_b32 s4, s2, 7"); A("s_and_b32 s7, s5, 15"); A("s_lshl_b32 s6, s4, 5"); A("s_add_u32 s6, s6, s5")
    if cfg.swap: A("s_xor_b32 s5, s5, 16")
    A("v_and_b32 v2, 15, v1"); A("v_lshrrev_b32 v3, 4, v1")
    A("v_lshrrev_b32 v16, 5, v0"); A("v_and_b32 v17, 31, v0")
    A("v_lshlrev_b32 v18, 11, v16"); A("v_lshl_add_u32 v18, v17, 4, v18")
    A("s_lshr_b32 s9, s6, 6")
    A("v_lshrrev_b32 v20, 3, v1"); A("v_and_b32 v19, 7, v1")
    A("v_bfe_u32 v21, v1, 4, 1"); A("v_lshlrev_b32 v21, 1, v21"); A("v_xor_b32 v21, v19, v21"); A("v_lshlrev_b32 v21, 4, v21")
    A(f"v_lshl_add_u32 v{pA}, v20, 13, v21"); A(f"v_xor_b32 v{pB}, 64, v{pA}")
    A("s_lshl_b32 s12, s9, 2"); A("s_add_u32 s12, s12, s3"); A("s_lshl_b32 s12, s12, 19"); A("s_and_b32 s13, s6, 63"); A("s_lshl_b32 s13, s13, 7"); A(f"s_add_u32 {sB}, s12, s13")
    A(f"s_lshl_b32 {sM}, s3, 13"); A(f"s_add_u32 {sM}, {sM}, {RQ}")
    A("s_lshl_b32 s13, s9, 9"); A("s_add_u32 s14, s13, 512"); A("s_and_b32 s14, s14, 0x600"); A("s_xor_b32 s12, s13, 1024"); A("s_xor_b32 s9, s14, 1024")
    A("s_waitcnt lgkmcnt(0)")
    srd(g, 40, 16, 16384)
    for i, s in enumerate(["s13", "s14", "s12", "s9"]): A(f"buffer_load_dwordx4 v[{GD+4*i}:{GD+4*i+3}], v18, {XO}, {s} offen")
    srd(g, 44, 22, 8 << 20)
    A("s_load_dword s8, s[36:37], 0")
    for k in range(2): dma4(g, SA, 8 * 8192, [pA, pB, pA, pB])
    g.stamp(1)
    srd(g, 36, 36, 256 << 20); srd(g, 48, 18, 32 << 20)
    A(f"s_mov_b32 {PK0}, 0x07060501"); A(f"s_mov_b32 {PK1}, 0x07060502"); A(f"s_mov_b32 {PK2}, 0x07060503"); A(f"s_mov_b32 {UP0}, 0x0C04000C"); A(f"s_mov_b32 {UP1}, 0x0402010C")
    if cfg.stamps: A("s_mov_b32 s69, 0")
    A("v_mul_u32_u24 v22, 544, v16"); A(f"v_lshl_add_u32 v{aW}, v17, 4, v22"); A(f"v_add_u32 v{aW}, {ACT}, v{aW}")
    A("v_mul_u32_u24 v22, 544, v19"); A(f"v_lshl_add_u32 v{aF}, v3, 4, v22"); A(f"v_add_u32 v{aF}, {ACT}, v{aF}")
    A("v_bfe_u32 v23, v1, 2, 2"); A("v_and_b32 v24, 3, v1"); A("v_lshlrev_b32 v24, 3, v24"); A("v_and_b32 v25, 1, v3"); A("v_lshl_add_u32 v26, v3, 3, v23")
    A("v_lshrrev_b32 v27, 1, v23"); A("v_lshl_add_u32 v27, v25, 1, v27"); A("v_xor_b32 v27, s3, v27"); A("v_lshl_add_u32 v27, v27, 5, v24"); A(f"v_lshl_add_u32 v{aT}, v26, 7, v27")
    A(f"v_add_u32 v{aT2}, 0x10000, v{aT}")
    A(f"v_lshlrev_b32 v{gT16}, 4, v0")
    A("s_lshl_b32 s13, s3, 6"); A("v_lshlrev_b32 v27, 9, v2"); A(f"v_lshl_add_u32 v{gW}, v3, 4, v27"); A(f"v_add_u32 v{gW}, s13, v{gW}")
    A("v_xor_b32 v27, v2, v3"); A("v_lshlrev_b32 v27, 4, v27"); A(f"v_lshl_add_u32 v{pK[0]}, v3, 8, v27")
    for k in range(1, 4): A(f"v_xor_b32 v{pK[k]}, {k*64}, v{pK[0]}")
    A("s_lshl_b32 s68, s4, 4"); A("s_add_u32 s68, s68, s7")
    A("s_lshr_b32 s12, s68, 2"); A("s_lshl_b32 s12, s12, 20"); A("s_and_b32 s13, s68, 3"); A("s_lshl_b32 s13, s13, 16"); A("s_add_u32 s12, s12, s13")
    A(f"s_lshl_b32 {mW}, s3, 14"); A(f"s_add_u32 s12, s12, {mW}"); A("s_add_u32 s66, s12, 0xC0000")
    A(f"s_mov_b32 {sB}, s66"); A(f"s_mov_b32 {sM}, {mW}")
    A("s_lshl_b32 s9, s6, 12"); A(f"s_add_u32 s9, s9, {W_QP}")
    A("s_waitcnt lgkmcnt(0)")
    A("s_mul_i32 s8, s8, 0x9E3779B1"); A("s_add_u32 s8, s8, 0x7F4A7C15")
    U = 96
    A("s_waitcnt vmcnt(8)")
    g.stamp(5)
    for d in range(16):
        A(f"v_lshlrev_b32 v{U+2*d}, 16, v{GD+d}"); A(f"v_and_b32 v{U+2*d+1}, 0xffff0000, v{GD+d}")
    A(f"v_pk_add_f32 v[40:41], v[{U}:{U+1}], v[{U+2}:{U+3}]"); A(f"v_pk_add_f32 v[42:43], v[{U+4}:{U+5}], v[{U+6}:{U+7}]")
    for d in range(4, 16): A(f"v_pk_add_f32 v[{40+2*(d&1)}:{41+2*(d&1)}], v[{40+2*(d&1)}:{41+2*(d&1)}], v[{U+2*d}:{U+2*d+1}]")
    A("v_pk_add_f32 v[40:41], v[40:41], v[42:43]"); A("v_add_f32 v40, v40, v41")
    xrow_reduce(g, [40], steps=("ror8", "ror4", "ror2", "ror1", "p16"))
    A("v_mul_f32 v40, 0xba800000, v40"); A("v_mov_b32 v41, v40")
    for d in range(16):
        r = WF + 2 * (d & 7)
        A(f"v_pk_add_f32 v[{r}:{r+1}], v[{U+2*d}:{U+2*d+1}], v[40:41]")
        a = 44 + 2 * (d & 1)
        if d < 2: A(f"v_pk_mul_f32 v[{a}:{a+1}], v[{r}:{r+1}], v[{r}:{r+1}]")
        else: A(f"v_pk_fma_f32 v[{a}:{a+1}], v[{r}:{r+1}], v[{r}:{r+1}], v[{a}:{a+1}]")
    A("v_pk_add_f32 v[44:45], v[44:45], v[46:47]"); A("v_add_f32 v44, v44, v45")
    xrow_reduce(g, [44], steps=("ror8", "ror4", "ror2", "ror1", "p16"))
    A("v_mul_f32 v44, 0x3a800000, v44")
    bf16_round(g, 40, 40); bf16_round(g, 44, 44)
    A("v_add_f32 v44, 0x3727c5ac, v44"); bf16_round(g, 44, 44)
    A("v_sqrt_f32 v44, v44"); A("v_mov_b32 v41, v40")
    for d in range(4): A(f"v_pk_add_f32 v[{U+2*d}:{U+2*d+1}], v[{U+2*d}:{U+2*d+1}], v[40:41]")
    bf16_round(g, 44, 44)
    A("v_rcp_f32 v46, v44"); A("v_sub_f32 v44, 0, v44"); A("v_mov_b32 v45, v44")
    for d in range(4): A(f"v_cvt_pk_bf16_f32 v{48+d}, v{U+2*d}, v{U+2*d+1}")
    A("v_mov_b32 v47, v46")
    for d in range(4):
        A(f"v_lshlrev_b32 v{U+2*d}, 16, v{48+d}"); A(f"v_and_b32 v{U+2*d+1}, 0xffff0000, v{48+d}")
    for d in range(4): A(f"v_pk_mul_f32 v[{U+16+2*d}:{U+17+2*d}], v[{U+2*d}:{U+2*d+1}], v[46:47]")
    for d in range(4): A(f"v_pk_fma_f32 v[{U+2*d}:{U+2*d+1}], v[{U+16+2*d}:{U+17+2*d}], v[44:45], v[{U+2*d}:{U+2*d+1}]")
    for d in range(4): A(f"v_pk_fma_f32 v[{U+16+2*d}:{U+17+2*d}], v[{U+2*d}:{U+2*d+1}], v[46:47], v[{U+16+2*d}:{U+17+2*d}]")
    for d in range(4): A(f"v_cvt_pk_bf16_f32 v{48+d}, v{U+16+2*d}, v{U+17+2*d}")
    A(f"ds_write_b128 v{aW}, v[48:51]")
    g.stamp(2)
    A(f"v_mov_b32 v14, {TAG}"); A(f"v_mov_b32 v15, {TAG}"); A(f"v_mov_b32 v42, {TAG}"); A(f"v_mov_b32 v43, {TAG}")
    nk0 = cfg.nk0
    A("s_cmp_lt_u32 s5, 16"); A("s_cbranch_scc1 L_nok")
    done = 0
    while done < nk0:
        n = min(4, nk0 - done)
        dma4(g, SB, 1024, pK, waits=[max(0, 7 - min(7, done + jj + cfg.kwin)) + done + jj for jj in range(4)], hi=n, adv=(n == 4))
        done += n
    A(f"s_waitcnt vmcnt({nk0}) lgkmcnt(0)"); A("s_branch L_qb")
    g.lab("L_nok")
    A("s_waitcnt vmcnt(0) lgkmcnt(0)")
    g.lab("L_qb")
    A("s_barrier")
    XFq = 192
    for k in range(8):
        A(f"ds_read_b128 v[{XFq+4*k}:{XFq+4*k+3}], v{aF} offset:{k*64}")
        for q in range(2): tr(g, WF + 4 * k + 2 * q, aT2, RQ - 65536 + k * 4096 + q * 512)
        if k >= 4:
            A("s_waitcnt lgkmcnt(12)"); mfma(g, AC, WF + 4 * (k - 4), XFq + 4 * (k - 4), k == 4)
    for k in range(4, 8):
        A(f"s_waitcnt lgkmcnt({3*(7-k)})"); mfma(g, AC, WF + 4 * k, XFq + 4 * k, False)
    g.setexec(0x00ff00ff00ff00ff)
    g.nop(6)
    A(f"v_mov_b32 v12, v{AC}"); A(f"v_mov_b32 v13, v{AC+1}"); A(f"v_mov_b32 v40, v{AC+2}"); A(f"v_mov_b32 v41, v{AC+3}")
    A(f"buffer_store_dwordx4 v[12:15], v{gW}, {WS}, s9 offen sc1")
    A(f"buffer_store_dwordx4 v[40:43], v{gW}, {WS}, s9 offen offset:256 sc1")
    g.full()
    g.stamp(3)
    A("s_cmp_eq_u32 s5, 15"); A("s_cbranch_scc1 L_done")
    A("s_barrier")
    A("s_cmp_ge_u32 s5, 16"); A("s_cbranch_scc1 L_attn")
    A(f"s_lshl_b32 {sM}, s3, 15")
    A("s_cmp_ge_u32 s5, 8"); A("s_cbranch_scc1 L_f1")
    role_o(g)
    role_f1(g)
    role_attn(g)
    g.lab("L_done")
    g.stamp(15)
    if cfg.stamps == 2:
        g.full()
        A("s_cmp_ge_u32 s5, 8"); A("s_cbranch_scc1 L_end")
        A("s_waitcnt lgkmcnt(0)"); A("s_not_b32 s70, s70")
        for i in range(16): A(f"v_writelane_b32 v10, s{70+2*i}, {i}")
        srd(g, 44, 34, 256); A("v_lshlrev_b32 v11, 2, v1"); g.setexec(0xffff)
        A("buffer_atomic_umax v10, v11, s[44:47], 0 offen sc1")
    if cfg.stamps == 1:
        g.full()
        A("s_waitcnt lgkmcnt(0)"); A("s_mov_b32 s72, s69")
        for i in range(16): A(f"v_writelane_b32 v10, s{70+2*i}, {i}")
        A("s_lshl_b32 s9, s2, 4"); A("s_add_u32 s9, s9, s3"); A("s_lshl_b32 s9, s9, 6"); A(f"s_add_u32 s9, s9, {STAMP_OFF}")
        A("v_lshlrev_b32 v11, 2, v1"); g.setexec(0xffff)
        A(f"buffer_store_dword v10, v11, {WS}, s9 offen")
    g.lab("L_end"); A("s_endpgm")
    return wrap(DOC + "\n".join(g.L), 256, 256, LDS_END, vgpr=256, sgpr=102)

def role_o(g):
    A = g.A; cfg = g.cfg
    gOUT, gL16, gP, gS = 62, 63, 18, 27
    PO = [240, 241, 242, 243]
    AO, XF = 208, 192
    A("s_lshr_b32 s12, s7, 1"); A("s_lshl_b32 s11, s4, 2"); A("s_add_u32 s12, s12, s11"); A("s_and_b32 s13, s7, 1")
    for k in range(4): A(f"v_xor_b32 v{PO[k]}, {2*k}, v1");
    for k in range(4): A(f"v_lshlrev_b32 v{PO[k]}, 4, v{PO[k]}")
    srd(g, 44, 24, 8 << 20)
    A("s_lshl_b32 s6, s4, 3"); A("s_add_u32 s6, s6, s7"); A("s_lshl_b32 s14, s6, 2"); A("s_add_u32 s14, s14, s3")
    A(f"v_lshlrev_b32 v{gOUT}, 11, v19"); A("s_lshl_b32 s68, s14, 3")
    A(f"buffer_load_dwordx2 v[60:61], v{gOUT}, {XO}, s68 offen")
    A("s_lshl_b32 s10, s12, 2"); A("s_add_u32 s10, s10, s3"); A("s_lshl_b32 s10, s10, 16"); A("s_lshl_b32 s11, s13, 10"); A(f"s_add_u32 {sB}, s10, s11")
    if not cfg.gate: g.sleep(cfg.osl)
    w0 = [cfg.ow1 - 1 if k < cfg.on1 else cfg.ow2 - 1 for k in range(8)]
    dma4(g, SA, 2048, PO, waits=w0[:4]); dma4(g, SA, 2048, PO, waits=w0[4:])
    A(f"s_mov_b32 {sI}, 1")
    l = g.newlab("L_dl")
    g.lab(l)
    for k in range(4): A(f"v_xor_b32 v{PO[k]}, 128, v{PO[k]}")
    dma4(g, SA, 2048, PO, waits=cfg.ow2 - 1); dma4(g, SA, 2048, PO, waits=cfg.ow2 - 1)
    A(f"s_add_u32 {sI}, {sI}, 1"); A(f"s_cmp_lt_u32 {sI}, 4"); A(f"s_cbranch_scc1 {l}")
    A("v_lshl_add_u32 v22, v25, 2, v23"); A("v_lshl_add_u32 v22, v22, 5, v24"); A("s_lshl_b32 s11, s3, 8")
    A(f"v_lshl_add_u32 v{aT}, v26, 10, v22"); A(f"v_add_u32 v{aT}, s11, v{aT}")
    A("v_mul_u32_u24 v22, 288, v16"); A(f"v_lshl_add_u32 v{aW}, v17, 3, v22"); A(f"v_add_u32 v{aW}, {ACT}, v{aW}")
    A("v_mul_u32_u24 v22, 288, v19"); A(f"v_lshl_add_u32 v{aF}, v3, 4, v22"); A(f"v_add_u32 v{aF}, {ACT}, v{aF}")
    A("s_lshl_b32 s11, s3, 3"); A("v_lshrrev_b32 v22, 3, v2"); A("v_add_u32 v22, s11, v22"); A("v_lshl_add_u32 v22, v22, 2, v3"); A("v_lshlrev_b32 v22, 12, v22"); A(f"v_lshl_add_u32 v{gW}, v19, 4, v22")
    A("v_lshlrev_b32 v22, 16, v16"); A(f"v_lshl_add_u32 v{gP}, v17, 4, v22")
    A("v_lshlrev_b32 v22, 11, v16"); A(f"v_lshl_add_u32 v{gS}, v24, 4, v22")
    A("v_cmp_lt_u32 s[66:67], 7, v2")
    for r_ in (47, 50, 51, 54, 55): A(f"v_mov_b32 v{r_}, {TAG}")
    A(f"v_lshlrev_b32 v{gL16}, 4, v1")
    A("s_lshl_b32 s10, s3, 6"); A(f"v_lshl_add_u32 v{aTb2}, v19, 3, s10"); A(f"v_add_u32 v{aTb2}, {STL_}, v{aTb2}")
    A("s_lshr_b32 s10, s12, 3"); A("s_and_b32 s11, s12, 7")
    A(f"s_lshl_b32 {SO[0]}, s10, 14"); A("s_lshl_b32 s9, s11, 9"); A(f"s_add_u32 {SO[0]}, {SO[0]}, s9"); A(f"s_add_u32 {SO[0]}, {SO[0]}, {W_AP}")
    for i in range(1, 4): A(f"s_add_u32 {SO[i]}, {SO[0]}, {i*4096}")
    A("s_lshl_b32 s10, s10, 9"); A("s_lshl_b32 s11, s11, 4"); A("s_add_u32 s11, s11, s10"); A(f"s_add_u32 s11, s11, {W_AS}")
    A("s_lshl_b32 s9, s13, 19"); A("s_lshl_b32 s10, s12, 7"); A("s_add_u32 s9, s9, s10"); A(f"s_add_u32 s9, s9, {W_OP}")
    A(f"s_add_u32 s10, s9, 32768"); A("s_add_u32 s12, s9, 65536"); A("s_add_u32 s13, s9, 98304")
    hu_probe_issue(g, 0, 15, 40, 41)
    A("s_waitcnt vmcnt(0)")
    A("s_barrier")
    g.stamp(4)
    hu_post0(g, 5, 55, 12)
    GA = 192
    cl = [f"buffer_load_dwordx4 v[{GA+16}:{GA+19}], v{gS}, {WS}, s11 offen sc1"] + [f"buffer_load_dwordx4 v[{GA+4*k}:{GA+4*k+3}], v{gP}, {WS}, {SO[k]} offen sc1" for k in range(4)]
    def pre_o():
        for tt in range(8):
            a0, a1 = 12 + 2 * (tt & 1), 13 + 2 * (tt & 1)
            A(f"v_xor_b32 v{a0}, {tt*32}, v{aT}"); A(f"v_add_u32 v{a1}, 0x10000, v{a0}")
            for k in range(4):
                for q in range(2): tr(g, WF + 16 * tt + 4 * k + 2 * q, a0 if k < 2 else a1, (k & 1) * 32768 + q * 4096)
        srd(g, 40, 32, 16384)
        for p in range(2):
            A(f"v_lshlrev_b32 v{56+2*p}, 16, v{60+p}"); A(f"v_and_b32 v{57+2*p}, 0xffff0000, v{60+p}")
    staged(g, 0, 15, 40, 41, cfg.da, cl, pre_o, lambda iss: gather(g, cl, [GA + 18, GA + 19] + [GA + 4 * k + 3 for k in range(4)], 2, sleep=cfg.ps, issued=iss))
    M, Lr = GA + 16, GA + 17
    A(f"v_max_f32_dpp v36, v{M}, v{M} quad_perm:[1,0,3,2] row_mask:0xf bank_mask:0xf")
    unpack24_d(g, GA)
    A("v_max_f32_dpp v36, v36, v36 quad_perm:[2,3,0,1] row_mask:0xf bank_mask:0xf")
    A(f"v_sub_f32 v37, v{M}, v36"); A("v_exp_f32 v37, v37")
    unpack24_d(g, GA + 4)
    A(f"v_mul_f32 v38, v37, v{Lr}")
    unpack24_d(g, GA + 8)
    A("v_add_f32_dpp v38, v38, v38 quad_perm:[1,0,3,2] row_mask:0xf bank_mask:0xf")
    unpack24_d(g, GA + 12)
    A("v_add_f32_dpp v38, v38, v38 quad_perm:[2,3,0,1] row_mask:0xf bank_mask:0xf")
    for e in range(4): A(f"v_mul_f32_dpp v{40+e}, v37, v{GA+e} quad_perm:[0,0,0,0] row_mask:0xf bank_mask:0xf")
    A("v_rcp_f32 v38, v38")
    for k in range(1, 4):
        for e in range(4): A(f"v_fmac_f32_dpp v{40+e}, v37, v{GA+4*k+e} quad_perm:[{k},{k},{k},{k}] row_mask:0xf bank_mask:0xf")
    for e in range(4): A(f"v_mul_f32 v{40+e}, v{40+e}, v38")
    A("v_cvt_pk_bf16_f32 v32, v40, v41"); A("v_cvt_pk_bf16_f32 v33, v42, v43")
    A(f"ds_write_b64 v{aW}, v[32:33]")
    if cfg.dumpo:
        A(f"v_mov_b32 v34, {TAG}"); A(f"v_mov_b32 v35, {TAG}"); A("s_lshr_b32 s15, s6, 1"); A("s_lshl_b32 s15, s15, 12"); A(f"s_add_u32 s15, s15, {W_OB}")
        A(f"buffer_store_dwordx4 v[32:35], v{gT16}, {WS}, s15 offen sc1")
    A(f"s_lshl_b32 {SO[0]}, s14, 12"); A(f"s_add_u32 {SO[0]}, {SO[0]}, {W_OP}"); A(f"s_lshl_b32 {SO[1]}, s14, 10"); A(f"s_add_u32 {SO[1]}, {SO[1]}, {W_FP}")
    A(f"s_lshl_b32 {SO[2]}, s14, 7"); A(f"s_add_u32 {SO[2]}, {SO[2]}, {W_HB}"); A(f"s_lshl_b32 {SO[3]}, s6, 7"); A(f"s_add_u32 {SO[3]}, {SO[3]}, {W_HS}")
    for r_ in (35, 39, 43): A(f"v_mov_b32 v{r_}, {TAG}")
    g.stamp(8)
    A("s_waitcnt lgkmcnt(0)")
    A("s_barrier")
    for k in range(4): A(f"ds_read_b128 v[{XF+4*k}:{XF+4*k+3}], v{aF} offset:{k*64}")
    A("s_waitcnt lgkmcnt(0)")
    def fin_pair(m):
        for e in range(4): A(f"v_cndmask_b32 v{12+e}, v{AO+8*m+e}, v{AO+8*m+4+e}, s[66:67]")
        pack24(g, 32 + 4 * m, 12)
        A(f"buffer_store_dwordx4 v[{32+4*m}:{35+4*m}], v{gW}, {WS}, {['s9', 's10', 's12', 's13'][m]} offen sc1")
    for m in range(4):
        for k in range(4):
            for tl in range(2): mfma(g, AO + 8 * m + 4 * tl, WF + 16 * (2 * m + tl) + 4 * k, XF + 4 * k, k == 0)
        if m >= 1: fin_pair(m - 1)
    g.nop(1)
    fin_pair(3)
    g.stamp(9)
    def red(so, nl, stage):
        rl = [f"buffer_load_dwordx4 v[{GD+4*k}:{GD+4*k+3}], v{gL16}, {WS}, {so} offen offset:{k*1024} sc1" for k in range(nl)]
        gather(g, rl, [GD + 4 * k + 3 for k in range(nl)], stage, sleep=cfg.ps)
        if nl == 4 and cfg.e1: hu_post0(g, 1, 55, 12, force=True)
        for k in range(nl): unpack24_d(g, GD + 4 * k)
        if nl == 4:
            for h in range(2):
                A(f"v_pk_add_f32 v[{GD+2*h}:{GD+2*h+1}], v[{GD+2*h}:{GD+2*h+1}], v[{GD+4+2*h}:{GD+5+2*h}]"); A(f"v_pk_add_f32 v[{GD+8+2*h}:{GD+9+2*h}], v[{GD+8+2*h}:{GD+9+2*h}], v[{GD+12+2*h}:{GD+13+2*h}]")
            for h in range(2): A(f"v_pk_add_f32 v[{GD+2*h}:{GD+2*h+1}], v[{GD+2*h}:{GD+2*h+1}], v[{GD+8+2*h}:{GD+9+2*h}]")
            g.nop(1)
        xrow_reduce(g, [GD, GD + 1, GD + 2, GD + 3], steps=("ror8", "p16", "p32"), tmp=12)
        A(f"v_cvt_pk_bf16_f32 v12, v{GD}, v{GD+1}"); A(f"v_cvt_pk_bf16_f32 v13, v{GD+2}, v{GD+3}")
        for p in range(2):
            A(f"v_lshlrev_b32 v{40+2*p}, 16, v{12+p}"); A(f"v_and_b32 v{41+2*p}, 0xffff0000, v{12+p}")
        for h in range(2): A(f"v_pk_add_f32 v[{40+2*h}:{41+2*h}], v[{40+2*h}:{41+2*h}], v[{56+2*h}:{57+2*h}]")
        if nl == 4: A("v_pk_mul_f32 v[44:45], v[40:41], v[40:41]")
        A("v_cvt_pk_bf16_f32 v48, v40, v41")
        if nl == 4: A("v_pk_fma_f32 v[44:45], v[42:43], v[42:43], v[44:45]")
        A("v_cvt_pk_bf16_f32 v49, v42, v43")
    g.sleep(cfg.d4)
    red(SO[0], 4, 3)
    A("v_add_f32 v50, v44, v45")
    g.setexec(0xff)
    A(f"buffer_store_dwordx4 v[48:51], v{gL16}, {WS}, {SO[2]} offen sc1")
    if not cfg.e1: hu_post0(g, 1, 55, 12, force=True)
    g.full()
    for p in range(2):
        A(f"v_lshlrev_b32 v{56+2*p}, 16, v{48+p}"); A(f"v_and_b32 v{57+2*p}, 0xffff0000, v{48+p}")
    g.stamp(10)
    if not cfg.hu: g.sleep(cfg.d7)
    hu_wait(g, 2, 15, 12, 13, cfg.dc)
    red(SO[1], 1, 6)
    g.setexec(0xff)
    A(f"buffer_store_dwordx2 v[48:49], v{gOUT}, {XO}, s68 offen {['', 'sc1', 'nt', 'sc0 sc1'][cfg.outst]}")
    A("s_mov_b64 exec, 1")
    A("s_cmp_lg_u32 s14, 0"); A("s_cbranch_scc1 L_done")
    A(f"v_mov_b32 v12, {TAG}"); A("v_mov_b32 v13, 0")
    A(f"buffer_store_dword v12, v13, {WS}, 0 offen sc1")
    A("s_branch L_done")

def role_f1(g):
    A = g.A; cfg = g.cfg
    STL = "" if cfg.local else "sc1"
    HF = 224
    g.lab("L_f1")
    A("s_movk_i32 s12, 7168"); A("v_mul_lo_u32 v22, v20, s12"); A(f"v_add_u32 v{pA}, v22, v21"); A(f"v_xor_b32 v{pB}, 64, v{pA}")
    srd(g, 44, 28, 7340032)
    A("s_mul_i32 s12, s4, 7"); A("s_add_u32 s12, s12, s7"); A("s_sub_u32 s12, s12, 8"); A("s_lshl_b32 s13, s12, 7"); A(f"s_mul_i32 s14, s3, {256*7168}"); A(f"s_add_u32 {sB}, s13, s14")
    P2 = [pA, pB, pA, pB]
    if cfg.gate: hu_wait(g, 4, cfg.gmask, 40, 41, 0, backoff=2)
    else: g.sleep(cfg.fsl)
    w0 = [cfg.fw1 - 1 if k < cfg.fn1 else cfg.fw2 - 1 for k in range(8)]
    dma4(g, SA, 8 * 7168, P2, waits=w0[:4]); dma4(g, SA, 8 * 7168, P2, waits=w0[4:])
    dma_loop(g, SA, 8 * 7168, P2, 6, cfg.fw2)
    A("v_mul_u32_u24 v22, 2080, v19"); A("v_lshrrev_b32 v27, 3, v0"); A(f"v_lshl_add_u32 v{aW}, v27, 3, v22"); A(f"v_add_u32 v{aW}, {ACT}, v{aW}")
    A(f"v_lshl_add_u32 v{aF}, v3, 4, v22"); A(f"v_add_u32 v{aF}, {ACT}, v{aF}"); A("v_and_b32 v22, 8, v1"); A(f"v_lshl_add_u32 v{aF}, v22, 3, v{aF}")
    A("s_lshl_b32 s13, s3, 9"); A("v_lshlrev_b32 v22, 7, v3"); A(f"v_lshl_add_u32 v{gW}, v2, 4, v22"); A(f"v_add_u32 v{gW}, s13, v{gW}")
    A(f"s_lshl_b32 s9, s12, 11"); A(f"s_add_u32 s9, s9, {W_AB}"); A(f"s_add_u32 s10, s9, {BDELTA}")
    for i in range(4): A(f"s_mov_b32 {SO[i]}, {W_HB+8192*i}")
    A(f"v_add_u32 v{aTb}, 4096, v{gT16}")
    A("v_mov_b32 v12, 0x3f803f80"); A("v_mov_b32 v13, v12"); A("v_mov_b32 v14, v12"); A("v_mov_b32 v15, v12")
    A(f"s_mov_b32 s68, {W_HS}")
    A("s_lshl_b32 s13, s3, 6"); A(f"v_lshl_add_u32 v{aTb2}, v19, 3, s13"); A(f"v_add_u32 v{aTb2}, {STL_}, v{aTb2}")
    A("v_lshlrev_b32 v27, 3, v19"); A(f"v_add_u32 v27, {STL_}, v27")
    A(f"v_mov_b32 v46, {TAG}"); A(f"v_mov_b32 v47, {TAG}")
    hu_probe_issue(g, 1, 7, 40, 41)
    A("s_waitcnt vmcnt(0)")
    A("s_barrier")
    g.stamp(4)
    hl = [f"buffer_load_dwordx4 v[{GD+4*k}:{GD+4*k+3}], v{gT16 if k % 2 == 0 else aTb}, {WS}, {SO[k>>1]} offen sc1" for k in range(8)]
    def pre_1():
        for k in range(32):
            for q in range(2): tr(g, WF + 4 * k + 2 * q, aT if k < 16 else aT2, (k & 15) * 4096 + q * 512)
            if k >= 6:
                A("s_waitcnt lgkmcnt(12)"); mfma(g, AC + 4, WF + 4 * (k - 6), 12, k == 6)
        for k in range(26, 32):
            A(f"s_waitcnt lgkmcnt({2*(31-k)})"); mfma(g, AC + 4, WF + 4 * k, 12, False)
        g.stamp(10)
    staged(g, 1, 7, 40, 41, cfg.db, hl, pre_1, lambda iss: gather(g, hl, [GD + 4 * k + 3 for k in range(8)], 4, sleep=cfg.ps, issued=iss))
    for k in range(8): A(f"ds_write_b64 v{aW}, v[{GD+4*k}:{GD+4*k+1}] offset:{k*256}")
    g.stamp(11)
    for k in range(8):
        A(f"v_dot2_f32_bf16 v40, v{GD+4*k}, v12, {'0' if k == 0 else 'v40'}"); A(f"v_dot2_f32_bf16 v42, v{GD+4*k+1}, v12, {'0' if k == 0 else 'v42'}")
        if k == cfg.dsplit - 1:
            A("s_waitcnt lgkmcnt(0)"); A("s_barrier")
            for kk in range(8): A(f"ds_read_b128 v[{HF+4*kk}:{HF+4*kk+3}], v{aF} offset:{kk*128}")
    for k in range(1, 8): A(f"v_add_f32 v41, v{GD+4*k+2}, {f'v{GD+2}' if k == 1 else 'v41'}")
    side = {}
    side.update({
        0: ["v_add_f32 v40, v40, v42"],
        1: ["v_add_f32_dpp v40, v40, v40 row_ror:8 row_mask:0xf bank_mask:0xf", "v_add_f32_dpp v41, v41, v41 row_ror:8 row_mask:0xf bank_mask:0xf"],
        2: ["v_mov_b32 v42, v40", "v_mov_b32 v43, v41"],
        3: ["v_permlane16_swap_b32 v40, v42", "v_permlane16_swap_b32 v41, v43"],
        4: ["v_pk_add_f32 v[40:41], v[40:41], v[42:43]"],
        5: ["v_mov_b32 v42, v40", "v_mov_b32 v43, v41"],
        6: ["v_permlane32_swap_b32 v40, v42", "v_permlane32_swap_b32 v41, v43"],
        7: ["v_pk_add_f32 v[40:41], v[40:41], v[42:43]"],
        8: ["s_mov_b32 exec_lo, 0xff", "s_mov_b32 exec_hi, 0", f"ds_write_b64 v{aTb2}, v[40:41]", "s_mov_b64 exec, -1"],
        11: ["s_barrier"] + [f"ds_read_b64 v[{48+2*w}:{49+2*w}], v27 offset:{w*64}" for w in range(4)],
        16: ["v_pk_add_f32 v[48:49], v[48:49], v[50:51]", "v_pk_add_f32 v[52:53], v[52:53], v[54:55]", "v_pk_add_f32 v[48:49], v[48:49], v[52:53]"],
        17: ["v_mul_f32 v48, 0x3a800000, v48", "v_mul_f32 v49, 0x3a800000, v49", "v_fma_f32 v49, -v48, v48, v49"],
        18: ["v_max_f32 v49, 0, v49", "v_cvt_pk_bf16_f32 v49, v49, v49", "v_lshlrev_b32 v49, 16, v49"],
        19: ["v_add_f32 v49, 0x3727c5ac, v49", "v_cvt_pk_bf16_f32 v49, v49, v49", "v_lshlrev_b32 v49, 16, v49"],
        20: ["v_sqrt_f32 v49, v49", "v_cvt_pk_bf16_f32 v48, v48, v48"],
        21: ["v_cvt_pk_bf16_f32 v49, v49, v49", "v_lshlrev_b32 v48, 16, v48", "v_lshlrev_b32 v49, 16, v49"],
        22: ["v_rcp_f32 v49, v49"],
    })
    seq = [("f", k) for k in range(8)]
    for k in range(32):
        m = k >> 1
        need = seq.index(("f", m))
        if k == 11: need = max(need, seq.index(("w", 0)))
        if k == 16: need = max(need, seq.index(("s", 3)))
        if k % 2 == 0 or k in (11,): A(f"s_waitcnt lgkmcnt({len(seq) - 1 - need})")
        mfma(g, AC if k % 2 == 0 else 56, WF + 4 * k, HF + 4 * (m & 7), k < 2)
        if k % 2 == 1 and m + 8 < 16:
            A(f"ds_read_b128 v[{HF+4*(m&7)}:{HF+4*(m&7)+3}], v{aF} offset:{(m+8)*128}"); seq.append(("f", m + 8))
        for x_ in side.get(k, []): A(x_)
        if k == 8: seq.append(("w", 0))
        if k == 11: seq += [("s", w) for w in range(4)]
    g.nop(7)
    for e in range(4): A(f"v_fma_f32 v{40+e}, -v48, v{AC+4+e}, v{AC+e}")
    for e in range(4): A(f"v_add_f32_dpp v{40+e}, v{56+e}, v{40+e} row_ror:8 row_mask:0xf bank_mask:0xf")
    g.setexec(0x00ff00ff00ff00ff)
    for e in range(4): A(f"v_mul_f32 v{40+e}, v{40+e}, v49")
    for e in range(4): A(f"v_max_f32 v{40+e}, 0, v{40+e}")
    A("v_cvt_pk_bf16_f32 v44, v40, v41"); A("v_cvt_pk_bf16_f32 v45, v42, v43")
    A(f"buffer_store_dwordx4 v[44:47], v{gW}, {WS}, s9 offen {STL}")
    if cfg.local: A(f"buffer_store_dwordx4 v[44:47], v{gW}, {WS}, s10 offen sc1")
    g.stamp(12)
    A("s_branch L_done")

def role_attn(g):
    A = g.A; cfg = g.cfg
    STL = "" if cfg.local else "sc1"
    KF, VF, QF, SC, PV, GA = 64, 128, 192, 32, 208, 128
    PF, RS = 48, 56
    pV = [244, 245]; p2 = [4, 5]
    aK, aV, gQ, aQw, aVb, aMw, aMr, aPw, aPr, gAP = range(246, 256)
    gL16 = 18
    g.lab("L_attn")
    A("s_mov_b32 s6, s68")
    nk0 = cfg.nk0
    done = nk0
    npost = 0
    while done < 16:
        lo = done & 3
        dma4(g, SB, 1024, pK, waits=cfg.kw - 1, lo=lo)
        done += 4 - lo
        if done == cfg.g4: hu_post0(g, 4, 43, 12)
    srd(g, 44, 20, 32 << 20)
    A("v_lshlrev_b32 v22, 1, v3"); A("v_xor_b32 v22, v2, v22"); A("v_lshlrev_b32 v22, 4, v22"); A(f"v_lshl_add_u32 v{pV[0]}, v3, 8, v22"); A(f"v_xor_b32 v{pV[1]}, 128, v{pV[0]}")
    A(f"s_mov_b32 {sB}, s66"); A(f"s_add_u32 {sM}, {mW}, 0x10000")
    A("s_lshr_b32 s10, s7, 2"); A("s_lshl_b32 s10, s10, 16"); A("s_lshl_b32 s11, s4, 9"); A("s_add_u32 s10, s10, s11"); A(f"s_add_u32 {SO[0]}, s10, {W_QP}")
    for i in range(1, 4): A(f"s_add_u32 {SO[i]}, {SO[0]}, {i*262144}")
    A("v_lshrrev_b32 v22, 4, v0"); A("v_lshlrev_b32 v22, 12, v22"); A(f"v_lshl_add_u32 v{gQ}, v2, 4, v22")
    PVp = [pV[0], pV[1], pV[0], pV[1]]
    QD = 192
    ql = [f"buffer_load_dwordx4 v[{QD+8*k+4*h}:{QD+8*k+4*h+3}], v{gQ}, {WS}, {SO[k]} offen offset:{256*h} sc1" for k in range(4) for h in range(2)]
    for k in range(4):
        if k == cfg.qpos:
            for s in ql: A(s)
        dma4(g, SA, 1024, PVp, waits=cfg.vw - 1 + (8 if k >= cfg.qpos else 0))
        if 20 + 4 * k == cfg.g4: hu_post0(g, 4, 43, 12)
        if k == 0:
            A("v_lshl_add_u32 v27, v25, 2, v23"); A("v_lshl_add_u32 v27, v27, 5, v24"); A("v_lshl_add_u32 v22, v3, 2, v23")
            A("s_lshl_b32 s13, s3, 6"); A("v_xor_b32 v27, s13, v27")
            A(f"v_lshl_add_u32 v{aV}, v22, 8, v27"); A(f"v_add_u32 v{aV}, 0x10000, v{aV}"); A(f"v_xor_b32 v{aVb}, 32, v{aV}")
            A("v_xor_b32 v22, v3, v2"); A("v_lshlrev_b32 v22, 4, v22"); A(f"v_lshl_add_u32 v{aK}, v2, 8, v22"); A(f"v_add_u32 v{aK}, {mW}, v{aK}")
            A("v_mul_u32_u24 v22, 288, v16"); A(f"v_lshl_add_u32 v{aQw}, v17, 3, v22"); A(f"v_add_u32 v{aQw}, {QL}, v{aQw}")
            A("v_mul_u32_u24 v22, 288, v19"); A(f"v_lshl_add_u32 v{aF}, v3, 4, v22"); A(f"v_add_u32 v{aF}, {QL}, v{aF}")
            A(f"v_lshlrev_b32 v22, 4, v19"); A(f"v_add_u32 v{aMr}, {CB+4096}, v22"); A("s_lshl_b32 s13, s3, 2"); A(f"v_add_u32 v{aMw}, s13, v{aMr}")
            A(f"v_lshl_add_u32 v22, v3, 7, v22"); A(f"v_add_u32 v{aPr}, {CB}, v22"); A("s_lshl_b32 s13, s3, 10"); A(f"v_add_u32 v{aPw}, s13, v{aPr}")
            A(f"v_lshlrev_b32 v{gL16}, 4, v1")
            A("s_lshl_b32 s13, s3, 1"); A("v_lshrrev_b32 v22, 3, v2"); A("v_add_u32 v22, s13, v22"); A("v_lshl_add_u32 v22, v22, 2, v3"); A("v_lshlrev_b32 v22, 4, v22"); A(f"v_lshl_add_u32 v{gAP}, v19, 9, v22")
            A("v_cmp_lt_u32 s[66:67], 7, v2")
            for kk in range(1, 4): A(f"v_xor_b32 v{36+kk}, {kk*64}, v{aK}")
            A(f"v_mov_b32 v{RS+3}, {TAG}"); A(f"v_mov_b32 v{RS+6}, {TAG}"); A(f"v_mov_b32 v{RS+7}, {TAG}")
            A("v_mov_b32 v28, 0x3fb8aa3b"); A("v_mov_b32 v29, v28")
            A(f"v_lshl_add_u32 v{p2[0]}, v20, 11, v21"); A(f"v_xor_b32 v{p2[1]}, 64, v{p2[0]}")
    if cfg.qpos >= 4:
        A(f"s_waitcnt vmcnt({cfg.qw})")
        for s in ql: A(s)
    newer = max(0, 4 - cfg.qpos) * 4
    A(f"s_waitcnt vmcnt({16+8})")
    for tl in range(4):
        for k in range(4): A(f"ds_read_b128 v[{KF+16*tl+4*k}:{KF+16*tl+4*k+3}], v{aK if k == 0 else 36+k} offset:{tl*4096}")
    srd(g, 48, 30, 7340032)
    A("s_lshl_b32 s12, s4, 2"); A("s_add_u32 s12, s12, s3"); A(f"s_mul_i32 s12, s12, {112*2048}"); A("s_lshl_b32 s13, s7, 7"); A(f"s_add_u32 {sB}, s12, s13")
    A(f"s_mul_i32 {sM}, s3, {14*1024}")
    g.stamp(11)
    gather(g, ql, [QD + 4 * j + 2 for j in range(8)] + [QD + 4 * j + 3 for j in range(8)], 0, issued=True, newer=newer)
    g.stamp(4)
    for h in range(2):
        A(f"v_pk_add_f32 v[{12+2*h}:{13+2*h}], v[{QD+4*h}:{QD+4*h+1}], v[{QD+8+4*h}:{QD+9+4*h}]"); A(f"v_pk_add_f32 v[{32+2*h}:{33+2*h}], v[{QD+16+4*h}:{QD+17+4*h}], v[{QD+24+4*h}:{QD+25+4*h}]")
    for h in range(2): A(f"v_pk_add_f32 v[{12+2*h}:{13+2*h}], v[{12+2*h}:{13+2*h}], v[{32+2*h}:{33+2*h}]")
    A("v_cvt_pk_bf16_f32 v12, v12, v13"); A("v_cvt_pk_bf16_f32 v13, v14, v15")
    A(f"ds_write_b64 v{aQw}, v[12:13]")
    A("s_mov_b32 s9, 0x3db504f3"); A("s_mov_b32 s10, 0x3fb8aa3b")
    A("s_waitcnt lgkmcnt(0)")
    A("s_barrier")
    for k in range(4): A(f"ds_read_b128 v[{QF+4*k}:{QF+4*k+3}], v{aF} offset:{k*64}")
    P2 = [p2[0], p2[1], p2[0], p2[1]]
    n2 = cfg.w2e
    for k in range(n2 // 4): dma4(g, SB, 8 * 2048, P2)
    for k in range(4):
        A(f"s_waitcnt lgkmcnt({3-k})")
        for tl in range(4): mfma(g, SC + 4 * tl, KF + 16 * tl + 4 * k, QF + 4 * k, k == 0)
    g.nop(5)
    E = 64
    for p in range(8): A(f"v_cvt_pk_bf16_f32 v{PF+p}, v{SC+2*p}, v{SC+2*p+1}")
    for p in range(8):
        A(f"v_lshlrev_b32 v{E+2*p}, 16, v{PF+p}"); A(f"v_and_b32 v{E+2*p+1}, 0xffff0000, v{PF+p}")
    for e in range(16): A(f"v_mul_f32 v{E+e}, s9, v{E+e}")
    for p in range(8): A(f"v_cvt_pk_bf16_f32 v{PF+p}, v{E+2*p}, v{E+2*p+1}")
    for p in range(8):
        A(f"v_lshlrev_b32 v{E+2*p}, 16, v{PF+p}"); A(f"v_and_b32 v{E+2*p+1}, 0xffff0000, v{PF+p}")
    for k in range(5): A(f"v_max3_f32 v{32+k}, v{E+3*k}, v{E+3*k+1}, v{E+3*k+2}")
    A(f"v_max3_f32 v32, v32, v33, v{E+15}"); A("v_max3_f32 v34, v34, v35, v36"); A("v_max_f32 v30, v32, v34")
    xrow_reduce(g, [30], op="v_max_f32", steps=("p16", "p32"))
    g.setexec(0xff)
    A(f"ds_write_b32 v{aMw}, v30")
    g.full()
    for p in range(8): A(f"v_pk_mul_f32 v[{E+2*p}:{E+2*p+1}], v[{E+2*p}:{E+2*p+1}], v[28:29]")
    A("s_waitcnt lgkmcnt(0)")
    A("s_barrier")
    A(f"ds_read_b128 v[32:35], v{aMr}")
    A("s_lshl_b32 s9, s6, 12"); A(f"s_add_u32 s9, s9, {W_AP}"); A("s_lshl_b32 s11, s6, 7"); A(f"s_add_u32 s11, s11, {W_AS}")
    A("s_waitcnt lgkmcnt(0)")
    A("v_max3_f32 v30, v32, v33, v34"); A("v_max_f32 v30, v30, v35"); A(f"v_mul_f32 v{RS+4}, s10, v30")
    for e in range(16): A(f"v_sub_f32 v{E+e}, v{E+e}, v{RS+4}")
    for e in range(16): A(f"v_exp_f32 v{E+e}, v{E+e}")
    for p in range(8): A(f"v_cvt_pk_bf16_f32 v{PF+p}, v{E+2*p}, v{E+2*p+1}")
    g.setexec(0x00ff00ff00ff00ff)
    A(f"ds_write_b128 v{aPw}, v[{PF}:{PF+3}]"); A(f"ds_write_b128 v{aPw}, v[{PF+4}:{PF+7}] offset:512")
    g.full()
    for p in range(4): A(f"v_pk_add_f32 v[{E+4*p}:{E+4*p+1}], v[{E+4*p}:{E+4*p+1}], v[{E+4*p+2}:{E+4*p+3}]")
    A(f"v_pk_add_f32 v[{E}:{E+1}], v[{E}:{E+1}], v[{E+4}:{E+5}]"); A(f"v_pk_add_f32 v[{E+8}:{E+9}], v[{E+8}:{E+9}], v[{E+12}:{E+13}]")
    A(f"v_pk_add_f32 v[{E}:{E+1}], v[{E}:{E+1}], v[{E+8}:{E+9}]"); A(f"v_add_f32 v31, v{E}, v{E+1}")
    xrow_reduce(g, [31], steps=("p16", "p32"))
    g.setexec(0xff)
    A(f"ds_write_b32 v{aMw}, v31 offset:128")
    g.full()
    g.stamp(5)
    PFR, V0, V1, AO = 192, 128, 160, 224
    A(f"s_waitcnt vmcnt({n2+8}) lgkmcnt(0)")
    A("s_barrier")
    for h in range(4):
        A(f"ds_read_b128 v[{PFR+8*h}:{PFR+8*h+3}], v{aPr} offset:{2*h*512}")
        for tl in range(2):
            for q in range(2): tr(g, V0 + 8 * h + 4 * tl + 2 * q, [aV, aVb][tl], 2 * h * 8192 + q * 4096)
    for h in range(4):
        A(f"s_waitcnt lgkmcnt({15-5*h})")
        for tl in range(2): mfma(g, AO + 4 * tl, V0 + 8 * h + 4 * tl, PFR + 8 * h, h == 0)
    for h in range(4): A(f"ds_read_b128 v[{PFR+8*h+4}:{PFR+8*h+7}], v{aPr} offset:{(2*h+1)*512}")
    A(f"ds_read_b128 v[32:35], v{aMr} offset:128")
    A(f"s_waitcnt vmcnt({n2})")
    g.stamp(10)
    A("s_barrier")
    if cfg.e0: hu_post0(g, 0, RS + 7, 12, force=True)
    for h in range(4):
        for tl in range(2):
            for q in range(2): tr(g, V1 + 8 * h + 4 * tl + 2 * q, [aV, aVb][tl], (2 * h + 1) * 8192 + q * 4096)
    for h in range(4):
        A(f"s_waitcnt lgkmcnt({12-4*h})")
        for tl in range(2): mfma(g, AO + 4 * tl, V1 + 8 * h + 4 * tl, PFR + 8 * h + 4, False)
        if h == 0: A("v_pk_add_f32 v[32:33], v[32:33], v[34:35]")
        if h == 1: A(f"v_add_f32 v{RS+5}, v32, v33")
    A("s_cmp_lg_u32 s3, 0"); A("s_cbranch_scc1 L_nst")
    g.setexec(0xff)
    A(f"buffer_store_dwordx4 v[{RS+4}:{RS+7}], v{gL16}, {WS}, s11 offen sc1")
    g.full()
    g.lab("L_nst")
    g.nop(6)
    for e in range(4): A(f"v_cndmask_b32 v{40+e}, v{AO+e}, v{AO+4+e}, s[66:67]")
    pack24(g, RS, 40)
    A(f"buffer_store_dwordx4 v[{RS}:{RS+3}], v{gAP}, {WS}, s9 offen sc1")
    g.stamp(6)
    if not cfg.e0: hu_post0(g, 0, RS + 7, 12, force=True)
    if cfg.gate: hu_wait(g, 5, 7, 40, 41, 0, backoff=2)
    else: g.sleep(cfg.w2sl)
    for k in range(n2 // 4, 3): dma4(g, SB, 8 * 2048, P2, waits=[0 if 4 * k + jj < cfg.w2n else None for jj in range(4)])
    dma4(g, SB, 8 * 2048, P2, hi=2)
    A("v_mul_u32_u24 v22, 928, v19"); A(f"v_add_u32 v22, {CB}, v22"); A("v_lshrrev_b32 v27, 3, v0"); A(f"v_lshl_add_u32 v{aW}, v27, 3, v22"); A(f"v_lshl_add_u32 v{aF}, v3, 4, v22"); A("v_and_b32 v22, 8, v1"); A(f"v_lshl_add_u32 v{aF}, v22, 3, v{aF}")
    A("s_lshl_b32 s13, s3, 12"); A("v_lshlrev_b32 v22, 10, v3"); A(f"v_lshl_add_u32 v{gW}, v2, 4, v22"); A(f"v_add_u32 v{gW}, s13, v{gW}")
    A(f"s_mul_i32 {SO[0]}, s4, {112*128}"); A(f"s_add_u32 {SO[0]}, {SO[0]}, {W_AB}")
    for i in range(1, 3): A(f"s_add_u32 {SO[i]}, {SO[0]}, {i*4096}")
    A(f"s_add_u32 {SO[3]}, {SO[0]}, {3*4096}"); A("s_cmp_ge_u32 s3, 2"); A(f"s_cselect_b32 {SO[3]}, {SO[0]}, {SO[3]}")
    A("s_lshl_b32 s9, s7, 14"); A("s_lshl_b32 s10, s4, 7"); A("s_add_u32 s9, s9, s10"); A(f"s_add_u32 s9, s9, {W_FP}")
    A(f"v_mov_b32 v47, {TAG}")
    A("s_waitcnt vmcnt(0)")
    A("s_barrier")
    g.stamp(12)
    for k in range(14):
        for q in range(2): tr(g, 64 + 4 * k + 2 * q, aT, k * 4096 + q * 512)
    AD = 192
    al = [f"buffer_load_dwordx4 v[{AD+4*k}:{AD+4*k+3}], v{gT16}, {WS}, {SO[k]} offen sc1" for k in range(4)]
    g.sleep(cfg.d6)
    gather(g, al, [AD + 4 * k + 2 for k in range(4)] + [AD + 4 * k + 3 for k in range(4)], 5, toggle=SO, sleep=cfg.pl)
    for k in range(3): A(f"ds_write_b64 v{aW}, v[{AD+4*k}:{AD+4*k+1}] offset:{k*256}")
    A("s_cmp_ge_u32 s3, 2"); A("s_cbranch_scc1 L_a3"); A(f"ds_write_b64 v{aW}, v[{AD+12}:{AD+13}] offset:768"); g.lab("L_a3")
    g.stamp(13)
    if cfg.e2: hu_post0(g, 2, 47, 12, force=True)
    A("s_waitcnt lgkmcnt(0)")
    A("s_barrier")
    for m in range(7): A(f"ds_read_b128 v[{128+4*m}:{131+4*m}], v{aF} offset:{m*128}")
    for k in range(14):
        if k % 2 == 0: A(f"s_waitcnt lgkmcnt({6-k//2})")
        mfma(g, 32 + 4 * (k & 1), 64 + 4 * k, 128 + 4 * (k >> 1), k < 2)
    g.nop(8)
    for e in range(4): A(f"v_add_f32_dpp v{32+e}, v{36+e}, v{32+e} row_ror:8 row_mask:0xf bank_mask:0xf")
    g.setexec(0x00ff00ff00ff00ff)
    pack24(g, 44, 32)
    A(f"buffer_store_dwordx4 v[44:47], v{gW}, {WS}, s9 offen sc1")
    g.full()
    if not cfg.e2: hu_post0(g, 2, 47, 12, force=True)
    g.stamp(14)

def parse(argv=None):
    ap = argparse.ArgumentParser()
    ap.add_argument("-o", default="sequential_preLN__sliding_block_cached__dense_activation_relu__decode.s")
    D = dict(stamps=0, nt=1, pref=1, local=1, wc=1, wr=2, fb=300, early=1, nopoll=0, hu=1, hun=400, dumpo=0, huearly=1, swap=0, outst=0, dsplit=5, rd=8, acc2=0, e0=0, e1=0, e2=0,
             gate=0, gmask=15, g3=16, g4=32,
             nk0=8, kwin=2, kw=8, vw=8, qpos=1, qw=8, w2e=0, w2sl=0, w2n=4,
             osl=0, on1=4, ow1=2, ow2=10, fsl=0, fn1=5, fw1=1, fw2=10,
             d2=3, d4=12, d6=0, d7=60, dt=12, da=0, db=0, dc=0, ps=4, pl=1)
    for k, d in D.items(): ap.add_argument(f"--{k}", type=int, default=d)
    return ap.parse_args(argv)

if __name__ == "__main__":
    cfg = parse()
    open(cfg.o, "w").write(gen(cfg))
```

```python
import sys, argparse
sys.path.insert(0, "bench")
from asmlib import wrap

RQ = 98304
SCR = 131072
ACT = SCR
STL_ = SCR + 8 * 2080
QL = SCR + 8 * 544
CB = QL + 8 * 288
LDS_END = CB + 4 * 8 * 528
assert STL_ + 256 <= LDS_END <= 163840

W_QP = 0x100000
W_AP = 0x200000
W_AS = 0x280000
W_OB = 0x290000
W_HB = 0x2C0000
W_HS = 0x2D0000
W_HU = 0x2E0000
W_OP = 0x500000
W_AB = 0x340000
W_FP = 0x380000
BDELTA = 0x400000
STAMP_OFF = 128 << 20

WS, XO, SA, SB = "s[36:39]", "s[40:43]", "s[44:47]", "s[48:51]"
TAG = "s8"
PK0, PK1, PK2, UP0, UP1, PCNT = "s52", "s53", "s54", "s55", "s56", "s57"
SO = ["s58", "s59", "s60", "s61"]
mW, sB, sM, sI = "s62", "s63", "s64", "s65"

DOC = '''    ; One persistent launch, 256 workgroups (one per CU), 4 waves each.  x = wg&7, r = wg>>3.
'''

class G:
    def __init__(self, cfg):
        self.L = []; self.cfg = cfg; self.nlab = 0
    def A(self, s): self.L.append("    " + s)
    def lab(self, s): self.L.append(s + ":")
    def newlab(self, p="L"):
        self.nlab += 1; return f"{p}_{self.nlab}"
    def nop(self, n):
        while n > 0:
            k = min(n, 16); self.A(f"s_nop {k-1}"); n -= k
    def setexec(self, m):
        lo, hi = m & 0xffffffff, m >> 32
        if hi == 0 and lo <= 64: self.A(f"s_mov_b64 exec, {lo}")
        else:
            self.A(f"s_mov_b32 exec_lo, {hex(lo)}"); self.A(f"s_mov_b32 exec_hi, {hex(hi)}")
    def full(self): self.A("s_mov_b64 exec, -1")
    def stamp(self, idx):
        if self.cfg.stamps: self.A(f"s_memrealtime s[{70+2*idx}:{71+2*idx}]")
    def sleep(self, n):
        while n > 0:
            k = min(n, 127); self.A(f"s_sleep {k}"); n -= k

def srd(g, d, p, n):
    if d != p: g.A(f"s_mov_b32 s{d}, s{p}"); g.A(f"s_mov_b32 s{d+1}, s{p+1}")
    g.A(f"s_mov_b32 s{d+2}, {n}"); g.A(f"s_mov_b32 s{d+3}, 0x20000")

def dma4(g, sr, step, pats, waits=None, lo=0, hi=4, adv=True):
    nt = " nt" if g.cfg.nt else ""
    g.A(f"s_mov_b32 m0, {sM}")
    for jj in range(lo, hi):
        w = None if waits is None else (waits if isinstance(waits, int) else waits[jj])
        if w is not None: g.A(f"s_waitcnt vmcnt({w})")
        off = jj * (step - 1024)
        if off: g.A(f"s_add_u32 s15, {sB}, {off}")
        elif w is None and jj == lo: g.A("s_nop 0")
        g.A(f"buffer_load_dwordx4 v{pats[jj]}, {sr}, {'s15' if off else sB} offen offset:{jj*1024}{nt} lds")
    if adv: g.A(f"s_add_u32 {sB}, {sB}, {4*step}"); g.A(f"s_add_u32 {sM}, {sM}, 4096")

def dma_loop(g, sr, step, pats, ngroups, win):
    l = g.newlab("L_dl")
    g.A(f"s_mov_b32 {sI}, 0")
    g.lab(l)
    dma4(g, sr, step, pats, waits=win - 1)
    g.A(f"s_add_u32 {sI}, {sI}, 1"); g.A(f"s_cmp_lt_u32 {sI}, {ngroups}"); g.A(f"s_cbranch_scc1 {l}")

def tagcheck(g, tagregs, tmp=10):
    g.A(f"v_xor_b32 v{tmp}, {TAG}, v{tagregs[0]}")
    for t in tagregs[1:]: g.A(f"v_bitop3_b32 v{tmp}, v{tmp}, v{t}, {TAG} bitop3:0xF6")
    g.A(f"v_cmp_ne_u32 vcc, 0, v{tmp}")

def gather(g, loads, tagregs, stage, issued=False, newer=0, late=None, toggle=(), sleep=0):
    l = g.newlab("L_g"); e = g.newlab("L_ge")
    if g.cfg.nopoll:
        g.A(f"s_waitcnt vmcnt({newer})"); return
    if not issued:
        for s in loads: g.A(s)
    g.A(f"s_mov_b32 {PCNT}, 0")
    g.A(f"s_waitcnt vmcnt({newer})")
    tagcheck(g, tagregs)
    g.A(f"s_cbranch_vccz {e}")
    g.lab(l)
    g.sleep(sleep)
    for s in loads: g.A(s)
    g.A(f"s_add_u32 {PCNT}, {PCNT}, 1")
    g.A("s_waitcnt vmcnt(0)")
    tagcheck(g, tagregs)
    g.A(f"s_cbranch_vccz {e}")
    if g.cfg.local and (late or toggle):
        sk = g.newlab("L_gl")
        g.A(f"s_cmp_lt_u32 {PCNT}, {g.cfg.fb}"); g.A(f"s_cbranch_scc1 {sk}")
        for t in toggle: g.A(f"s_xor_b32 {t}, {t}, {BDELTA}")
        if late:
            g.A(f"s_cmp_lg_u32 {PCNT}, {g.cfg.fb}"); g.A(f"s_cbranch_scc1 {sk}")
            late()
        g.lab(sk)
    g.A(f"s_cmp_lt_u32 {PCNT}, 150000")
    g.A(f"s_cbranch_scc1 {l}")
    g.lab(e)
    if g.cfg.stamps: g.A(f"s_min_u32 {PCNT}, {PCNT}, 15"); g.A(f"s_lshl_b32 {PCNT}, {PCNT}, {4*stage}"); g.A(f"s_add_u32 s69, s69, {PCNT}")

def hu_wait(g, which, nmask, addr, dst, delay, backoff=0):
    if not g.cfg.hu or g.cfg.nopoll: return
    l = g.newlab("L_hu"); e = g.newlab("L_hue")
    g.A(f"v_and_b32 v{addr}, {nmask}, v1"); g.A(f"v_lshlrev_b32 v{addr}, 4, v{addr}")
    g.A("s_lshl_b32 s15, s4, 8"); g.A(f"s_add_u32 s15, s15, {W_HU + which*2048}")
    g.A(f"s_mov_b32 {PCNT}, 0")
    g.lab(l)
    g.sleep(backoff)
    g.A(f"buffer_load_dword v{dst}, v{addr}, {WS}, s15 offen sc1")
    g.A(f"s_add_u32 {PCNT}, {PCNT}, 1")
    g.A("s_waitcnt vmcnt(0)")
    g.A(f"v_cmp_ne_u32 vcc, {TAG}, v{dst}")
    g.A(f"s_cbranch_vccz {e}")
    g.A(f"s_cmp_lt_u32 {PCNT}, {g.cfg.hun}"); g.A(f"s_cbranch_scc1 {l}")
    g.lab(e)
    g.sleep(delay)

def hu_probe_issue(g, which, nmask, addr, dst):
    if not (g.cfg.hu and g.cfg.huearly) or g.cfg.nopoll: return
    g.A(f"v_and_b32 v{addr}, {nmask}, v1"); g.A(f"v_lshlrev_b32 v{addr}, 4, v{addr}")
    g.A("s_lshl_b32 s15, s4, 8"); g.A(f"s_add_u32 s15, s15, {W_HU + which*2048}")
    g.A(f"buffer_load_dword v{dst}, v{addr}, {WS}, s15 offen sc1")

def staged(g, which, nmask, addr, dst, delay, loads, preload, fin):
    if not (g.cfg.hu and g.cfg.huearly) or g.cfg.nopoll:
        preload(); hu_wait(g, which, nmask, addr, dst, delay); fin(False); return
    late = g.newlab("L_st"); go = g.newlab("L_sg")
    g.A(f"v_cmp_ne_u32 vcc, {TAG}, v{dst}")
    g.A(f"s_cbranch_vccnz {late}")
    for x_ in loads: g.A(x_)
    g.A("s_mov_b32 s67, 1") if False else None
    g.lab(late)
    g.A("s_mov_b64 s[88:89], vcc") if False else None
    g.A("s_cselect_b32 s0, 0, 0") if False else None
    g.A("s_mov_b64 s[0:1], vcc")
    preload()
    g.A("s_cmp_eq_u64 s[0:1], 0"); g.A(f"s_cbranch_scc1 {go}")
    hu_wait(g, which, nmask, addr, dst, delay)
    for x_ in loads: g.A(x_)
    g.lab(go)
    fin(True)

def hu_post(g, which, tagreg, tmp):
    if not g.cfg.hu: return
    g.A("s_lshl_b32 s15, s4, 4"); g.A("s_add_u32 s15, s15, s7"); g.A("s_lshl_b32 s15, s15, 4"); g.A(f"s_add_u32 s15, s15, {W_HU + which*2048}")
    g.A(f"v_mov_b32 v{tmp}, 0"); g.A("s_mov_b64 exec, 1")
    g.A(f"buffer_store_dword v{tagreg}, v{tmp}, {WS}, s15 offen")
    g.full()

def hu_post0(g, which, tagreg, tmp, force=False):
    if not (g.cfg.hu and (g.cfg.gate or force)): return
    sk = g.newlab("L_hp")
    g.A("s_cmp_lg_u32 s3, 0"); g.A(f"s_cbranch_scc1 {sk}")
    hu_post(g, which, tagreg, tmp)
    g.lab(sk)

def pack24(g, d, a):
    g.A(f"v_perm_b32 v{d}, v{a}, v{a+3}, {PK0}"); g.A(f"v_perm_b32 v{d+1}, v{a+1}, v{a+3}, {PK1}"); g.A(f"v_perm_b32 v{d+2}, v{a+2}, v{a+3}, {PK2}")
def unpack24_d(g, b):
    g.A(f"v_perm_b32 v{b+3}, v{b+1}, v{b}, {UP0}"); g.A(f"v_perm_b32 v{b+3}, v{b+2}, v{b+3}, {UP1}")
def bf16_round(g, d, s):
    g.A(f"v_cvt_pk_bf16_f32 v{d}, v{s}, v{s}"); g.A(f"v_lshlrev_b32 v{d}, 16, v{d}")
def xrow_reduce(g, regs, op="v_add_f32", steps=("ror8", "p16", "p32"), tmp=11):
    n = len(regs)
    for st in steps:
        if st.startswith("ror"):
            g.nop(max(0, 3 - n))
            for r in regs: g.A(f"{op}_dpp v{r}, v{r}, v{r} row_ror:{st[3:]} row_mask:0xf bank_mask:0xf")
        else:
            ins = "v_permlane16_swap_b32" if st == "p16" else "v_permlane32_swap_b32"
            for k, r in enumerate(regs): g.A(f"v_mov_b32 v{tmp+k}, v{r}")
            g.nop(max(0, 3 - n))
            for k, r in enumerate(regs): g.A(f"{ins} v{r}, v{tmp+k}")
            g.nop(max(0, 2 - n))
            for k, r in enumerate(regs): g.A(f"{op} v{r}, v{r}, v{tmp+k}")
def mfma(g, d, a, b, first):
    g.A(f"v_mfma_f32_16x16x32_bf16 v[{d}:{d+3}], v[{a}:{a+3}], v[{b}:{b+3}], {'0' if first else f'v[{d}:{d+3}]'}")
def tr(g, d, addr, off):
    g.A(f"ds_read_b64_tr_b16 v[{d}:{d+1}], v{addr} offset:{off}")

pA, pB, aT, aT2, aF, gT16 = 4, 5, 6, 7, 8, 9
gW, aW, aTb, aTb2 = 28, 29, 30, 31
WF, AC, GD = 64, 32, 192
pK = [240, 241, 242, 243]

def gen(cfg):
    g = G(cfg); A = g.A
    g.stamp(0)
    A("s_load_dwordx16 s[16:31], s[0:1], 0")
    A("s_load_dwordx4 s[32:35], s[0:1], 64")
    A("s_load_dwordx2 s[36:37], s[0:1], 80")
    A("s_cmp_ge_u32 s2, 256"); A("s_cbranch_scc1 L_end")
    A("v_lshrrev_b32 v7, 6, v0"); A("v_and_b32 v1, 63, v0")
    A("s_lshr_b32 s5, s2, 3")
    if cfg.pref:
        A("s_getpc_b64 s[10:11]"); g.lab("L_begin")
        A("s_lshl_b32 s9, s5, 8"); A("v_add_u32 v10, s9, v0"); A("v_and_b32 v10, 1023, v10"); A("v_lshlrev_b32 v10, 4, v10")
        A("s_mov_b32 s9, L_end - L_begin - 64"); A("v_min_u32 v10, s9, v10")
        A("global_load_dwordx4 v[12:15], v10, s[10:11]")
    A("v_readfirstlane_b32 s3, v7")
    A("s_and_b32 s4, s2, 7"); A("s_and_b32 s7, s5, 15"); A("s_lshl_b32 s6, s4, 5"); A("s_add_u32 s6, s6, s5")
    if cfg.swap: A("s_xor_b32 s5, s5, 16")
    A("v_and_b32 v2, 15, v1"); A("v_lshrrev_b32 v3, 4, v1")
    A("v_lshrrev_b32 v16, 5, v0"); A("v_and_b32 v17, 31, v0")
    A("v_lshlrev_b32 v18, 11, v16"); A("v_lshl_add_u32 v18, v17, 4, v18")
    A("s_lshr_b32 s9, s6, 6")
    A("v_lshrrev_b32 v20, 3, v1"); A("v_and_b32 v19, 7, v1")
    A("v_bfe_u32 v21, v1, 4, 1"); A("v_lshlrev_b32 v21, 1, v21"); A("v_xor_b32 v21, v19, v21"); A("v_lshlrev_b32 v21, 4, v21")
    A(f"v_lshl_add_u32 v{pA}, v20, 13, v21"); A(f"v_xor_b32 v{pB}, 64, v{pA}")
    A("s_lshl_b32 s12, s9, 2"); A("s_add_u32 s12, s12, s3"); A("s_lshl_b32 s12, s12, 19"); A("s_and_b32 s13, s6, 63"); A("s_lshl_b32 s13, s13, 7"); A(f"s_add_u32 {sB}, s12, s13")
    A(f"s_lshl_b32 {sM}, s3, 13"); A(f"s_add_u32 {sM}, {sM}, {RQ}")
    A("s_lshl_b32 s13, s9, 9"); A("s_add_u32 s14, s13, 512"); A("s_and_b32 s14, s14, 0x600"); A("s_xor_b32 s12, s13, 1024"); A("s_xor_b32 s9, s14, 1024")
    A("s_waitcnt lgkmcnt(0)")
    srd(g, 40, 16, 16384)
    for i, s in enumerate(["s13", "s14", "s12", "s9"]): A(f"buffer_load_dwordx4 v[{GD+4*i}:{GD+4*i+3}], v18, {XO}, {s} offen")
    srd(g, 44, 22, 8 << 20)
    A("s_load_dword s8, s[36:37], 0")
    for k in range(2): dma4(g, SA, 8 * 8192, [pA, pB, pA, pB])
    g.stamp(1)
    srd(g, 36, 36, 256 << 20); srd(g, 48, 18, 32 << 20)
    A(f"s_mov_b32 {PK0}, 0x07060501"); A(f"s_mov_b32 {PK1}, 0x07060502"); A(f"s_mov_b32 {PK2}, 0x07060503"); A(f"s_mov_b32 {UP0}, 0x0C04000C"); A(f"s_mov_b32 {UP1}, 0x0402010C")
    if cfg.stamps: A("s_mov_b32 s69, 0")
    A("v_mul_u32_u24 v22, 544, v16"); A(f"v_lshl_add_u32 v{aW}, v17, 4, v22"); A(f"v_add_u32 v{aW}, {ACT}, v{aW}")
    A("v_mul_u32_u24 v22, 544, v19"); A(f"v_lshl_add_u32 v{aF}, v3, 4, v22"); A(f"v_add_u32 v{aF}, {ACT}, v{aF}")
    A("v_bfe_u32 v23, v1, 2, 2"); A("v_and_b32 v24, 3, v1"); A("v_lshlrev_b32 v24, 3, v24"); A("v_and_b32 v25, 1, v3"); A("v_lshl_add_u32 v26, v3, 3, v23")
    A("v_lshrrev_b32 v27, 1, v23"); A("v_lshl_add_u32 v27, v25, 1, v27"); A("v_xor_b32 v27, s3, v27"); A("v_lshl_add_u32 v27, v27, 5, v24"); A(f"v_lshl_add_u32 v{aT}, v26, 7, v27")
    A(f"v_add_u32 v{aT2}, 0x10000, v{aT}")
    A(f"v_lshlrev_b32 v{gT16}, 4, v0")
    A("s_lshl_b32 s13, s3, 6"); A("v_lshlrev_b32 v27, 9, v2"); A(f"v_lshl_add_u32 v{gW}, v3, 4, v27"); A(f"v_add_u32 v{gW}, s13, v{gW}")
    A("v_xor_b32 v27, v2, v3"); A("v_lshlrev_b32 v27, 4, v27"); A(f"v_lshl_add_u32 v{pK[0]}, v3, 8, v27")
    for k in range(1, 4): A(f"v_xor_b32 v{pK[k]}, {k*64}, v{pK[0]}")
    A("s_lshl_b32 s68, s4, 4"); A("s_add_u32 s68, s68, s7")
    A("s_lshr_b32 s12, s68, 2"); A("s_lshl_b32 s12, s12, 20"); A("s_and_b32 s13, s68, 3"); A("s_lshl_b32 s13, s13, 16"); A("s_add_u32 s12, s12, s13")
    A(f"s_lshl_b32 {mW}, s3, 14"); A(f"s_add_u32 s12, s12, {mW}"); A("s_add_u32 s66, s12, 0xC0000")
    A(f"s_mov_b32 {sB}, s66"); A(f"s_mov_b32 {sM}, {mW}")
    A("s_lshl_b32 s9, s6, 12"); A(f"s_add_u32 s9, s9, {W_QP}")
    A("s_waitcnt lgkmcnt(0)")
    A("s_mul_i32 s8, s8, 0x9E3779B1"); A("s_add_u32 s8, s8, 0x7F4A7C15")
    U = 96
    A("s_waitcnt vmcnt(8)")
    g.stamp(5)
    for d in range(16):
        A(f"v_lshlrev_b32 v{U+2*d}, 16, v{GD+d}"); A(f"v_and_b32 v{U+2*d+1}, 0xffff0000, v{GD+d}")
    A(f"v_pk_add_f32 v[40:41], v[{U}:{U+1}], v[{U+2}:{U+3}]"); A(f"v_pk_add_f32 v[42:43], v[{U+4}:{U+5}], v[{U+6}:{U+7}]")
    for d in range(4, 16): A(f"v_pk_add_f32 v[{40+2*(d&1)}:{41+2*(d&1)}], v[{40+2*(d&1)}:{41+2*(d&1)}], v[{U+2*d}:{U+2*d+1}]")
    A("v_pk_add_f32 v[40:41], v[40:41], v[42:43]"); A("v_add_f32 v40, v40, v41")
    xrow_reduce(g, [40], steps=("ror8", "ror4", "ror2", "ror1", "p16"))
    A("v_mul_f32 v40, 0xba800000, v40"); A("v_mov_b32 v41, v40")
    for d in range(16):
        r = WF + 2 * (d & 7)
        A(f"v_pk_add_f32 v[{r}:{r+1}], v[{U+2*d}:{U+2*d+1}], v[40:41]")
        a = 44 + 2 * (d & 1)
        if d < 2: A(f"v_pk_mul_f32 v[{a}:{a+1}], v[{r}:{r+1}], v[{r}:{r+1}]")
        else: A(f"v_pk_fma_f32 v[{a}:{a+1}], v[{r}:{r+1}], v[{r}:{r+1}], v[{a}:{a+1}]")
    A("v_pk_add_f32 v[44:45], v[44:45], v[46:47]"); A("v_add_f32 v44, v44, v45")
    xrow_reduce(g, [44], steps=("ror8", "ror4", "ror2", "ror1", "p16"))
    A("v_mul_f32 v44, 0x3a800000, v44")
    bf16_round(g, 40, 40); bf16_round(g, 44, 44)
    A("v_add_f32 v44, 0x3727c5ac, v44"); bf16_round(g, 44, 44)
    A("v_sqrt_f32 v44, v44"); A("v_mov_b32 v41, v40")
    for d in range(4): A(f"v_pk_add_f32 v[{U+2*d}:{U+2*d+1}], v[{U+2*d}:{U+2*d+1}], v[40:41]")
    bf16_round(g, 44, 44)
    A("v_rcp_f32 v46, v44"); A("v_sub_f32 v44, 0, v44"); A("v_mov_b32 v45, v44")
    for d in range(4): A(f"v_cvt_pk_bf16_f32 v{48+d}, v{U+2*d}, v{U+2*d+1}")
    A("v_mov_b32 v47, v46")
    for d in range(4):
        A(f"v_lshlrev_b32 v{U+2*d}, 16, v{48+d}"); A(f"v_and_b32 v{U+2*d+1}, 0xffff0000, v{48+d}")
    for d in range(4): A(f"v_pk_mul_f32 v[{U+16+2*d}:{U+17+2*d}], v[{U+2*d}:{U+2*d+1}], v[46:47]")
    for d in range(4): A(f"v_pk_fma_f32 v[{U+2*d}:{U+2*d+1}], v[{U+16+2*d}:{U+17+2*d}], v[44:45], v[{U+2*d}:{U+2*d+1}]")
    for d in range(4): A(f"v_pk_fma_f32 v[{U+16+2*d}:{U+17+2*d}], v[{U+2*d}:{U+2*d+1}], v[46:47], v[{U+16+2*d}:{U+17+2*d}]")
    for d in range(4): A(f"v_cvt_pk_bf16_f32 v{48+d}, v{U+16+2*d}, v{U+17+2*d}")
    A(f"ds_write_b128 v{aW}, v[48:51]")
    g.stamp(2)
    A(f"v_mov_b32 v14, {TAG}"); A(f"v_mov_b32 v15, {TAG}"); A(f"v_mov_b32 v42, {TAG}"); A(f"v_mov_b32 v43, {TAG}")
    nk0 = cfg.nk0
    A("s_cmp_lt_u32 s5, 16"); A("s_cbranch_scc1 L_nok")
    done = 0
    while done < nk0:
        n = min(4, nk0 - done)
        dma4(g, SB, 1024, pK, waits=[max(0, 7 - min(7, done + jj + cfg.kwin)) + done + jj for jj in range(4)], hi=n, adv=(n == 4))
        done += n
    A(f"s_waitcnt vmcnt({nk0}) lgkmcnt(0)"); A("s_branch L_qb")
    g.lab("L_nok")
    A("s_waitcnt vmcnt(0) lgkmcnt(0)")
    g.lab("L_qb")
    A("s_barrier")
    XFq = 192
    for k in range(8):
        A(f"ds_read_b128 v[{XFq+4*k}:{XFq+4*k+3}], v{aF} offset:{k*64}")
        for q in range(2): tr(g, WF + 4 * k + 2 * q, aT2, RQ - 65536 + k * 4096 + q * 512)
        if k >= 4:
            A("s_waitcnt lgkmcnt(12)"); mfma(g, AC, WF + 4 * (k - 4), XFq + 4 * (k - 4), k == 4)
    for k in range(4, 8):
        A(f"s_waitcnt lgkmcnt({3*(7-k)})"); mfma(g, AC, WF + 4 * k, XFq + 4 * k, False)
    g.setexec(0x00ff00ff00ff00ff)
    g.nop(6)
    if cfg.qf24:
        for e in range(4): A(f"v_add_u32 v{AC+e}, 0x80, v{AC+e}")
        pack24(g, 12, AC)
        A(f"buffer_store_dwordx4 v[12:15], v{gW}, {WS}, s9 offen sc1")
    else:
        A(f"v_mov_b32 v12, v{AC}"); A(f"v_mov_b32 v13, v{AC+1}"); A(f"v_mov_b32 v40, v{AC+2}"); A(f"v_mov_b32 v41, v{AC+3}")
        A(f"buffer_store_dwordx4 v[12:15], v{gW}, {WS}, s9 offen sc1")
        A(f"buffer_store_dwordx4 v[40:43], v{gW}, {WS}, s9 offen offset:256 sc1")
    g.full()
    g.stamp(3)
    A("s_cmp_eq_u32 s5, 15"); A("s_cbranch_scc1 L_done")
    A("s_barrier")
    A("s_cmp_ge_u32 s5, 16"); A("s_cbranch_scc1 L_attn")
    A(f"s_lshl_b32 {sM}, s3, 15")
    A("s_cmp_ge_u32 s5, 8"); A("s_cbranch_scc1 L_f1")
    role_o(g)
    role_f1(g)
    role_attn(g)
    g.lab("L_done")
    g.stamp(15)
    if cfg.stamps == 2:
        g.full()
        A("s_cmp_ge_u32 s5, 8"); A("s_cbranch_scc1 L_end")
        A("s_waitcnt lgkmcnt(0)"); A("s_not_b32 s70, s70")
        for i in range(16): A(f"v_writelane_b32 v10, s{70+2*i}, {i}")
        srd(g, 44, 34, 256); A("v_lshlrev_b32 v11, 2, v1"); g.setexec(0xffff)
        A("buffer_atomic_umax v10, v11, s[44:47], 0 offen sc1")
    if cfg.stamps == 1:
        g.full()
        A("s_waitcnt lgkmcnt(0)"); A("s_mov_b32 s72, s69")
        for i in range(16): A(f"v_writelane_b32 v10, s{70+2*i}, {i}")
        A("s_lshl_b32 s9, s2, 4"); A("s_add_u32 s9, s9, s3"); A("s_lshl_b32 s9, s9, 6"); A(f"s_add_u32 s9, s9, {STAMP_OFF}")
        A("v_lshlrev_b32 v11, 2, v1"); g.setexec(0xffff)
        A(f"buffer_store_dword v10, v11, {WS}, s9 offen")
    g.lab("L_end"); A("s_endpgm")
    return wrap(DOC + "\n".join(g.L), 256, 256, LDS_END, vgpr=256, sgpr=102)

def role_o(g):
    A = g.A; cfg = g.cfg
    gOUT, gL16, gP, gS = 62, 63, 18, 27
    PO = [240, 241, 242, 243]
    AO, XF = 208, 192
    A("s_lshr_b32 s12, s7, 1"); A("s_lshl_b32 s11, s4, 2"); A("s_add_u32 s12, s12, s11"); A("s_and_b32 s13, s7, 1")
    for k in range(4): A(f"v_xor_b32 v{PO[k]}, {2*k}, v1");
    for k in range(4): A(f"v_lshlrev_b32 v{PO[k]}, 4, v{PO[k]}")
    srd(g, 44, 24, 8 << 20)
    A("s_lshl_b32 s6, s4, 3"); A("s_add_u32 s6, s6, s7"); A("s_lshl_b32 s14, s6, 2"); A("s_add_u32 s14, s14, s3")
    A(f"v_lshlrev_b32 v{gOUT}, 11, v19"); A("s_lshl_b32 s68, s14, 3")
    A(f"buffer_load_dwordx2 v[60:61], v{gOUT}, {XO}, s68 offen")
    A("s_lshl_b32 s10, s12, 2"); A("s_add_u32 s10, s10, s3"); A("s_lshl_b32 s10, s10, 16"); A("s_lshl_b32 s11, s13, 10"); A(f"s_add_u32 {sB}, s10, s11")
    if not cfg.gate: g.sleep(cfg.osl)
    w0 = [cfg.ow1 - 1 if k < cfg.on1 else cfg.ow2 - 1 for k in range(8)]
    dma4(g, SA, 2048, PO, waits=w0[:4]); dma4(g, SA, 2048, PO, waits=w0[4:])
    A(f"s_mov_b32 {sI}, 1")
    l = g.newlab("L_dl")
    g.lab(l)
    for k in range(4): A(f"v_xor_b32 v{PO[k]}, 128, v{PO[k]}")
    dma4(g, SA, 2048, PO, waits=cfg.ow2 - 1); dma4(g, SA, 2048, PO, waits=cfg.ow2 - 1)
    A(f"s_add_u32 {sI}, {sI}, 1"); A(f"s_cmp_lt_u32 {sI}, 4"); A(f"s_cbranch_scc1 {l}")
    A("v_lshl_add_u32 v22, v25, 2, v23"); A("v_lshl_add_u32 v22, v22, 5, v24"); A("s_lshl_b32 s11, s3, 8")
    A(f"v_lshl_add_u32 v{aT}, v26, 10, v22"); A(f"v_add_u32 v{aT}, s11, v{aT}")
    A("v_mul_u32_u24 v22, 288, v16"); A(f"v_lshl_add_u32 v{aW}, v17, 3, v22"); A(f"v_add_u32 v{aW}, {ACT}, v{aW}")
    A("v_mul_u32_u24 v22, 288, v19"); A(f"v_lshl_add_u32 v{aF}, v3, 4, v22"); A(f"v_add_u32 v{aF}, {ACT}, v{aF}")
    A("s_lshl_b32 s11, s3, 3"); A("v_lshrrev_b32 v22, 3, v2"); A("v_add_u32 v22, s11, v22"); A("v_lshl_add_u32 v22, v22, 2, v3"); A("v_lshlrev_b32 v22, 12, v22"); A(f"v_lshl_add_u32 v{gW}, v19, 4, v22")
    A("v_lshlrev_b32 v22, 16, v16"); A(f"v_lshl_add_u32 v{gP}, v17, 4, v22")
    A("v_lshlrev_b32 v22, 11, v16"); A(f"v_lshl_add_u32 v{gS}, v24, 4, v22")
    A("v_cmp_lt_u32 s[66:67], 7, v2")
    for r_ in (47, 50, 51, 54, 55): A(f"v_mov_b32 v{r_}, {TAG}")
    A(f"v_lshlrev_b32 v{gL16}, 4, v1")
    A("s_lshl_b32 s10, s3, 6"); A(f"v_lshl_add_u32 v{aTb2}, v19, 3, s10"); A(f"v_add_u32 v{aTb2}, {STL_}, v{aTb2}")
    A("s_lshr_b32 s10, s12, 3"); A("s_and_b32 s11, s12, 7")
    A(f"s_lshl_b32 {SO[0]}, s10, 14"); A("s_lshl_b32 s9, s11, 9"); A(f"s_add_u32 {SO[0]}, {SO[0]}, s9"); A(f"s_add_u32 {SO[0]}, {SO[0]}, {W_AP}")
    for i in range(1, 4): A(f"s_add_u32 {SO[i]}, {SO[0]}, {i*4096}")
    A("s_lshl_b32 s10, s10, 9"); A("s_lshl_b32 s11, s11, 4"); A("s_add_u32 s11, s11, s10"); A(f"s_add_u32 s11, s11, {W_AS}")
    A("s_lshl_b32 s9, s13, 19"); A("s_lshl_b32 s10, s12, 7"); A("s_add_u32 s9, s9, s10"); A(f"s_add_u32 s9, s9, {W_OP}")
    A(f"s_add_u32 s10, s9, 32768"); A("s_add_u32 s12, s9, 65536"); A("s_add_u32 s13, s9, 98304")
    hu_probe_issue(g, 0, 15, 40, 41)
    A("s_waitcnt vmcnt(0)")
    A("s_barrier")
    g.stamp(4)
    hu_post0(g, 5, 55, 12)
    GA = 192
    cl = [f"buffer_load_dwordx4 v[{GA+16}:{GA+19}], v{gS}, {WS}, s11 offen sc1"] + [f"buffer_load_dwordx4 v[{GA+4*k}:{GA+4*k+3}], v{gP}, {WS}, {SO[k]} offen sc1" for k in range(4)]
    def pre_o():
        for tt in range(8):
            a0, a1 = 12 + 2 * (tt & 1), 13 + 2 * (tt & 1)
            A(f"v_xor_b32 v{a0}, {tt*32}, v{aT}"); A(f"v_add_u32 v{a1}, 0x10000, v{a0}")
            for k in range(4):
                for q in range(2): tr(g, WF + 16 * tt + 4 * k + 2 * q, a0 if k < 2 else a1, (k & 1) * 32768 + q * 4096)
        srd(g, 40, 32, 16384)
        for p in range(2):
            A(f"v_lshlrev_b32 v{56+2*p}, 16, v{60+p}"); A(f"v_and_b32 v{57+2*p}, 0xffff0000, v{60+p}")
    staged(g, 0, 15, 40, 41, cfg.da, cl, pre_o, lambda iss: gather(g, cl, [GA + 18, GA + 19] + [GA + 4 * k + 3 for k in range(4)], 2, sleep=cfg.ps, issued=iss))
    M, Lr = GA + 16, GA + 17
    A(f"v_max_f32_dpp v36, v{M}, v{M} quad_perm:[1,0,3,2] row_mask:0xf bank_mask:0xf")
    unpack24_d(g, GA)
    A("v_max_f32_dpp v36, v36, v36 quad_perm:[2,3,0,1] row_mask:0xf bank_mask:0xf")
    A(f"v_sub_f32 v37, v{M}, v36"); A("v_exp_f32 v37, v37")
    unpack24_d(g, GA + 4)
    A(f"v_mul_f32 v38, v37, v{Lr}")
    unpack24_d(g, GA + 8)
    A("v_add_f32_dpp v38, v38, v38 quad_perm:[1,0,3,2] row_mask:0xf bank_mask:0xf")
    unpack24_d(g, GA + 12)
    A("v_add_f32_dpp v38, v38, v38 quad_perm:[2,3,0,1] row_mask:0xf bank_mask:0xf")
    for e in range(4): A(f"v_mul_f32_dpp v{40+e}, v37, v{GA+e} quad_perm:[0,0,0,0] row_mask:0xf bank_mask:0xf")
    A("v_rcp_f32 v38, v38")
    for k in range(1, 4):
        for e in range(4): A(f"v_fmac_f32_dpp v{40+e}, v37, v{GA+4*k+e} quad_perm:[{k},{k},{k},{k}] row_mask:0xf bank_mask:0xf")
    for e in range(4): A(f"v_mul_f32 v{40+e}, v{40+e}, v38")
    A("v_cvt_pk_bf16_f32 v32, v40, v41"); A("v_cvt_pk_bf16_f32 v33, v42, v43")
    A(f"ds_write_b64 v{aW}, v[32:33]")
    if cfg.dumpo:
        A(f"v_mov_b32 v34, {TAG}"); A(f"v_mov_b32 v35, {TAG}"); A("s_lshr_b32 s15, s6, 1"); A("s_lshl_b32 s15, s15, 12"); A(f"s_add_u32 s15, s15, {W_OB}")
        A(f"buffer_store_dwordx4 v[32:35], v{gT16}, {WS}, s15 offen sc1")
    A(f"s_lshl_b32 {SO[0]}, s14, 12"); A(f"s_add_u32 {SO[0]}, {SO[0]}, {W_OP}"); A(f"s_lshl_b32 {SO[1]}, s14, 10"); A(f"s_add_u32 {SO[1]}, {SO[1]}, {W_FP}")
    A(f"s_lshl_b32 {SO[2]}, s14, 7"); A(f"s_add_u32 {SO[2]}, {SO[2]}, {W_HB}"); A(f"s_lshl_b32 {SO[3]}, s6, 7"); A(f"s_add_u32 {SO[3]}, {SO[3]}, {W_HS}")
    for r_ in (35, 39, 43): A(f"v_mov_b32 v{r_}, {TAG}")
    g.stamp(8)
    A("s_waitcnt lgkmcnt(0)")
    A("s_barrier")
    for k in range(4): A(f"ds_read_b128 v[{XF+4*k}:{XF+4*k+3}], v{aF} offset:{k*64}")
    A("s_waitcnt lgkmcnt(0)")
    def fin_pair(m):
        for e in range(4): A(f"v_cndmask_b32 v{12+e}, v{AO+8*m+e}, v{AO+8*m+4+e}, s[66:67]")
        pack24(g, 32 + 4 * m, 12)
        A(f"buffer_store_dwordx4 v[{32+4*m}:{35+4*m}], v{gW}, {WS}, {['s9', 's10', 's12', 's13'][m]} offen sc1")
    for m in range(4):
        for k in range(4):
            for tl in range(2): mfma(g, AO + 8 * m + 4 * tl, WF + 16 * (2 * m + tl) + 4 * k, XF + 4 * k, k == 0)
        if m >= 1: fin_pair(m - 1)
    g.nop(1)
    fin_pair(3)
    g.stamp(9)
    def red(so, nl, stage):
        rl = [f"buffer_load_dwordx4 v[{GD+4*k}:{GD+4*k+3}], v{gL16}, {WS}, {so} offen offset:{k*1024} sc1" for k in range(nl)]
        gather(g, rl, [GD + 4 * k + 3 for k in range(nl)], stage, sleep=cfg.ps)
        if nl == 4 and cfg.e1: hu_post0(g, 1, 55, 12, force=True)
        for k in range(nl): unpack24_d(g, GD + 4 * k)
        if nl == 4:
            for h in range(2):
                A(f"v_pk_add_f32 v[{GD+2*h}:{GD+2*h+1}], v[{GD+2*h}:{GD+2*h+1}], v[{GD+4+2*h}:{GD+5+2*h}]"); A(f"v_pk_add_f32 v[{GD+8+2*h}:{GD+9+2*h}], v[{GD+8+2*h}:{GD+9+2*h}], v[{GD+12+2*h}:{GD+13+2*h}]")
            for h in range(2): A(f"v_pk_add_f32 v[{GD+2*h}:{GD+2*h+1}], v[{GD+2*h}:{GD+2*h+1}], v[{GD+8+2*h}:{GD+9+2*h}]")
            g.nop(1)
        xrow_reduce(g, [GD, GD + 1, GD + 2, GD + 3], steps=("ror8", "p16", "p32"), tmp=12)
        A(f"v_cvt_pk_bf16_f32 v12, v{GD}, v{GD+1}"); A(f"v_cvt_pk_bf16_f32 v13, v{GD+2}, v{GD+3}")
        for p in range(2):
            A(f"v_lshlrev_b32 v{40+2*p}, 16, v{12+p}"); A(f"v_and_b32 v{41+2*p}, 0xffff0000, v{12+p}")
        for h in range(2): A(f"v_pk_add_f32 v[{40+2*h}:{41+2*h}], v[{40+2*h}:{41+2*h}], v[{56+2*h}:{57+2*h}]")
        if nl == 4: A("v_pk_mul_f32 v[44:45], v[40:41], v[40:41]")
        A("v_cvt_pk_bf16_f32 v48, v40, v41")
        if nl == 4: A("v_pk_fma_f32 v[44:45], v[42:43], v[42:43], v[44:45]")
        A("v_cvt_pk_bf16_f32 v49, v42, v43")
    g.sleep(cfg.d4)
    red(SO[0], 4, 3)
    A("v_add_f32 v50, v44, v45")
    g.setexec(0xff)
    A(f"buffer_store_dwordx4 v[48:51], v{gL16}, {WS}, {SO[2]} offen sc1")
    if not cfg.e1: hu_post0(g, 1, 55, 12, force=True)
    g.full()
    for p in range(2):
        A(f"v_lshlrev_b32 v{56+2*p}, 16, v{48+p}"); A(f"v_and_b32 v{57+2*p}, 0xffff0000, v{48+p}")
    g.stamp(10)
    if not cfg.hu: g.sleep(cfg.d7)
    hu_wait(g, 2, 15, 12, 13, cfg.dc)
    red(SO[1], 1, 6)
    g.setexec(0xff)
    A(f"buffer_store_dwordx2 v[48:49], v{gOUT}, {XO}, s68 offen {['', 'sc1', 'nt', 'sc0 sc1'][cfg.outst]}")
    A("s_mov_b64 exec, 1")
    A("s_cmp_lg_u32 s14, 0"); A("s_cbranch_scc1 L_done")
    A(f"v_mov_b32 v12, {TAG}"); A("v_mov_b32 v13, 0")
    A(f"buffer_store_dword v12, v13, {WS}, 0 offen sc1")
    A("s_branch L_done")

def role_f1(g):
    A = g.A; cfg = g.cfg
    STL = "" if cfg.local else "sc1"
    HF = 224
    g.lab("L_f1")
    A("s_movk_i32 s12, 7168"); A("v_mul_lo_u32 v22, v20, s12"); A(f"v_add_u32 v{pA}, v22, v21"); A(f"v_xor_b32 v{pB}, 64, v{pA}")
    srd(g, 44, 28, 7340032)
    A("s_mul_i32 s12, s4, 7"); A("s_add_u32 s12, s12, s7"); A("s_sub_u32 s12, s12, 8"); A("s_lshl_b32 s13, s12, 7"); A(f"s_mul_i32 s14, s3, {256*7168}"); A(f"s_add_u32 {sB}, s13, s14")
    P2 = [pA, pB, pA, pB]
    if cfg.gate: hu_wait(g, 4, cfg.gmask, 40, 41, 0, backoff=2)
    else: g.sleep(cfg.fsl)
    w0 = [cfg.fw1 - 1 if k < cfg.fn1 else cfg.fw2 - 1 for k in range(8)]
    dma4(g, SA, 8 * 7168, P2, waits=w0[:4]); dma4(g, SA, 8 * 7168, P2, waits=w0[4:])
    dma_loop(g, SA, 8 * 7168, P2, 6, cfg.fw2)
    A("v_mul_u32_u24 v22, 2080, v19"); A("v_lshrrev_b32 v27, 3, v0"); A(f"v_lshl_add_u32 v{aW}, v27, 3, v22"); A(f"v_add_u32 v{aW}, {ACT}, v{aW}")
    A(f"v_lshl_add_u32 v{aF}, v3, 4, v22"); A(f"v_add_u32 v{aF}, {ACT}, v{aF}"); A("v_and_b32 v22, 8, v1"); A(f"v_lshl_add_u32 v{aF}, v22, 3, v{aF}")
    A("s_lshl_b32 s13, s3, 9"); A("v_lshlrev_b32 v22, 7, v3"); A(f"v_lshl_add_u32 v{gW}, v2, 4, v22"); A(f"v_add_u32 v{gW}, s13, v{gW}")
    A(f"s_lshl_b32 s9, s12, 11"); A(f"s_add_u32 s9, s9, {W_AB}"); A(f"s_add_u32 s10, s9, {BDELTA}")
    for i in range(4): A(f"s_mov_b32 {SO[i]}, {W_HB+8192*i}")
    A(f"v_add_u32 v{aTb}, 4096, v{gT16}")
    A("v_mov_b32 v12, 0x3f803f80"); A("v_mov_b32 v13, v12"); A("v_mov_b32 v14, v12"); A("v_mov_b32 v15, v12")
    A(f"s_mov_b32 s68, {W_HS}")
    A("s_lshl_b32 s13, s3, 6"); A(f"v_lshl_add_u32 v{aTb2}, v19, 3, s13"); A(f"v_add_u32 v{aTb2}, {STL_}, v{aTb2}")
    A("v_lshlrev_b32 v27, 3, v19"); A(f"v_add_u32 v27, {STL_}, v27")
    A(f"v_mov_b32 v46, {TAG}"); A(f"v_mov_b32 v47, {TAG}")
    hu_probe_issue(g, 1, 7, 40, 41)
    A("s_waitcnt vmcnt(0)")
    A("s_barrier")
    g.stamp(4)
    hl = [f"buffer_load_dwordx4 v[{GD+4*k}:{GD+4*k+3}], v{gT16 if k % 2 == 0 else aTb}, {WS}, {SO[k>>1]} offen sc1" for k in range(8)]
    def pre_1():
        for k in range(32):
            for q in range(2): tr(g, WF + 4 * k + 2 * q, aT if k < 16 else aT2, (k & 15) * 4096 + q * 512)
            if k >= 6:
                A("s_waitcnt lgkmcnt(12)"); mfma(g, AC + 4, WF + 4 * (k - 6), 12, k == 6)
        for k in range(26, 32):
            A(f"s_waitcnt lgkmcnt({2*(31-k)})"); mfma(g, AC + 4, WF + 4 * k, 12, False)
        g.stamp(10)
    staged(g, 1, 7, 40, 41, cfg.db, hl, pre_1, lambda iss: gather(g, hl, [GD + 4 * k + 3 for k in range(8)], 4, sleep=cfg.ps, issued=iss))
    for k in range(8): A(f"ds_write_b64 v{aW}, v[{GD+4*k}:{GD+4*k+1}] offset:{k*256}")
    g.stamp(11)
    for k in range(8):
        A(f"v_dot2_f32_bf16 v40, v{GD+4*k}, v12, {'0' if k == 0 else 'v40'}"); A(f"v_dot2_f32_bf16 v42, v{GD+4*k+1}, v12, {'0' if k == 0 else 'v42'}")
        if k == cfg.dsplit - 1:
            A("s_waitcnt lgkmcnt(0)"); A("s_barrier")
            for kk in range(8): A(f"ds_read_b128 v[{HF+4*kk}:{HF+4*kk+3}], v{aF} offset:{kk*128}")
    for k in range(1, 8): A(f"v_add_f32 v41, v{GD+4*k+2}, {f'v{GD+2}' if k == 1 else 'v41'}")
    side = {}
    side.update({
        0: ["v_add_f32 v40, v40, v42"],
        1: ["v_add_f32_dpp v40, v40, v40 row_ror:8 row_mask:0xf bank_mask:0xf", "v_add_f32_dpp v41, v41, v41 row_ror:8 row_mask:0xf bank_mask:0xf"],
        2: ["v_mov_b32 v42, v40", "v_mov_b32 v43, v41"],
        3: ["v_permlane16_swap_b32 v40, v42", "v_permlane16_swap_b32 v41, v43"],
        4: ["v_pk_add_f32 v[40:41], v[40:41], v[42:43]"],
        5: ["v_mov_b32 v42, v40", "v_mov_b32 v43, v41"],
        6: ["v_permlane32_swap_b32 v40, v42", "v_permlane32_swap_b32 v41, v43"],
        7: ["v_pk_add_f32 v[40:41], v[40:41], v[42:43]"],
        8: ["s_mov_b32 exec_lo, 0xff", "s_mov_b32 exec_hi, 0", f"ds_write_b64 v{aTb2}, v[40:41]", "s_mov_b64 exec, -1"],
        11: ["s_barrier"] + [f"ds_read_b64 v[{48+2*w}:{49+2*w}], v27 offset:{w*64}" for w in range(4)],
        16: ["v_pk_add_f32 v[48:49], v[48:49], v[50:51]", "v_pk_add_f32 v[52:53], v[52:53], v[54:55]", "v_pk_add_f32 v[48:49], v[48:49], v[52:53]"],
        17: ["v_mul_f32 v48, 0x3a800000, v48", "v_mul_f32 v49, 0x3a800000, v49", "v_fma_f32 v49, -v48, v48, v49"],
        18: ["v_max_f32 v49, 0, v49", "v_cvt_pk_bf16_f32 v49, v49, v49", "v_lshlrev_b32 v49, 16, v49"],
        19: ["v_add_f32 v49, 0x3727c5ac, v49", "v_cvt_pk_bf16_f32 v49, v49, v49", "v_lshlrev_b32 v49, 16, v49"],
        20: ["v_sqrt_f32 v49, v49", "v_cvt_pk_bf16_f32 v48, v48, v48"],
        21: ["v_cvt_pk_bf16_f32 v49, v49, v49", "v_lshlrev_b32 v48, 16, v48", "v_lshlrev_b32 v49, 16, v49"],
        22: ["v_rcp_f32 v49, v49"],
    })
    seq = [("f", k) for k in range(8)]
    for k in range(32):
        m = k >> 1
        need = seq.index(("f", m))
        if k == 11: need = max(need, seq.index(("w", 0)))
        if k == 16: need = max(need, seq.index(("s", 3)))
        if k % 2 == 0 or k in (11,): A(f"s_waitcnt lgkmcnt({len(seq) - 1 - need})")
        mfma(g, AC if k % 2 == 0 else 56, WF + 4 * k, HF + 4 * (m & 7), k < 2)
        if k % 2 == 1 and m + 8 < 16:
            A(f"ds_read_b128 v[{HF+4*(m&7)}:{HF+4*(m&7)+3}], v{aF} offset:{(m+8)*128}"); seq.append(("f", m + 8))
        for x_ in side.get(k, []): A(x_)
        if k == 8: seq.append(("w", 0))
        if k == 11: seq += [("s", w) for w in range(4)]
    g.nop(7)
    for e in range(4): A(f"v_fma_f32 v{40+e}, -v48, v{AC+4+e}, v{AC+e}")
    for e in range(4): A(f"v_add_f32_dpp v{40+e}, v{56+e}, v{40+e} row_ror:8 row_mask:0xf bank_mask:0xf")
    g.setexec(0x00ff00ff00ff00ff)
    for e in range(4): A(f"v_mul_f32 v{40+e}, v{40+e}, v49")
    for e in range(4): A(f"v_max_f32 v{40+e}, 0, v{40+e}")
    A("v_cvt_pk_bf16_f32 v44, v40, v41"); A("v_cvt_pk_bf16_f32 v45, v42, v43")
    A(f"buffer_store_dwordx4 v[44:47], v{gW}, {WS}, s9 offen {STL}")
    if cfg.local: A(f"buffer_store_dwordx4 v[44:47], v{gW}, {WS}, s10 offen sc1")
    g.stamp(12)
    A("s_branch L_done")

def role_attn(g):
    A = g.A; cfg = g.cfg
    STL = "" if cfg.local else "sc1"
    KF, VF, QF, SC, PV, GA = 64, 128, 192, 32, 208, 128
    PF, RS = 48, 56
    pV = [244, 245]; p2 = [4, 5]
    aK, aV, gQ, aQw, aVb, aMw, aMr, aPw, aPr, gAP = range(246, 256)
    gL16 = 18
    g.lab("L_attn")
    A("s_mov_b32 s6, s68")
    nk0 = cfg.nk0
    done = nk0
    npost = 0
    while done < 16:
        lo = done & 3
        dma4(g, SB, 1024, pK, waits=cfg.kw - 1, lo=lo)
        done += 4 - lo
        if done == cfg.g4: hu_post0(g, 4, 43, 12)
    srd(g, 44, 20, 32 << 20)
    A("v_lshlrev_b32 v22, 1, v3"); A("v_xor_b32 v22, v2, v22"); A("v_lshlrev_b32 v22, 4, v22"); A(f"v_lshl_add_u32 v{pV[0]}, v3, 8, v22"); A(f"v_xor_b32 v{pV[1]}, 128, v{pV[0]}")
    A(f"s_mov_b32 {sB}, s66"); A(f"s_add_u32 {sM}, {mW}, 0x10000")
    A("s_lshr_b32 s10, s7, 2"); A("s_lshl_b32 s10, s10, 16"); A("s_lshl_b32 s11, s4, 9"); A("s_add_u32 s10, s10, s11"); A(f"s_add_u32 {SO[0]}, s10, {W_QP}")
    for i in range(1, 4): A(f"s_add_u32 {SO[i]}, {SO[0]}, {i*262144}")
    A("v_lshrrev_b32 v22, 4, v0"); A("v_lshlrev_b32 v22, 12, v22"); A(f"v_lshl_add_u32 v{gQ}, v2, 4, v22")
    PVp = [pV[0], pV[1], pV[0], pV[1]]
    QD = 192
    ql = [f"buffer_load_dwordx4 v[{QD+8*k+4*h}:{QD+8*k+4*h+3}], v{gQ}, {WS}, {SO[k]} offen offset:{256*h} sc1" for k in range(4) for h in range(1 if cfg.qf24 else 2)]
    NQ = len(ql)
    for k in range(4):
        if k == cfg.qpos:
            for s in ql: A(s)
        dma4(g, SA, 1024, PVp, waits=cfg.vw - 1 + (NQ if k >= cfg.qpos else 0))
        if 20 + 4 * k == cfg.g4: hu_post0(g, 4, 43, 12)
        if k == 0:
            A("v_lshl_add_u32 v27, v25, 2, v23"); A("v_lshl_add_u32 v27, v27, 5, v24"); A("v_lshl_add_u32 v22, v3, 2, v23")
            A("s_lshl_b32 s13, s3, 6"); A("v_xor_b32 v27, s13, v27")
            A(f"v_lshl_add_u32 v{aV}, v22, 8, v27"); A(f"v_add_u32 v{aV}, 0x10000, v{aV}"); A(f"v_xor_b32 v{aVb}, 32, v{aV}")
            A("v_xor_b32 v22, v3, v2"); A("v_lshlrev_b32 v22, 4, v22"); A(f"v_lshl_add_u32 v{aK}, v2, 8, v22"); A(f"v_add_u32 v{aK}, {mW}, v{aK}")
            A("v_mul_u32_u24 v22, 288, v16"); A(f"v_lshl_add_u32 v{aQw}, v17, 3, v22"); A(f"v_add_u32 v{aQw}, {QL}, v{aQw}")
            A("v_mul_u32_u24 v22, 288, v19"); A(f"v_lshl_add_u32 v{aF}, v3, 4, v22"); A(f"v_add_u32 v{aF}, {QL}, v{aF}")
            A(f"v_lshlrev_b32 v22, 4, v19"); A(f"v_add_u32 v{aMr}, {CB+4096}, v22"); A("s_lshl_b32 s13, s3, 2"); A(f"v_add_u32 v{aMw}, s13, v{aMr}")
            A(f"v_lshl_add_u32 v22, v3, 7, v22"); A(f"v_add_u32 v{aPr}, {CB}, v22"); A("s_lshl_b32 s13, s3, 10"); A(f"v_add_u32 v{aPw}, s13, v{aPr}")
            A(f"v_lshlrev_b32 v{gL16}, 4, v1")
            A("s_lshl_b32 s13, s3, 1"); A("v_lshrrev_b32 v22, 3, v2"); A("v_add_u32 v22, s13, v22"); A("v_lshl_add_u32 v22, v22, 2, v3"); A("v_lshlrev_b32 v22, 4, v22"); A(f"v_lshl_add_u32 v{gAP}, v19, 9, v22")
            A("v_cmp_lt_u32 s[66:67], 7, v2")
            for kk in range(1, 4): A(f"v_xor_b32 v{36+kk}, {kk*64}, v{aK}")
            A(f"v_mov_b32 v{RS+3}, {TAG}"); A(f"v_mov_b32 v{RS+6}, {TAG}"); A(f"v_mov_b32 v{RS+7}, {TAG}")
            A("v_mov_b32 v28, 0x3fb8aa3b"); A("v_mov_b32 v29, v28")
            A(f"v_lshl_add_u32 v{p2[0]}, v20, 11, v21"); A(f"v_xor_b32 v{p2[1]}, 64, v{p2[0]}")
    if cfg.qpos >= 4:
        A(f"s_waitcnt vmcnt({cfg.qw})")
        for s in ql: A(s)
    newer = max(0, 4 - cfg.qpos) * 4
    A(f"s_waitcnt vmcnt({16+NQ})")
    for tl in range(4):
        for k in range(4): A(f"ds_read_b128 v[{KF+16*tl+4*k}:{KF+16*tl+4*k+3}], v{aK if k == 0 else 36+k} offset:{tl*4096}")
    srd(g, 48, 30, 7340032)
    A("s_lshl_b32 s12, s4, 2"); A("s_add_u32 s12, s12, s3"); A(f"s_mul_i32 s12, s12, {112*2048}"); A("s_lshl_b32 s13, s7, 7"); A(f"s_add_u32 {sB}, s12, s13")
    A(f"s_mul_i32 {sM}, s3, {14*1024}")
    g.stamp(11)
    if cfg.qf24:
        gather(g, ql, [QD + 8 * j + 3 for j in range(4)], 0, issued=True, newer=newer)
        g.stamp(4)
        for j in range(4):
            unpack24_d(g, QD + 8 * j)
            for e in range(3): A(f"v_and_b32 v{QD+8*j+e}, 0xffffff00, v{QD+8*j+e}")
        for h in range(2):
            A(f"v_pk_add_f32 v[{12+2*h}:{13+2*h}], v[{QD+2*h}:{QD+2*h+1}], v[{QD+8+2*h}:{QD+9+2*h}]"); A(f"v_pk_add_f32 v[{32+2*h}:{33+2*h}], v[{QD+16+2*h}:{QD+17+2*h}], v[{QD+24+2*h}:{QD+25+2*h}]")
        for h in range(2): A(f"v_pk_add_f32 v[{12+2*h}:{13+2*h}], v[{12+2*h}:{13+2*h}], v[{32+2*h}:{33+2*h}]")
    else:
        gather(g, ql, [QD + 4 * j + 2 for j in range(8)] + [QD + 4 * j + 3 for j in range(8)], 0, issued=True, newer=newer)
        g.stamp(4)
        for h in range(2):
            A(f"v_pk_add_f32 v[{12+2*h}:{13+2*h}], v[{QD+4*h}:{QD+4*h+1}], v[{QD+8+4*h}:{QD+9+4*h}]"); A(f"v_pk_add_f32 v[{32+2*h}:{33+2*h}], v[{QD+16+4*h}:{QD+17+4*h}], v[{QD+24+4*h}:{QD+25+4*h}]")
        for h in range(2): A(f"v_pk_add_f32 v[{12+2*h}:{13+2*h}], v[{12+2*h}:{13+2*h}], v[{32+2*h}:{33+2*h}]")
    A("v_cvt_pk_bf16_f32 v12, v12, v13"); A("v_cvt_pk_bf16_f32 v13, v14, v15")
    A(f"ds_write_b64 v{aQw}, v[12:13]")
    A("s_mov_b32 s9, 0x3db504f3"); A("s_mov_b32 s10, 0x3fb8aa3b")
    A("s_waitcnt lgkmcnt(0)")
    A("s_barrier")
    for k in range(4): A(f"ds_read_b128 v[{QF+4*k}:{QF+4*k+3}], v{aF} offset:{k*64}")
    P2 = [p2[0], p2[1], p2[0], p2[1]]
    n2 = cfg.w2e
    for k in range(n2 // 4): dma4(g, SB, 8 * 2048, P2)
    for k in range(4):
        A(f"s_waitcnt lgkmcnt({3-k})")
        for tl in range(4): mfma(g, SC + 4 * tl, KF + 16 * tl + 4 * k, QF + 4 * k, k == 0)
    g.nop(5)
    E = 64
    for p in range(8): A(f"v_cvt_pk_bf16_f32 v{PF+p}, v{SC+2*p}, v{SC+2*p+1}")
    for p in range(8):
        A(f"v_lshlrev_b32 v{E+2*p}, 16, v{PF+p}"); A(f"v_and_b32 v{E+2*p+1}, 0xffff0000, v{PF+p}")
    for e in range(16): A(f"v_mul_f32 v{E+e}, s9, v{E+e}")
    for p in range(8): A(f"v_cvt_pk_bf16_f32 v{PF+p}, v{E+2*p}, v{E+2*p+1}")
    for p in range(8):
        A(f"v_lshlrev_b32 v{E+2*p}, 16, v{PF+p}"); A(f"v_and_b32 v{E+2*p+1}, 0xffff0000, v{PF+p}")
    for k in range(5): A(f"v_max3_f32 v{32+k}, v{E+3*k}, v{E+3*k+1}, v{E+3*k+2}")
    A(f"v_max3_f32 v32, v32, v33, v{E+15}"); A("v_max3_f32 v34, v34, v35, v36"); A("v_max_f32 v30, v32, v34")
    xrow_reduce(g, [30], op="v_max_f32", steps=("p16", "p32"))
    g.setexec(0xff)
    A(f"ds_write_b32 v{aMw}, v30")
    g.full()
    for p in range(8): A(f"v_pk_mul_f32 v[{E+2*p}:{E+2*p+1}], v[{E+2*p}:{E+2*p+1}], v[28:29]")
    A("s_waitcnt lgkmcnt(0)")
    A("s_barrier")
    A(f"ds_read_b128 v[32:35], v{aMr}")
    A("s_lshl_b32 s9, s6, 12"); A(f"s_add_u32 s9, s9, {W_AP}"); A("s_lshl_b32 s11, s6, 7"); A(f"s_add_u32 s11, s11, {W_AS}")
    A("s_waitcnt lgkmcnt(0)")
    A("v_max3_f32 v30, v32, v33, v34"); A("v_max_f32 v30, v30, v35"); A(f"v_mul_f32 v{RS+4}, s10, v30")
    for e in range(16): A(f"v_sub_f32 v{E+e}, v{E+e}, v{RS+4}")
    for e in range(16): A(f"v_exp_f32 v{E+e}, v{E+e}")
    for p in range(8): A(f"v_cvt_pk_bf16_f32 v{PF+p}, v{E+2*p}, v{E+2*p+1}")
    g.setexec(0x00ff00ff00ff00ff)
    A(f"ds_write_b128 v{aPw}, v[{PF}:{PF+3}]"); A(f"ds_write_b128 v{aPw}, v[{PF+4}:{PF+7}] offset:512")
    g.full()
    for p in range(4): A(f"v_pk_add_f32 v[{E+4*p}:{E+4*p+1}], v[{E+4*p}:{E+4*p+1}], v[{E+4*p+2}:{E+4*p+3}]")
    A(f"v_pk_add_f32 v[{E}:{E+1}], v[{E}:{E+1}], v[{E+4}:{E+5}]"); A(f"v_pk_add_f32 v[{E+8}:{E+9}], v[{E+8}:{E+9}], v[{E+12}:{E+13}]")
    A(f"v_pk_add_f32 v[{E}:{E+1}], v[{E}:{E+1}], v[{E+8}:{E+9}]"); A(f"v_add_f32 v31, v{E}, v{E+1}")
    xrow_reduce(g, [31], steps=("p16", "p32"))
    g.setexec(0xff)
    A(f"ds_write_b32 v{aMw}, v31 offset:128")
    g.full()
    g.stamp(5)
    PFR, V0, V1, AO = 192, 128, 160, 224
    A(f"s_waitcnt vmcnt({n2+8}) lgkmcnt(0)")
    A("s_barrier")
    for h in range(4):
        A(f"ds_read_b128 v[{PFR+8*h}:{PFR+8*h+3}], v{aPr} offset:{2*h*512}")
        for tl in range(2):
            for q in range(2): tr(g, V0 + 8 * h + 4 * tl + 2 * q, [aV, aVb][tl], 2 * h * 8192 + q * 4096)
    for h in range(4):
        A(f"s_waitcnt lgkmcnt({15-5*h})")
        for tl in range(2): mfma(g, AO + 4 * tl, V0 + 8 * h + 4 * tl, PFR + 8 * h, h == 0)
    for h in range(4): A(f"ds_read_b128 v[{PFR+8*h+4}:{PFR+8*h+7}], v{aPr} offset:{(2*h+1)*512}")
    A(f"ds_read_b128 v[32:35], v{aMr} offset:128")
    A(f"s_waitcnt vmcnt({n2})")
    g.stamp(10)
    A("s_barrier")
    if cfg.e0: hu_post0(g, 0, RS + 7, 12, force=True)
    for h in range(4):
        for tl in range(2):
            for q in range(2): tr(g, V1 + 8 * h + 4 * tl + 2 * q, [aV, aVb][tl], (2 * h + 1) * 8192 + q * 4096)
    for h in range(4):
        A(f"s_waitcnt lgkmcnt({12-4*h})")
        for tl in range(2): mfma(g, AO + 4 * tl, V1 + 8 * h + 4 * tl, PFR + 8 * h + 4, False)
        if h == 0: A("v_pk_add_f32 v[32:33], v[32:33], v[34:35]")
        if h == 1: A(f"v_add_f32 v{RS+5}, v32, v33")
    A("s_cmp_lg_u32 s3, 0"); A("s_cbranch_scc1 L_nst")
    g.setexec(0xff)
    A(f"buffer_store_dwordx4 v[{RS+4}:{RS+7}], v{gL16}, {WS}, s11 offen sc1")
    g.full()
    g.lab("L_nst")
    g.nop(6)
    for e in range(4): A(f"v_cndmask_b32 v{40+e}, v{AO+e}, v{AO+4+e}, s[66:67]")
    pack24(g, RS, 40)
    A(f"buffer_store_dwordx4 v[{RS}:{RS+3}], v{gAP}, {WS}, s9 offen sc1")
    g.stamp(6)
    if not cfg.e0: hu_post0(g, 0, RS + 7, 12, force=True)
    if cfg.gate: hu_wait(g, 5, 7, 40, 41, 0, backoff=2)
    else: g.sleep(cfg.w2sl)
    for k in range(n2 // 4, 3): dma4(g, SB, 8 * 2048, P2, waits=[0 if 4 * k + jj < cfg.w2n else None for jj in range(4)])
    dma4(g, SB, 8 * 2048, P2, hi=2)
    A("v_mul_u32_u24 v22, 928, v19"); A(f"v_add_u32 v22, {CB}, v22"); A("v_lshrrev_b32 v27, 3, v0"); A(f"v_lshl_add_u32 v{aW}, v27, 3, v22"); A(f"v_lshl_add_u32 v{aF}, v3, 4, v22"); A("v_and_b32 v22, 8, v1"); A(f"v_lshl_add_u32 v{aF}, v22, 3, v{aF}")
    A("s_lshl_b32 s13, s3, 12"); A("v_lshlrev_b32 v22, 10, v3"); A(f"v_lshl_add_u32 v{gW}, v2, 4, v22"); A(f"v_add_u32 v{gW}, s13, v{gW}")
    A(f"s_mul_i32 {SO[0]}, s4, {112*128}"); A(f"s_add_u32 {SO[0]}, {SO[0]}, {W_AB}")
    for i in range(1, 3): A(f"s_add_u32 {SO[i]}, {SO[0]}, {i*4096}")
    A(f"s_add_u32 {SO[3]}, {SO[0]}, {3*4096}"); A("s_cmp_ge_u32 s3, 2"); A(f"s_cselect_b32 {SO[3]}, {SO[0]}, {SO[3]}")
    A("s_lshl_b32 s9, s7, 14"); A("s_lshl_b32 s10, s4, 7"); A("s_add_u32 s9, s9, s10"); A(f"s_add_u32 s9, s9, {W_FP}")
    A(f"v_mov_b32 v47, {TAG}")
    A("s_waitcnt vmcnt(0)")
    A("s_barrier")
    g.stamp(12)
    for k in range(14):
        for q in range(2): tr(g, 64 + 4 * k + 2 * q, aT, k * 4096 + q * 512)
    AD = 192
    al = [f"buffer_load_dwordx4 v[{AD+4*k}:{AD+4*k+3}], v{gT16}, {WS}, {SO[k]} offen sc1" for k in range(4)]
    g.sleep(cfg.d6)
    gather(g, al, [AD + 4 * k + 2 for k in range(4)] + [AD + 4 * k + 3 for k in range(4)], 5, toggle=SO, sleep=cfg.pl)
    for k in range(3): A(f"ds_write_b64 v{aW}, v[{AD+4*k}:{AD+4*k+1}] offset:{k*256}")
    A("s_cmp_ge_u32 s3, 2"); A("s_cbranch_scc1 L_a3"); A(f"ds_write_b64 v{aW}, v[{AD+12}:{AD+13}] offset:768"); g.lab("L_a3")
    g.stamp(13)
    if cfg.e2: hu_post0(g, 2, 47, 12, force=True)
    A("s_waitcnt lgkmcnt(0)")
    A("s_barrier")
    for m in range(7): A(f"ds_read_b128 v[{128+4*m}:{131+4*m}], v{aF} offset:{m*128}")
    for k in range(14):
        if k % 2 == 0: A(f"s_waitcnt lgkmcnt({6-k//2})")
        mfma(g, 32 + 4 * (k & 1), 64 + 4 * k, 128 + 4 * (k >> 1), k < 2)
    g.nop(8)
    for e in range(4): A(f"v_add_f32_dpp v{32+e}, v{36+e}, v{32+e} row_ror:8 row_mask:0xf bank_mask:0xf")
    g.setexec(0x00ff00ff00ff00ff)
    pack24(g, 44, 32)
    A(f"buffer_store_dwordx4 v[44:47], v{gW}, {WS}, s9 offen sc1")
    g.full()
    if not cfg.e2: hu_post0(g, 2, 47, 12, force=True)
    g.stamp(14)

def parse(argv=None):
    ap = argparse.ArgumentParser()
    ap.add_argument("-o", default="sequential_preLN__sliding_block_cached__dense_activation_relu__decode.s")
    D = dict(stamps=0, nt=1, pref=1, local=1, wc=1, wr=2, fb=300, early=1, nopoll=0, hu=1, hun=400, dumpo=0, huearly=1, swap=0, outst=0, qf24=1, dsplit=5, rd=8, acc2=0, e0=0, e1=0, e2=0,
             gate=0, gmask=15, g3=16, g4=32,
             nk0=8, kwin=2, kw=8, vw=8, qpos=1, qw=8, w2e=0, w2sl=0, w2n=4,
             osl=0, on1=4, ow1=2, ow2=10, fsl=0, fn1=5, fw1=1, fw2=10,
             d2=3, d4=12, d6=0, d7=60, dt=12, da=0, db=0, dc=0, ps=4, pl=1)
    for k, d in D.items(): ap.add_argument(f"--{k}", type=int, default=d)
    return ap.parse_args(argv)

if __name__ == "__main__":
    cfg = parse()
    open(cfg.o, "w").write(gen(cfg))
```

```python
import sys, argparse
sys.path.insert(0, "bench")
from asmlib import wrap

RQ = 98304
SCR = 131072
ACT = SCR
STL_ = SCR + 8 * 2080
QL = SCR + 8 * 544
CB = QL + 8 * 288
LDS_END = CB + 4 * 8 * 528
assert STL_ + 256 <= LDS_END <= 163840

W_QP = 0x100000
W_AP = 0x200000
W_AS = 0x280000
W_OB = 0x290000
W_HB = 0x2C0000
W_HS = 0x2D0000
W_HU = 0x2E0000
W_OP = 0x500000
W_AB = 0x340000
W_FP = 0x380000
BDELTA = 0x400000
STAMP_OFF = 128 << 20

WS, XO, SA, SB = "s[36:39]", "s[40:43]", "s[44:47]", "s[48:51]"
TAG = "s8"
PK0, PK1, PK2, UP0, UP1, PCNT = "s52", "s53", "s54", "s55", "s56", "s57"
SO = ["s58", "s59", "s60", "s61"]
mW, sB, sM, sI = "s62", "s63", "s64", "s65"

DOC = '''    ; One persistent launch, 256 workgroups (one per CU), 4 waves each.  x = wg&7, r = wg>>3.
'''

class G:
    def __init__(self, cfg):
        self.L = []; self.cfg = cfg; self.nlab = 0
    def A(self, s): self.L.append("    " + s)
    def lab(self, s): self.L.append(s + ":")
    def newlab(self, p="L"):
        self.nlab += 1; return f"{p}_{self.nlab}"
    def nop(self, n):
        while n > 0:
            k = min(n, 16); self.A(f"s_nop {k-1}"); n -= k
    def setexec(self, m):
        lo, hi = m & 0xffffffff, m >> 32
        if hi == 0 and lo <= 64: self.A(f"s_mov_b64 exec, {lo}")
        else:
            self.A(f"s_mov_b32 exec_lo, {hex(lo)}"); self.A(f"s_mov_b32 exec_hi, {hex(hi)}")
    def full(self): self.A("s_mov_b64 exec, -1")
    def stamp(self, idx):
        if self.cfg.stamps: self.A(f"s_memrealtime s[{70+2*idx}:{71+2*idx}]")
    def sleep(self, n):
        while n > 0:
            k = min(n, 127); self.A(f"s_sleep {k}"); n -= k

def srd(g, d, p, n):
    if d != p: g.A(f"s_mov_b32 s{d}, s{p}"); g.A(f"s_mov_b32 s{d+1}, s{p+1}")
    g.A(f"s_mov_b32 s{d+2}, {n}"); g.A(f"s_mov_b32 s{d+3}, 0x20000")

def dma4(g, sr, step, pats, waits=None, lo=0, hi=4, adv=True):
    nt = " nt" if g.cfg.nt else ""
    g.A(f"s_mov_b32 m0, {sM}")
    for jj in range(lo, hi):
        w = None if waits is None else (waits if isinstance(waits, int) else waits[jj])
        if w is not None: g.A(f"s_waitcnt vmcnt({w})")
        off = jj * (step - 1024)
        if off: g.A(f"s_add_u32 s15, {sB}, {off}")
        elif w is None and jj == lo: g.A("s_nop 0")
        g.A(f"buffer_load_dwordx4 v{pats[jj]}, {sr}, {'s15' if off else sB} offen offset:{jj*1024}{nt} lds")
    if adv: g.A(f"s_add_u32 {sB}, {sB}, {4*step}"); g.A(f"s_add_u32 {sM}, {sM}, 4096")

def dma_loop(g, sr, step, pats, ngroups, win):
    l = g.newlab("L_dl")
    g.A(f"s_mov_b32 {sI}, 0")
    g.lab(l)
    dma4(g, sr, step, pats, waits=win - 1)
    g.A(f"s_add_u32 {sI}, {sI}, 1"); g.A(f"s_cmp_lt_u32 {sI}, {ngroups}"); g.A(f"s_cbranch_scc1 {l}")

def tagcheck(g, tagregs, tmp=10):
    g.A(f"v_xor_b32 v{tmp}, {TAG}, v{tagregs[0]}")
    for t in tagregs[1:]: g.A(f"v_bitop3_b32 v{tmp}, v{tmp}, v{t}, {TAG} bitop3:0xF6")
    g.A(f"v_cmp_ne_u32 vcc, 0, v{tmp}")

def gather(g, loads, tagregs, stage, issued=False, newer=0, late=None, toggle=(), sleep=0):
    l = g.newlab("L_g"); e = g.newlab("L_ge")
    if g.cfg.nopoll:
        g.A(f"s_waitcnt vmcnt({newer})"); return
    if not issued:
        for s in loads: g.A(s)
    g.A(f"s_mov_b32 {PCNT}, 0")
    g.A(f"s_waitcnt vmcnt({newer})")
    tagcheck(g, tagregs)
    g.A(f"s_cbranch_vccz {e}")
    g.lab(l)
    g.sleep(sleep)
    for s in loads: g.A(s)
    g.A(f"s_add_u32 {PCNT}, {PCNT}, 1")
    g.A("s_waitcnt vmcnt(0)")
    tagcheck(g, tagregs)
    g.A(f"s_cbranch_vccz {e}")
    if g.cfg.local and (late or toggle):
        sk = g.newlab("L_gl")
        g.A(f"s_cmp_lt_u32 {PCNT}, {g.cfg.fb}"); g.A(f"s_cbranch_scc1 {sk}")
        for t in toggle: g.A(f"s_xor_b32 {t}, {t}, {BDELTA}")
        if late:
            g.A(f"s_cmp_lg_u32 {PCNT}, {g.cfg.fb}"); g.A(f"s_cbranch_scc1 {sk}")
            late()
        g.lab(sk)
    g.A(f"s_cmp_lt_u32 {PCNT}, 150000")
    g.A(f"s_cbranch_scc1 {l}")
    g.lab(e)
    if g.cfg.stamps: g.A(f"s_min_u32 {PCNT}, {PCNT}, 15"); g.A(f"s_lshl_b32 {PCNT}, {PCNT}, {4*stage}"); g.A(f"s_add_u32 s69, s69, {PCNT}")

def hu_wait(g, which, nmask, addr, dst, delay, backoff=0):
    if not g.cfg.hu or g.cfg.nopoll: return
    l = g.newlab("L_hu"); e = g.newlab("L_hue")
    g.A(f"v_and_b32 v{addr}, {nmask}, v1"); g.A(f"v_lshlrev_b32 v{addr}, 4, v{addr}")
    g.A("s_lshl_b32 s15, s4, 8"); g.A(f"s_add_u32 s15, s15, {W_HU + which*2048}")
    g.A(f"s_mov_b32 {PCNT}, 0")
    g.lab(l)
    g.sleep(backoff)
    g.A(f"buffer_load_dword v{dst}, v{addr}, {WS}, s15 offen sc1")
    g.A(f"s_add_u32 {PCNT}, {PCNT}, 1")
    g.A("s_waitcnt vmcnt(0)")
    g.A(f"v_cmp_ne_u32 vcc, {TAG}, v{dst}")
    g.A(f"s_cbranch_vccz {e}")
    g.A(f"s_cmp_lt_u32 {PCNT}, {g.cfg.hun}"); g.A(f"s_cbranch_scc1 {l}")
    g.lab(e)
    g.sleep(delay)

def hu_probe_issue(g, which, nmask, addr, dst):
    if not (g.cfg.hu and g.cfg.huearly) or g.cfg.nopoll: return
    g.A(f"v_and_b32 v{addr}, {nmask}, v1"); g.A(f"v_lshlrev_b32 v{addr}, 4, v{addr}")
    g.A("s_lshl_b32 s15, s4, 8"); g.A(f"s_add_u32 s15, s15, {W_HU + which*2048}")
    g.A(f"buffer_load_dword v{dst}, v{addr}, {WS}, s15 offen sc1")

def staged(g, which, nmask, addr, dst, delay, loads, preload, fin):
    if not (g.cfg.hu and g.cfg.huearly) or g.cfg.nopoll:
        preload(); hu_wait(g, which, nmask, addr, dst, delay); fin(False); return
    late = g.newlab("L_st"); go = g.newlab("L_sg")
    g.A(f"v_cmp_ne_u32 vcc, {TAG}, v{dst}")
    g.A(f"s_cbranch_vccnz {late}")
    for x_ in loads: g.A(x_)
    g.A("s_mov_b32 s67, 1") if False else None
    g.lab(late)
    g.A("s_mov_b64 s[88:89], vcc") if False else None
    g.A("s_cselect_b32 s0, 0, 0") if False else None
    g.A("s_mov_b64 s[0:1], vcc")
    preload()
    g.A("s_cmp_eq_u64 s[0:1], 0"); g.A(f"s_cbranch_scc1 {go}")
    hu_wait(g, which, nmask, addr, dst, delay)
    for x_ in loads: g.A(x_)
    g.lab(go)
    fin(True)

def hu_post(g, which, tagreg, tmp):
    if not g.cfg.hu: return
    g.A("s_lshl_b32 s15, s4, 4"); g.A("s_add_u32 s15, s15, s7"); g.A("s_lshl_b32 s15, s15, 4"); g.A(f"s_add_u32 s15, s15, {W_HU + which*2048}")
    g.A(f"v_mov_b32 v{tmp}, 0"); g.A("s_mov_b64 exec, 1")
    g.A(f"buffer_store_dword v{tagreg}, v{tmp}, {WS}, s15 offen")
    g.full()

def hu_post0(g, which, tagreg, tmp, force=False):
    if not (g.cfg.hu and (g.cfg.gate or force)): return
    sk = g.newlab("L_hp")
    g.A("s_cmp_lg_u32 s3, 0"); g.A(f"s_cbranch_scc1 {sk}")
    hu_post(g, which, tagreg, tmp)
    g.lab(sk)

def pack24(g, d, a):
    g.A(f"v_perm_b32 v{d}, v{a}, v{a+3}, {PK0}"); g.A(f"v_perm_b32 v{d+1}, v{a+1}, v{a+3}, {PK1}"); g.A(f"v_perm_b32 v{d+2}, v{a+2}, v{a+3}, {PK2}")
def unpack24_d(g, b):
    g.A(f"v_perm_b32 v{b+3}, v{b+1}, v{b}, {UP0}"); g.A(f"v_perm_b32 v{b+3}, v{b+2}, v{b+3}, {UP1}")
def bf16_round(g, d, s):
    g.A(f"v_cvt_pk_bf16_f32 v{d}, v{s}, v{s}"); g.A(f"v_lshlrev_b32 v{d}, 16, v{d}")
def xrow_reduce(g, regs, op="v_add_f32", steps=("ror8", "p16", "p32"), tmp=11):
    n = len(regs)
    for st in steps:
        if st.startswith("ror"):
            g.nop(max(0, 3 - n))
            for r in regs: g.A(f"{op}_dpp v{r}, v{r}, v{r} row_ror:{st[3:]} row_mask:0xf bank_mask:0xf")
        else:
            ins = "v_permlane16_swap_b32" if st == "p16" else "v_permlane32_swap_b32"
            for k, r in enumerate(regs): g.A(f"v_mov_b32 v{tmp+k}, v{r}")
            g.nop(max(0, 3 - n))
            for k, r in enumerate(regs): g.A(f"{ins} v{r}, v{tmp+k}")
            g.nop(max(0, 2 - n))
            for k, r in enumerate(regs): g.A(f"{op} v{r}, v{r}, v{tmp+k}")
def mfma(g, d, a, b, first):
    g.A(f"v_mfma_f32_16x16x32_bf16 v[{d}:{d+3}], v[{a}:{a+3}], v[{b}:{b+3}], {'0' if first else f'v[{d}:{d+3}]'}")
def tr(g, d, addr, off):
    g.A(f"ds_read_b64_tr_b16 v[{d}:{d+1}], v{addr} offset:{off}")

pA, pB, aT, aT2, aF, gT16 = 4, 5, 6, 7, 8, 9
gW, aW, aTb, aTb2 = 28, 29, 30, 31
WF, AC, GD = 64, 32, 192
pK = [240, 241, 242, 243]

def gen(cfg):
    g = G(cfg); A = g.A
    g.stamp(0)
    A("s_load_dwordx16 s[16:31], s[0:1], 0")
    A("s_load_dwordx4 s[32:35], s[0:1], 64")
    A("s_load_dwordx2 s[36:37], s[0:1], 80")
    A("s_cmp_ge_u32 s2, 256"); A("s_cbranch_scc1 L_end")
    A("v_lshrrev_b32 v7, 6, v0"); A("v_and_b32 v1, 63, v0")
    A("s_lshr_b32 s5, s2, 3")
    if cfg.pref:
        if cfg.pref == 2: A("s_cmp_ge_u32 s5, 16"); A("s_cbranch_scc1 L_nopf")
        A("s_getpc_b64 s[10:11]"); g.lab("L_begin")
        A("s_lshl_b32 s9, s5, 8"); A("v_add_u32 v10, s9, v0"); A("v_and_b32 v10, 1023, v10"); A("v_lshlrev_b32 v10, 4, v10")
        A("s_mov_b32 s9, L_end - L_begin - 64"); A("v_min_u32 v10, s9, v10")
        A("global_load_dwordx4 v[12:15], v10, s[10:11]")
        if cfg.pref == 2: g.lab("L_nopf"); A("s_nop 0")
    A("v_readfirstlane_b32 s3, v7")
    A("s_and_b32 s4, s2, 7"); A("s_and_b32 s7, s5, 15"); A("s_lshl_b32 s6, s4, 5"); A("s_add_u32 s6, s6, s5")
    if cfg.swap: A("s_xor_b32 s5, s5, 16")
    A("v_and_b32 v2, 15, v1"); A("v_lshrrev_b32 v3, 4, v1")
    A("v_lshrrev_b32 v16, 5, v0"); A("v_and_b32 v17, 31, v0")
    A("v_lshlrev_b32 v18, 11, v16"); A("v_lshl_add_u32 v18, v17, 4, v18")
    A("s_lshr_b32 s9, s6, 6")
    A("v_lshrrev_b32 v20, 3, v1"); A("v_and_b32 v19, 7, v1")
    A("v_bfe_u32 v21, v1, 4, 1"); A("v_lshlrev_b32 v21, 1, v21"); A("v_xor_b32 v21, v19, v21"); A("v_lshlrev_b32 v21, 4, v21")
    A(f"v_lshl_add_u32 v{pA}, v20, 13, v21"); A(f"v_xor_b32 v{pB}, 64, v{pA}")
    A("s_lshl_b32 s12, s9, 2"); A("s_add_u32 s12, s12, s3"); A("s_lshl_b32 s12, s12, 19"); A("s_and_b32 s13, s6, 63"); A("s_lshl_b32 s13, s13, 7"); A(f"s_add_u32 {sB}, s12, s13")
    A(f"s_lshl_b32 {sM}, s3, 13"); A(f"s_add_u32 {sM}, {sM}, {RQ}")
    A("s_lshl_b32 s13, s9, 9"); A("s_add_u32 s14, s13, 512"); A("s_and_b32 s14, s14, 0x600"); A("s_xor_b32 s12, s13, 1024"); A("s_xor_b32 s9, s14, 1024")
    A("s_waitcnt lgkmcnt(0)")
    srd(g, 40, 16, 16384)
    for i, s in enumerate(["s13", "s14", "s12", "s9"]): A(f"buffer_load_dwordx4 v[{GD+4*i}:{GD+4*i+3}], v18, {XO}, {s} offen")
    srd(g, 44, 22, 8 << 20)
    A("s_load_dword s8, s[36:37], 0")
    for k in range(2): dma4(g, SA, 8 * 8192, [pA, pB, pA, pB])
    g.stamp(1)
    srd(g, 36, 36, 256 << 20); srd(g, 48, 18, 32 << 20)
    A(f"s_mov_b32 {PK0}, 0x07060501"); A(f"s_mov_b32 {PK1}, 0x07060502"); A(f"s_mov_b32 {PK2}, 0x07060503"); A(f"s_mov_b32 {UP0}, 0x0C04000C"); A(f"s_mov_b32 {UP1}, 0x0402010C")
    if cfg.stamps: A("s_mov_b32 s69, 0")
    A("v_mul_u32_u24 v22, 544, v16"); A(f"v_lshl_add_u32 v{aW}, v17, 4, v22"); A(f"v_add_u32 v{aW}, {ACT}, v{aW}")
    A("v_mul_u32_u24 v22, 544, v19"); A(f"v_lshl_add_u32 v{aF}, v3, 4, v22"); A(f"v_add_u32 v{aF}, {ACT}, v{aF}")
    A("v_bfe_u32 v23, v1, 2, 2"); A("v_and_b32 v24, 3, v1"); A("v_lshlrev_b32 v24, 3, v24"); A("v_and_b32 v25, 1, v3"); A("v_lshl_add_u32 v26, v3, 3, v23")
    A("v_lshrrev_b32 v27, 1, v23"); A("v_lshl_add_u32 v27, v25, 1, v27"); A("v_xor_b32 v27, s3, v27"); A("v_lshl_add_u32 v27, v27, 5, v24"); A(f"v_lshl_add_u32 v{aT}, v26, 7, v27")
    A(f"v_add_u32 v{aT2}, 0x10000, v{aT}")
    A(f"v_lshlrev_b32 v{gT16}, 4, v0")
    A("s_lshl_b32 s13, s3, 6"); A("v_lshlrev_b32 v27, 9, v2"); A(f"v_lshl_add_u32 v{gW}, v3, 4, v27"); A(f"v_add_u32 v{gW}, s13, v{gW}")
    A("v_xor_b32 v27, v2, v3"); A("v_lshlrev_b32 v27, 4, v27"); A(f"v_lshl_add_u32 v{pK[0]}, v3, 8, v27")
    for k in range(1, 4): A(f"v_xor_b32 v{pK[k]}, {k*64}, v{pK[0]}")
    A("s_lshl_b32 s68, s4, 4"); A("s_add_u32 s68, s68, s7")
    A("s_lshr_b32 s12, s68, 2"); A("s_lshl_b32 s12, s12, 20"); A("s_and_b32 s13, s68, 3"); A("s_lshl_b32 s13, s13, 16"); A("s_add_u32 s12, s12, s13")
    A(f"s_lshl_b32 {mW}, s3, 14"); A(f"s_add_u32 s12, s12, {mW}"); A("s_add_u32 s66, s12, 0xC0000")
    A(f"s_mov_b32 {sB}, s66"); A(f"s_mov_b32 {sM}, {mW}")
    A("s_lshl_b32 s9, s6, 12"); A(f"s_add_u32 s9, s9, {W_QP}")
    A("s_waitcnt lgkmcnt(0)")
    A("s_mul_i32 s8, s8, 0x9E3779B1"); A("s_add_u32 s8, s8, 0x7F4A7C15")
    U = 96
    A("s_waitcnt vmcnt(8)")
    g.stamp(5)
    for d in range(16):
        A(f"v_lshlrev_b32 v{U+2*d}, 16, v{GD+d}"); A(f"v_and_b32 v{U+2*d+1}, 0xffff0000, v{GD+d}")
    A(f"v_pk_add_f32 v[40:41], v[{U}:{U+1}], v[{U+2}:{U+3}]"); A(f"v_pk_add_f32 v[42:43], v[{U+4}:{U+5}], v[{U+6}:{U+7}]")
    for d in range(4, 16): A(f"v_pk_add_f32 v[{40+2*(d&1)}:{41+2*(d&1)}], v[{40+2*(d&1)}:{41+2*(d&1)}], v[{U+2*d}:{U+2*d+1}]")
    A("v_pk_add_f32 v[40:41], v[40:41], v[42:43]"); A("v_add_f32 v40, v40, v41")
    xrow_reduce(g, [40], steps=("ror8", "ror4", "ror2", "ror1", "p16"))
    A("v_mul_f32 v40, 0xba800000, v40"); A("v_mov_b32 v41, v40")
    for d in range(16):
        r = WF + 2 * (d & 7)
        A(f"v_pk_add_f32 v[{r}:{r+1}], v[{U+2*d}:{U+2*d+1}], v[40:41]")
        a = 44 + 2 * (d & 1)
        if d < 2: A(f"v_pk_mul_f32 v[{a}:{a+1}], v[{r}:{r+1}], v[{r}:{r+1}]")
        else: A(f"v_pk_fma_f32 v[{a}:{a+1}], v[{r}:{r+1}], v[{r}:{r+1}], v[{a}:{a+1}]")
    A("v_pk_add_f32 v[44:45], v[44:45], v[46:47]"); A("v_add_f32 v44, v44, v45")
    xrow_reduce(g, [44], steps=("ror8", "ror4", "ror2", "ror1", "p16"))
    A("v_mul_f32 v44, 0x3a800000, v44")
    bf16_round(g, 40, 40); bf16_round(g, 44, 44)
    A("v_add_f32 v44, 0x3727c5ac, v44"); bf16_round(g, 44, 44)
    A("v_sqrt_f32 v44, v44"); A("v_mov_b32 v41, v40")
    for d in range(4): A(f"v_pk_add_f32 v[{U+2*d}:{U+2*d+1}], v[{U+2*d}:{U+2*d+1}], v[40:41]")
    bf16_round(g, 44, 44)
    A("v_rcp_f32 v46, v44"); A("v_sub_f32 v44, 0, v44"); A("v_mov_b32 v45, v44")
    for d in range(4): A(f"v_cvt_pk_bf16_f32 v{48+d}, v{U+2*d}, v{U+2*d+1}")
    A("v_mov_b32 v47, v46")
    for d in range(4):
        A(f"v_lshlrev_b32 v{U+2*d}, 16, v{48+d}"); A(f"v_and_b32 v{U+2*d+1}, 0xffff0000, v{48+d}")
    for d in range(4): A(f"v_pk_mul_f32 v[{U+16+2*d}:{U+17+2*d}], v[{U+2*d}:{U+2*d+1}], v[46:47]")
    for d in range(4): A(f"v_pk_fma_f32 v[{U+2*d}:{U+2*d+1}], v[{U+16+2*d}:{U+17+2*d}], v[44:45], v[{U+2*d}:{U+2*d+1}]")
    for d in range(4): A(f"v_pk_fma_f32 v[{U+16+2*d}:{U+17+2*d}], v[{U+2*d}:{U+2*d+1}], v[46:47], v[{U+16+2*d}:{U+17+2*d}]")
    for d in range(4): A(f"v_cvt_pk_bf16_f32 v{48+d}, v{U+16+2*d}, v{U+17+2*d}")
    A(f"ds_write_b128 v{aW}, v[48:51]")
    g.stamp(2)
    A(f"v_mov_b32 v14, {TAG}"); A(f"v_mov_b32 v15, {TAG}"); A(f"v_mov_b32 v42, {TAG}"); A(f"v_mov_b32 v43, {TAG}")
    nk0 = cfg.nk0
    A("s_cmp_lt_u32 s5, 16"); A("s_cbranch_scc1 L_nok")
    done = 0
    while done < nk0:
        n = min(4, nk0 - done)
        dma4(g, SB, 1024, pK, waits=[max(0, 7 - min(7, done + jj + cfg.kwin)) + done + jj for jj in range(4)], hi=n, adv=(n == 4))
        done += n
    A(f"s_waitcnt vmcnt({nk0}) lgkmcnt(0)"); A("s_branch L_qb")
    g.lab("L_nok")
    A("s_waitcnt vmcnt(0) lgkmcnt(0)")
    g.lab("L_qb")
    A("s_barrier")
    XFq = 192
    for k in range(8):
        A(f"ds_read_b128 v[{XFq+4*k}:{XFq+4*k+3}], v{aF} offset:{k*64}")
        for q in range(2): tr(g, WF + 4 * k + 2 * q, aT2, RQ - 65536 + k * 4096 + q * 512)
        if k >= 4:
            A("s_waitcnt lgkmcnt(12)"); mfma(g, AC, WF + 4 * (k - 4), XFq + 4 * (k - 4), k == 4)
    for k in range(4, 8):
        A(f"s_waitcnt lgkmcnt({3*(7-k)})"); mfma(g, AC, WF + 4 * k, XFq + 4 * k, False)
    g.setexec(0x00ff00ff00ff00ff)
    g.nop(6)
    if cfg.qf24:
        for e in range(4): A(f"v_add_u32 v{AC+e}, 0x80, v{AC+e}")
        pack24(g, 12, AC)
        A(f"buffer_store_dwordx4 v[12:15], v{gW}, {WS}, s9 offen sc1")
    else:
        A(f"v_mov_b32 v12, v{AC}"); A(f"v_mov_b32 v13, v{AC+1}"); A(f"v_mov_b32 v40, v{AC+2}"); A(f"v_mov_b32 v41, v{AC+3}")
        A(f"buffer_store_dwordx4 v[12:15], v{gW}, {WS}, s9 offen sc1")
        A(f"buffer_store_dwordx4 v[40:43], v{gW}, {WS}, s9 offen offset:256 sc1")
    g.full()
    g.stamp(3)
    A("s_cmp_eq_u32 s5, 15"); A("s_cbranch_scc1 L_done")
    A("s_barrier")
    A("s_cmp_ge_u32 s5, 16"); A("s_cbranch_scc1 L_attn")
    A(f"s_lshl_b32 {sM}, s3, 15")
    A("s_cmp_ge_u32 s5, 8"); A("s_cbranch_scc1 L_f1")
    role_o(g)
    role_f1(g)
    role_attn(g)
    g.lab("L_done")
    g.stamp(15)
    if cfg.stamps == 2:
        g.full()
        A("s_cmp_ge_u32 s5, 8"); A("s_cbranch_scc1 L_end")
        A("s_waitcnt lgkmcnt(0)"); A("s_not_b32 s70, s70")
        for i in range(16): A(f"v_writelane_b32 v10, s{70+2*i}, {i}")
        srd(g, 44, 34, 256); A("v_lshlrev_b32 v11, 2, v1"); g.setexec(0xffff)
        A("buffer_atomic_umax v10, v11, s[44:47], 0 offen sc1")
    if cfg.stamps == 1:
        g.full()
        A("s_waitcnt lgkmcnt(0)"); A("s_mov_b32 s72, s69")
        for i in range(16): A(f"v_writelane_b32 v10, s{70+2*i}, {i}")
        A("s_lshl_b32 s9, s2, 4"); A("s_add_u32 s9, s9, s3"); A("s_lshl_b32 s9, s9, 6"); A(f"s_add_u32 s9, s9, {STAMP_OFF}")
        A("v_lshlrev_b32 v11, 2, v1"); g.setexec(0xffff)
        A(f"buffer_store_dword v10, v11, {WS}, s9 offen")
    g.lab("L_end"); A("s_endpgm")
    return wrap(DOC + "\n".join(g.L), 256, 256, LDS_END, vgpr=256, sgpr=102)

def role_o(g):
    A = g.A; cfg = g.cfg
    gOUT, gL16, gP, gS = 62, 63, 18, 27
    PO = [240, 241, 242, 243]
    AO, XF = 208, 192
    A("s_lshr_b32 s12, s7, 1"); A("s_lshl_b32 s11, s4, 2"); A("s_add_u32 s12, s12, s11"); A("s_and_b32 s13, s7, 1")
    for k in range(4): A(f"v_xor_b32 v{PO[k]}, {2*k}, v1");
    for k in range(4): A(f"v_lshlrev_b32 v{PO[k]}, 4, v{PO[k]}")
    srd(g, 44, 24, 8 << 20)
    A("s_lshl_b32 s6, s4, 3"); A("s_add_u32 s6, s6, s7"); A("s_lshl_b32 s14, s6, 2"); A("s_add_u32 s14, s14, s3")
    A(f"v_lshlrev_b32 v{gOUT}, 11, v19"); A("s_lshl_b32 s68, s14, 3")
    A(f"buffer_load_dwordx2 v[60:61], v{gOUT}, {XO}, s68 offen")
    A("s_lshl_b32 s10, s12, 2"); A("s_add_u32 s10, s10, s3"); A("s_lshl_b32 s10, s10, 16"); A("s_lshl_b32 s11, s13, 10"); A(f"s_add_u32 {sB}, s10, s11")
    if not cfg.gate: g.sleep(cfg.osl)
    w0 = [cfg.ow1 - 1 if k < cfg.on1 else cfg.ow2 - 1 for k in range(8)]
    dma4(g, SA, 2048, PO, waits=w0[:4]); dma4(g, SA, 2048, PO, waits=w0[4:])
    A(f"s_mov_b32 {sI}, 1")
    l = g.newlab("L_dl")
    g.lab(l)
    for k in range(4): A(f"v_xor_b32 v{PO[k]}, 128, v{PO[k]}")
    dma4(g, SA, 2048, PO, waits=cfg.ow2 - 1); dma4(g, SA, 2048, PO, waits=cfg.ow2 - 1)
    A(f"s_add_u32 {sI}, {sI}, 1"); A(f"s_cmp_lt_u32 {sI}, 4"); A(f"s_cbranch_scc1 {l}")
    A("v_lshl_add_u32 v22, v25, 2, v23"); A("v_lshl_add_u32 v22, v22, 5, v24"); A("s_lshl_b32 s11, s3, 8")
    A(f"v_lshl_add_u32 v{aT}, v26, 10, v22"); A(f"v_add_u32 v{aT}, s11, v{aT}")
    A("v_mul_u32_u24 v22, 288, v16"); A(f"v_lshl_add_u32 v{aW}, v17, 3, v22"); A(f"v_add_u32 v{aW}, {ACT}, v{aW}")
    A("v_mul_u32_u24 v22, 288, v19"); A(f"v_lshl_add_u32 v{aF}, v3, 4, v22"); A(f"v_add_u32 v{aF}, {ACT}, v{aF}")
    A("s_lshl_b32 s11, s3, 3"); A("v_lshrrev_b32 v22, 3, v2"); A("v_add_u32 v22, s11, v22"); A("v_lshl_add_u32 v22, v22, 2, v3"); A("v_lshlrev_b32 v22, 12, v22"); A(f"v_lshl_add_u32 v{gW}, v19, 4, v22")
    A("v_lshlrev_b32 v22, 16, v16"); A(f"v_lshl_add_u32 v{gP}, v17, 4, v22")
    A("v_lshlrev_b32 v22, 11, v16"); A(f"v_lshl_add_u32 v{gS}, v24, 4, v22")
    A("v_cmp_lt_u32 s[66:67], 7, v2")
    for r_ in (47, 50, 51, 54, 55): A(f"v_mov_b32 v{r_}, {TAG}")
    A(f"v_lshlrev_b32 v{gL16}, 4, v1")
    A("s_lshl_b32 s10, s3, 6"); A(f"v_lshl_add_u32 v{aTb2}, v19, 3, s10"); A(f"v_add_u32 v{aTb2}, {STL_}, v{aTb2}")
    A("s_lshr_b32 s10, s12, 3"); A("s_and_b32 s11, s12, 7")
    A(f"s_lshl_b32 {SO[0]}, s10, 14"); A("s_lshl_b32 s9, s11, 9"); A(f"s_add_u32 {SO[0]}, {SO[0]}, s9"); A(f"s_add_u32 {SO[0]}, {SO[0]}, {W_AP}")
    for i in range(1, 4): A(f"s_add_u32 {SO[i]}, {SO[0]}, {i*4096}")
    A("s_lshl_b32 s10, s10, 9"); A("s_lshl_b32 s11, s11, 4"); A("s_add_u32 s11, s11, s10"); A(f"s_add_u32 s11, s11, {W_AS}")
    A("s_lshl_b32 s9, s13, 19"); A("s_lshl_b32 s10, s12, 7"); A("s_add_u32 s9, s9, s10"); A(f"s_add_u32 s9, s9, {W_OP}")
    A(f"s_add_u32 s10, s9, 32768"); A("s_add_u32 s12, s9, 65536"); A("s_add_u32 s13, s9, 98304")
    hu_probe_issue(g, 0, 15, 40, 41)
    A("s_waitcnt vmcnt(0)")
    A("s_barrier")
    g.stamp(4)
    hu_post0(g, 5, 55, 12)
    GA = 192
    cl = [f"buffer_load_dwordx4 v[{GA+16}:{GA+19}], v{gS}, {WS}, s11 offen sc1"] + [f"buffer_load_dwordx4 v[{GA+4*k}:{GA+4*k+3}], v{gP}, {WS}, {SO[k]} offen sc1" for k in range(4)]
    def pre_o():
        for tt in range(8):
            a0, a1 = 12 + 2 * (tt & 1), 13 + 2 * (tt & 1)
            A(f"v_xor_b32 v{a0}, {tt*32}, v{aT}"); A(f"v_add_u32 v{a1}, 0x10000, v{a0}")
            for k in range(4):
                for q in range(2): tr(g, WF + 16 * tt + 4 * k + 2 * q, a0 if k < 2 else a1, (k & 1) * 32768 + q * 4096)
        srd(g, 40, 32, 16384)
        for p in range(2):
            A(f"v_lshlrev_b32 v{56+2*p}, 16, v{60+p}"); A(f"v_and_b32 v{57+2*p}, 0xffff0000, v{60+p}")
    staged(g, 0, 15, 40, 41, cfg.da, cl, pre_o, lambda iss: gather(g, cl, [GA + 18, GA + 19] + [GA + 4 * k + 3 for k in range(4)], 2, sleep=cfg.ps, issued=iss))
    M, Lr = GA + 16, GA + 17
    A(f"v_max_f32_dpp v36, v{M}, v{M} quad_perm:[1,0,3,2] row_mask:0xf bank_mask:0xf")
    unpack24_d(g, GA)
    A("v_max_f32_dpp v36, v36, v36 quad_perm:[2,3,0,1] row_mask:0xf bank_mask:0xf")
    A(f"v_sub_f32 v37, v{M}, v36"); A("v_exp_f32 v37, v37")
    unpack24_d(g, GA + 4)
    A(f"v_mul_f32 v38, v37, v{Lr}")
    unpack24_d(g, GA + 8)
    A("v_add_f32_dpp v38, v38, v38 quad_perm:[1,0,3,2] row_mask:0xf bank_mask:0xf")
    unpack24_d(g, GA + 12)
    A("v_add_f32_dpp v38, v38, v38 quad_perm:[2,3,0,1] row_mask:0xf bank_mask:0xf")
    for e in range(4): A(f"v_mul_f32_dpp v{40+e}, v37, v{GA+e} quad_perm:[0,0,0,0] row_mask:0xf bank_mask:0xf")
    A("v_rcp_f32 v38, v38")
    for k in range(1, 4):
        for e in range(4): A(f"v_fmac_f32_dpp v{40+e}, v37, v{GA+4*k+e} quad_perm:[{k},{k},{k},{k}] row_mask:0xf bank_mask:0xf")
    for e in range(4): A(f"v_mul_f32 v{40+e}, v{40+e}, v38")
    A("v_cvt_pk_bf16_f32 v32, v40, v41"); A("v_cvt_pk_bf16_f32 v33, v42, v43")
    A(f"ds_write_b64 v{aW}, v[32:33]")
    if cfg.dumpo:
        A(f"v_mov_b32 v34, {TAG}"); A(f"v_mov_b32 v35, {TAG}"); A("s_lshr_b32 s15, s6, 1"); A("s_lshl_b32 s15, s15, 12"); A(f"s_add_u32 s15, s15, {W_OB}")
        A(f"buffer_store_dwordx4 v[32:35], v{gT16}, {WS}, s15 offen sc1")
    A(f"s_lshl_b32 {SO[0]}, s14, 12"); A(f"s_add_u32 {SO[0]}, {SO[0]}, {W_OP}"); A(f"s_lshl_b32 {SO[1]}, s14, 10"); A(f"s_add_u32 {SO[1]}, {SO[1]}, {W_FP}")
    A(f"s_lshl_b32 {SO[2]}, s14, 7"); A(f"s_add_u32 {SO[2]}, {SO[2]}, {W_HB}"); A(f"s_lshl_b32 {SO[3]}, s6, 7"); A(f"s_add_u32 {SO[3]}, {SO[3]}, {W_HS}")
    for r_ in (35, 39, 43): A(f"v_mov_b32 v{r_}, {TAG}")
    g.stamp(8)
    A("s_waitcnt lgkmcnt(0)")
    A("s_barrier")
    for k in range(4): A(f"ds_read_b128 v[{XF+4*k}:{XF+4*k+3}], v{aF} offset:{k*64}")
    A("s_waitcnt lgkmcnt(0)")
    def fin_pair(m):
        for e in range(4): A(f"v_cndmask_b32 v{12+e}, v{AO+8*m+e}, v{AO+8*m+4+e}, s[66:67]")
        pack24(g, 32 + 4 * m, 12)
        A(f"buffer_store_dwordx4 v[{32+4*m}:{35+4*m}], v{gW}, {WS}, {['s9', 's10', 's12', 's13'][m]} offen sc1")
    for m in range(4):
        for k in range(4):
            for tl in range(2): mfma(g, AO + 8 * m + 4 * tl, WF + 16 * (2 * m + tl) + 4 * k, XF + 4 * k, k == 0)
        if m >= 1: fin_pair(m - 1)
    g.nop(1)
    fin_pair(3)
    g.stamp(9)
    def red(so, nl, stage):
        rl = [f"buffer_load_dwordx4 v[{GD+4*k}:{GD+4*k+3}], v{gL16}, {WS}, {so} offen offset:{k*1024} sc1" for k in range(nl)]
        gather(g, rl, [GD + 4 * k + 3 for k in range(nl)], stage, sleep=cfg.ps)
        if nl == 4 and cfg.e1: hu_post0(g, 1, 55, 12, force=True)
        for k in range(nl): unpack24_d(g, GD + 4 * k)
        if nl == 4:
            for h in range(2):
                A(f"v_pk_add_f32 v[{GD+2*h}:{GD+2*h+1}], v[{GD+2*h}:{GD+2*h+1}], v[{GD+4+2*h}:{GD+5+2*h}]"); A(f"v_pk_add_f32 v[{GD+8+2*h}:{GD+9+2*h}], v[{GD+8+2*h}:{GD+9+2*h}], v[{GD+12+2*h}:{GD+13+2*h}]")
            for h in range(2): A(f"v_pk_add_f32 v[{GD+2*h}:{GD+2*h+1}], v[{GD+2*h}:{GD+2*h+1}], v[{GD+8+2*h}:{GD+9+2*h}]")
            g.nop(1)
        xrow_reduce(g, [GD, GD + 1, GD + 2, GD + 3], steps=("ror8", "p16", "p32"), tmp=12)
        A(f"v_cvt_pk_bf16_f32 v12, v{GD}, v{GD+1}"); A(f"v_cvt_pk_bf16_f32 v13, v{GD+2}, v{GD+3}")
        for p in range(2):
            A(f"v_lshlrev_b32 v{40+2*p}, 16, v{12+p}"); A(f"v_and_b32 v{41+2*p}, 0xffff0000, v{12+p}")
        for h in range(2): A(f"v_pk_add_f32 v[{40+2*h}:{41+2*h}], v[{40+2*h}:{41+2*h}], v[{56+2*h}:{57+2*h}]")
        if nl == 4: A("v_pk_mul_f32 v[44:45], v[40:41], v[40:41]")
        A("v_cvt_pk_bf16_f32 v48, v40, v41")
        if nl == 4: A("v_pk_fma_f32 v[44:45], v[42:43], v[42:43], v[44:45]")
        A("v_cvt_pk_bf16_f32 v49, v42, v43")
    g.sleep(cfg.d4)
    red(SO[0], 4, 3)
    A("v_add_f32 v50, v44, v45")
    g.setexec(0xff)
    A(f"buffer_store_dwordx4 v[48:51], v{gL16}, {WS}, {SO[2]} offen sc1")
    if not cfg.e1: hu_post0(g, 1, 55, 12, force=True)
    g.full()
    for p in range(2):
        A(f"v_lshlrev_b32 v{56+2*p}, 16, v{48+p}"); A(f"v_and_b32 v{57+2*p}, 0xffff0000, v{48+p}")
    g.stamp(10)
    if not cfg.hu: g.sleep(cfg.d7)
    hu_wait(g, 2, 15, 12, 13, cfg.dc)
    red(SO[1], 1, 6)
    g.setexec(0xff)
    A(f"buffer_store_dwordx2 v[48:49], v{gOUT}, {XO}, s68 offen {['', 'sc1', 'nt', 'sc0 sc1'][cfg.outst]}")
    A("s_mov_b64 exec, 1")
    A("s_cmp_lg_u32 s14, 0"); A("s_cbranch_scc1 L_done")
    A(f"v_mov_b32 v12, {TAG}"); A("v_mov_b32 v13, 0")
    A(f"buffer_store_dword v12, v13, {WS}, 0 offen sc1")
    A("s_branch L_done")

def role_f1(g):
    A = g.A; cfg = g.cfg
    STL = "" if cfg.local else "sc1"
    HF = 224
    g.lab("L_f1")
    A("s_movk_i32 s12, 7168"); A("v_mul_lo_u32 v22, v20, s12"); A(f"v_add_u32 v{pA}, v22, v21"); A(f"v_xor_b32 v{pB}, 64, v{pA}")
    srd(g, 44, 28, 7340032)
    A("s_mul_i32 s12, s4, 7"); A("s_add_u32 s12, s12, s7"); A("s_sub_u32 s12, s12, 8"); A("s_lshl_b32 s13, s12, 7"); A(f"s_mul_i32 s14, s3, {256*7168}"); A(f"s_add_u32 {sB}, s13, s14")
    P2 = [pA, pB, pA, pB]
    if cfg.gate: hu_wait(g, 4, cfg.gmask, 40, 41, 0, backoff=2)
    else: g.sleep(cfg.fsl)
    w0 = [cfg.fw1 - 1 if k < cfg.fn1 else cfg.fw2 - 1 for k in range(8)]
    dma4(g, SA, 8 * 7168, P2, waits=w0[:4]); dma4(g, SA, 8 * 7168, P2, waits=w0[4:])
    dma_loop(g, SA, 8 * 7168, P2, 6, cfg.fw2)
    A("v_mul_u32_u24 v22, 2080, v19"); A("v_lshrrev_b32 v27, 3, v0"); A(f"v_lshl_add_u32 v{aW}, v27, 3, v22"); A(f"v_add_u32 v{aW}, {ACT}, v{aW}")
    A(f"v_lshl_add_u32 v{aF}, v3, 4, v22"); A(f"v_add_u32 v{aF}, {ACT}, v{aF}"); A("v_and_b32 v22, 8, v1"); A(f"v_lshl_add_u32 v{aF}, v22, 3, v{aF}")
    A("s_lshl_b32 s13, s3, 9"); A("v_lshlrev_b32 v22, 7, v3"); A(f"v_lshl_add_u32 v{gW}, v2, 4, v22"); A(f"v_add_u32 v{gW}, s13, v{gW}")
    A(f"s_lshl_b32 s9, s12, 11"); A(f"s_add_u32 s9, s9, {W_AB}"); A(f"s_add_u32 s10, s9, {BDELTA}")
    for i in range(4): A(f"s_mov_b32 {SO[i]}, {W_HB+8192*i}")
    A(f"v_add_u32 v{aTb}, 4096, v{gT16}")
    A("v_mov_b32 v12, 0x3f803f80"); A("v_mov_b32 v13, v12"); A("v_mov_b32 v14, v12"); A("v_mov_b32 v15, v12")
    A(f"s_mov_b32 s68, {W_HS}")
    A("s_lshl_b32 s13, s3, 6"); A(f"v_lshl_add_u32 v{aTb2}, v19, 3, s13"); A(f"v_add_u32 v{aTb2}, {STL_}, v{aTb2}")
    A("v_lshlrev_b32 v27, 3, v19"); A(f"v_add_u32 v27, {STL_}, v27")
    A(f"v_mov_b32 v46, {TAG}"); A(f"v_mov_b32 v47, {TAG}")
    hu_probe_issue(g, 1, 7, 40, 41)
    A("s_waitcnt vmcnt(0)")
    A("s_barrier")
    g.stamp(4)
    hl = [f"buffer_load_dwordx4 v[{GD+4*k}:{GD+4*k+3}], v{gT16 if k % 2 == 0 else aTb}, {WS}, {SO[k>>1]} offen sc1" for k in range(8)]
    def pre_1():
        for k in range(32):
            for q in range(2): tr(g, WF + 4 * k + 2 * q, aT if k < 16 else aT2, (k & 15) * 4096 + q * 512)
            if k >= 6:
                A("s_waitcnt lgkmcnt(12)"); mfma(g, AC + 4, WF + 4 * (k - 6), 12, k == 6)
        for k in range(26, 32):
            A(f"s_waitcnt lgkmcnt({2*(31-k)})"); mfma(g, AC + 4, WF + 4 * k, 12, False)
        g.stamp(10)
    staged(g, 1, 7, 40, 41, cfg.db, hl, pre_1, lambda iss: gather(g, hl, [GD + 4 * k + 3 for k in range(8)], 4, sleep=cfg.ps, issued=iss))
    for k in range(8): A(f"ds_write_b64 v{aW}, v[{GD+4*k}:{GD+4*k+1}] offset:{k*256}")
    g.stamp(11)
    for k in range(8):
        A(f"v_dot2_f32_bf16 v40, v{GD+4*k}, v12, {'0' if k == 0 else 'v40'}"); A(f"v_dot2_f32_bf16 v42, v{GD+4*k+1}, v12, {'0' if k == 0 else 'v42'}")
        if k == cfg.dsplit - 1:
            A("s_waitcnt lgkmcnt(0)"); A("s_barrier")
            for kk in range(8): A(f"ds_read_b128 v[{HF+4*kk}:{HF+4*kk+3}], v{aF} offset:{kk*128}")
    for k in range(1, 8): A(f"v_add_f32 v41, v{GD+4*k+2}, {f'v{GD+2}' if k == 1 else 'v41'}")
    side = {}
    side.update({
        0: ["v_add_f32 v40, v40, v42"],
        1: ["v_add_f32_dpp v40, v40, v40 row_ror:8 row_mask:0xf bank_mask:0xf", "v_add_f32_dpp v41, v41, v41 row_ror:8 row_mask:0xf bank_mask:0xf"],
        2: ["v_mov_b32 v42, v40", "v_mov_b32 v43, v41"],
        3: ["v_permlane16_swap_b32 v40, v42", "v_permlane16_swap_b32 v41, v43"],
        4: ["v_pk_add_f32 v[40:41], v[40:41], v[42:43]"],
        5: ["v_mov_b32 v42, v40", "v_mov_b32 v43, v41"],
        6: ["v_permlane32_swap_b32 v40, v42", "v_permlane32_swap_b32 v41, v43"],
        7: ["v_pk_add_f32 v[40:41], v[40:41], v[42:43]"],
        8: ["s_mov_b32 exec_lo, 0xff", "s_mov_b32 exec_hi, 0", f"ds_write_b64 v{aTb2}, v[40:41]", "s_mov_b64 exec, -1"],
        11: ["s_barrier"] + [f"ds_read_b64 v[{48+2*w}:{49+2*w}], v27 offset:{w*64}" for w in range(4)],
        16: ["v_pk_add_f32 v[48:49], v[48:49], v[50:51]", "v_pk_add_f32 v[52:53], v[52:53], v[54:55]", "v_pk_add_f32 v[48:49], v[48:49], v[52:53]"],
        17: ["v_mul_f32 v48, 0x3a800000, v48", "v_mul_f32 v49, 0x3a800000, v49", "v_fma_f32 v49, -v48, v48, v49"],
        18: ["v_max_f32 v49, 0, v49", "v_cvt_pk_bf16_f32 v49, v49, v49", "v_lshlrev_b32 v49, 16, v49"],
        19: ["v_add_f32 v49, 0x3727c5ac, v49", "v_cvt_pk_bf16_f32 v49, v49, v49", "v_lshlrev_b32 v49, 16, v49"],
        20: ["v_sqrt_f32 v49, v49", "v_cvt_pk_bf16_f32 v48, v48, v48"],
        21: ["v_cvt_pk_bf16_f32 v49, v49, v49", "v_lshlrev_b32 v48, 16, v48", "v_lshlrev_b32 v49, 16, v49"],
        22: ["v_rcp_f32 v49, v49"],
    })
    seq = [("f", k) for k in range(8)]
    for k in range(32):
        m = k >> 1
        need = seq.index(("f", m))
        if k == 11: need = max(need, seq.index(("w", 0)))
        if k == 16: need = max(need, seq.index(("s", 3)))
        if k % 2 == 0 or k in (11,): A(f"s_waitcnt lgkmcnt({len(seq) - 1 - need})")
        mfma(g, AC if k % 2 == 0 else 56, WF + 4 * k, HF + 4 * (m & 7), k < 2)
        if k % 2 == 1 and m + 8 < 16:
            A(f"ds_read_b128 v[{HF+4*(m&7)}:{HF+4*(m&7)+3}], v{aF} offset:{(m+8)*128}"); seq.append(("f", m + 8))
        for x_ in side.get(k, []): A(x_)
        if k == 8: seq.append(("w", 0))
        if k == 11: seq += [("s", w) for w in range(4)]
    g.nop(7)
    for e in range(4): A(f"v_fma_f32 v{40+e}, -v48, v{AC+4+e}, v{AC+e}")
    for e in range(4): A(f"v_add_f32_dpp v{40+e}, v{56+e}, v{40+e} row_ror:8 row_mask:0xf bank_mask:0xf")
    g.setexec(0x00ff00ff00ff00ff)
    for e in range(4): A(f"v_mul_f32 v{40+e}, v{40+e}, v49")
    for e in range(4): A(f"v_max_f32 v{40+e}, 0, v{40+e}")
    A("v_cvt_pk_bf16_f32 v44, v40, v41"); A("v_cvt_pk_bf16_f32 v45, v42, v43")
    A(f"buffer_store_dwordx4 v[44:47], v{gW}, {WS}, s9 offen {STL}")
    if cfg.local: A(f"buffer_store_dwordx4 v[44:47], v{gW}, {WS}, s10 offen sc1")
    g.stamp(12)
    A("s_branch L_done")

def role_attn(g):
    A = g.A; cfg = g.cfg
    STL = "" if cfg.local else "sc1"
    KF, VF, QF, SC, PV, GA = 64, 128, 192, 32, 208, 128
    PF, RS = 48, 56
    pV = [244, 245]; p2 = [4, 5]
    aK, aV, gQ, aQw, aVb, aMw, aMr, aPw, aPr, gAP = range(246, 256)
    gL16 = 18
    g.lab("L_attn")
    A("s_mov_b32 s6, s68")
    nk0 = cfg.nk0
    done = nk0
    npost = 0
    while done < 16:
        lo = done & 3
        dma4(g, SB, 1024, pK, waits=cfg.kw - 1, lo=lo)
        done += 4 - lo
        if done == cfg.g4: hu_post0(g, 4, 43, 12)
    srd(g, 44, 20, 32 << 20)
    A("v_lshlrev_b32 v22, 1, v3"); A("v_xor_b32 v22, v2, v22"); A("v_lshlrev_b32 v22, 4, v22"); A(f"v_lshl_add_u32 v{pV[0]}, v3, 8, v22"); A(f"v_xor_b32 v{pV[1]}, 128, v{pV[0]}")
    A(f"s_mov_b32 {sB}, s66"); A(f"s_add_u32 {sM}, {mW}, 0x10000")
    A("s_lshr_b32 s10, s7, 2"); A("s_lshl_b32 s10, s10, 16"); A("s_lshl_b32 s11, s4, 9"); A("s_add_u32 s10, s10, s11"); A(f"s_add_u32 {SO[0]}, s10, {W_QP}")
    for i in range(1, 4): A(f"s_add_u32 {SO[i]}, {SO[0]}, {i*262144}")
    A("v_lshrrev_b32 v22, 4, v0"); A("v_lshlrev_b32 v22, 12, v22"); A(f"v_lshl_add_u32 v{gQ}, v2, 4, v22")
    PVp = [pV[0], pV[1], pV[0], pV[1]]
    QD = 192
    ql = [f"buffer_load_dwordx4 v[{QD+8*k+4*h}:{QD+8*k+4*h+3}], v{gQ}, {WS}, {SO[k]} offen offset:{256*h} sc1" for k in range(4) for h in range(1 if cfg.qf24 else 2)]
    NQ = len(ql)
    NG = cfg.vg
    vst = dict(n=4 * NG)
    def vmore(n):
        for _ in range(n):
            i = vst["n"]
            if i >= 16: return
            dma4(g, SA, 1024, PVp, lo=i & 3, hi=(i & 3) + 1, adv=((i & 3) == 3)); vst["n"] += 1
    for k in range(NG):
        if k == cfg.qpos:
            for s in ql: A(s)
        dma4(g, SA, 1024, PVp, waits=cfg.vw - 1 + (NQ if k >= cfg.qpos else 0))
        if 20 + 4 * k == cfg.g4: hu_post0(g, 4, 43, 12)
        if k == 0:
            A("v_lshl_add_u32 v27, v25, 2, v23"); A("v_lshl_add_u32 v27, v27, 5, v24"); A("v_lshl_add_u32 v22, v3, 2, v23")
            A("s_lshl_b32 s13, s3, 6"); A("v_xor_b32 v27, s13, v27")
            A(f"v_lshl_add_u32 v{aV}, v22, 8, v27"); A(f"v_add_u32 v{aV}, 0x10000, v{aV}"); A(f"v_xor_b32 v{aVb}, 32, v{aV}")
            A("v_xor_b32 v22, v3, v2"); A("v_lshlrev_b32 v22, 4, v22"); A(f"v_lshl_add_u32 v{aK}, v2, 8, v22"); A(f"v_add_u32 v{aK}, {mW}, v{aK}")
            A("v_mul_u32_u24 v22, 288, v16"); A(f"v_lshl_add_u32 v{aQw}, v17, 3, v22"); A(f"v_add_u32 v{aQw}, {QL}, v{aQw}")
            A("v_mul_u32_u24 v22, 288, v19"); A(f"v_lshl_add_u32 v{aF}, v3, 4, v22"); A(f"v_add_u32 v{aF}, {QL}, v{aF}")
            A(f"v_lshlrev_b32 v22, 4, v19"); A(f"v_add_u32 v{aMr}, {CB+4096}, v22"); A("s_lshl_b32 s13, s3, 2"); A(f"v_add_u32 v{aMw}, s13, v{aMr}")
            A(f"v_lshl_add_u32 v22, v3, 7, v22"); A(f"v_add_u32 v{aPr}, {CB}, v22"); A("s_lshl_b32 s13, s3, 10"); A(f"v_add_u32 v{aPw}, s13, v{aPr}")
            A(f"v_lshlrev_b32 v{gL16}, 4, v1")
            A("s_lshl_b32 s13, s3, 1"); A("v_lshrrev_b32 v22, 3, v2"); A("v_add_u32 v22, s13, v22"); A("v_lshl_add_u32 v22, v22, 2, v3"); A("v_lshlrev_b32 v22, 4, v22"); A(f"v_lshl_add_u32 v{gAP}, v19, 9, v22")
            A("v_cmp_lt_u32 s[66:67], 7, v2")
            for kk in range(1, 4): A(f"v_xor_b32 v{36+kk}, {kk*64}, v{aK}")
            A(f"v_mov_b32 v{RS+3}, {TAG}"); A(f"v_mov_b32 v{RS+6}, {TAG}"); A(f"v_mov_b32 v{RS+7}, {TAG}")
            A("v_mov_b32 v28, 0x3fb8aa3b"); A("v_mov_b32 v29, v28")
            A(f"v_lshl_add_u32 v{p2[0]}, v20, 11, v21"); A(f"v_xor_b32 v{p2[1]}, 64, v{p2[0]}")
    if cfg.qpos >= 4:
        A(f"s_waitcnt vmcnt({cfg.qw})")
        for s in ql: A(s)
    newer = max(0, NG - cfg.qpos) * 4
    A(f"s_waitcnt vmcnt({4*NG+NQ})")
    for tl in range(4):
        for k in range(4): A(f"ds_read_b128 v[{KF+16*tl+4*k}:{KF+16*tl+4*k+3}], v{aK if k == 0 else 36+k} offset:{tl*4096}")
    g.stamp(11)
    if cfg.qf24:
        gather(g, ql, [QD + 8 * j + 3 for j in range(4)], 0, issued=True, newer=newer)
        g.stamp(4)
        for j in range(4):
            unpack24_d(g, QD + 8 * j)
            for e in range(3): A(f"v_and_b32 v{QD+8*j+e}, 0xffffff00, v{QD+8*j+e}")
        for h in range(2):
            A(f"v_pk_add_f32 v[{12+2*h}:{13+2*h}], v[{QD+2*h}:{QD+2*h+1}], v[{QD+8+2*h}:{QD+9+2*h}]"); A(f"v_pk_add_f32 v[{32+2*h}:{33+2*h}], v[{QD+16+2*h}:{QD+17+2*h}], v[{QD+24+2*h}:{QD+25+2*h}]")
        for h in range(2): A(f"v_pk_add_f32 v[{12+2*h}:{13+2*h}], v[{12+2*h}:{13+2*h}], v[{32+2*h}:{33+2*h}]")
    else:
        gather(g, ql, [QD + 4 * j + 2 for j in range(8)] + [QD + 4 * j + 3 for j in range(8)], 0, issued=True, newer=newer)
        g.stamp(4)
        for h in range(2):
            A(f"v_pk_add_f32 v[{12+2*h}:{13+2*h}], v[{QD+4*h}:{QD+4*h+1}], v[{QD+8+4*h}:{QD+9+4*h}]"); A(f"v_pk_add_f32 v[{32+2*h}:{33+2*h}], v[{QD+16+4*h}:{QD+17+4*h}], v[{QD+24+4*h}:{QD+25+4*h}]")
        for h in range(2): A(f"v_pk_add_f32 v[{12+2*h}:{13+2*h}], v[{12+2*h}:{13+2*h}], v[{32+2*h}:{33+2*h}]")
    A("v_cvt_pk_bf16_f32 v12, v12, v13"); A("v_cvt_pk_bf16_f32 v13, v14, v15")
    A(f"ds_write_b64 v{aQw}, v[12:13]")
    vmore(cfg.vi)
    A("s_mov_b32 s9, 0x3db504f3"); A("s_mov_b32 s10, 0x3fb8aa3b")
    A("s_waitcnt lgkmcnt(0)")
    A("s_barrier")
    for k in range(4): A(f"ds_read_b128 v[{QF+4*k}:{QF+4*k+3}], v{aF} offset:{k*64}")
    P2 = [p2[0], p2[1], p2[0], p2[1]]
    n2 = 0
    vmore(cfg.vi)
    for k in range(4):
        A(f"s_waitcnt lgkmcnt({3-k})")
        for tl in range(4): mfma(g, SC + 4 * tl, KF + 16 * tl + 4 * k, QF + 4 * k, k == 0)
    g.nop(5)
    E = 64
    for p in range(8): A(f"v_cvt_pk_bf16_f32 v{PF+p}, v{SC+2*p}, v{SC+2*p+1}")
    for p in range(8):
        A(f"v_lshlrev_b32 v{E+2*p}, 16, v{PF+p}"); A(f"v_and_b32 v{E+2*p+1}, 0xffff0000, v{PF+p}")
    vmore(cfg.vi)
    for e in range(16): A(f"v_mul_f32 v{E+e}, s9, v{E+e}")
    for p in range(8): A(f"v_cvt_pk_bf16_f32 v{PF+p}, v{E+2*p}, v{E+2*p+1}")
    for p in range(8):
        A(f"v_lshlrev_b32 v{E+2*p}, 16, v{PF+p}"); A(f"v_and_b32 v{E+2*p+1}, 0xffff0000, v{PF+p}")
    for k in range(5): A(f"v_max3_f32 v{32+k}, v{E+3*k}, v{E+3*k+1}, v{E+3*k+2}")
    A(f"v_max3_f32 v32, v32, v33, v{E+15}"); A("v_max3_f32 v34, v34, v35, v36"); A("v_max_f32 v30, v32, v34")
    xrow_reduce(g, [30], op="v_max_f32", steps=("p16", "p32"))
    g.setexec(0xff)
    A(f"ds_write_b32 v{aMw}, v30")
    g.full()
    vmore(cfg.vi)
    for p in range(8): A(f"v_pk_mul_f32 v[{E+2*p}:{E+2*p+1}], v[{E+2*p}:{E+2*p+1}], v[28:29]")
    A("s_waitcnt lgkmcnt(0)")
    A("s_barrier")
    A(f"ds_read_b128 v[32:35], v{aMr}")
    A("s_lshl_b32 s9, s6, 12"); A(f"s_add_u32 s9, s9, {W_AP}"); A("s_lshl_b32 s11, s6, 7"); A(f"s_add_u32 s11, s11, {W_AS}")
    A("s_waitcnt lgkmcnt(0)")
    A("v_max3_f32 v30, v32, v33, v34"); A("v_max_f32 v30, v30, v35"); A(f"v_mul_f32 v{RS+4}, s10, v30")
    for e in range(16): A(f"v_sub_f32 v{E+e}, v{E+e}, v{RS+4}")
    for e in range(16): A(f"v_exp_f32 v{E+e}, v{E+e}")
    for p in range(8): A(f"v_cvt_pk_bf16_f32 v{PF+p}, v{E+2*p}, v{E+2*p+1}")
    g.setexec(0x00ff00ff00ff00ff)
    A(f"ds_write_b128 v{aPw}, v[{PF}:{PF+3}]"); A(f"ds_write_b128 v{aPw}, v[{PF+4}:{PF+7}] offset:512")
    g.full()
    for p in range(4): A(f"v_pk_add_f32 v[{E+4*p}:{E+4*p+1}], v[{E+4*p}:{E+4*p+1}], v[{E+4*p+2}:{E+4*p+3}]")
    A(f"v_pk_add_f32 v[{E}:{E+1}], v[{E}:{E+1}], v[{E+4}:{E+5}]"); A(f"v_pk_add_f32 v[{E+8}:{E+9}], v[{E+8}:{E+9}], v[{E+12}:{E+13}]")
    A(f"v_pk_add_f32 v[{E}:{E+1}], v[{E}:{E+1}], v[{E+8}:{E+9}]"); A(f"v_add_f32 v31, v{E}, v{E+1}")
    xrow_reduce(g, [31], steps=("p16", "p32"))
    g.setexec(0xff)
    A(f"ds_write_b32 v{aMw}, v31 offset:128")
    g.full()
    vmore(16)
    srd(g, 48, 30, 7340032)
    A("s_lshl_b32 s12, s4, 2"); A("s_add_u32 s12, s12, s3"); A(f"s_mul_i32 s12, s12, {112*2048}"); A("s_lshl_b32 s13, s7, 7"); A(f"s_add_u32 {sB}, s12, s13")
    A(f"s_mul_i32 {sM}, s3, {14*1024}")
    g.stamp(5)
    PFR, V0, V1, AO = 192, 128, 160, 224
    A(f"s_waitcnt vmcnt({n2+8}) lgkmcnt(0)")
    A("s_barrier")
    for h in range(4):
        A(f"ds_read_b128 v[{PFR+8*h}:{PFR+8*h+3}], v{aPr} offset:{2*h*512}")
        for tl in range(2):
            for q in range(2): tr(g, V0 + 8 * h + 4 * tl + 2 * q, [aV, aVb][tl], 2 * h * 8192 + q * 4096)
    for h in range(4):
        A(f"s_waitcnt lgkmcnt({15-5*h})")
        for tl in range(2): mfma(g, AO + 4 * tl, V0 + 8 * h + 4 * tl, PFR + 8 * h, h == 0)
    for h in range(4): A(f"ds_read_b128 v[{PFR+8*h+4}:{PFR+8*h+7}], v{aPr} offset:{(2*h+1)*512}")
    A(f"ds_read_b128 v[32:35], v{aMr} offset:128")
    A(f"s_waitcnt vmcnt({n2})")
    g.stamp(10)
    A("s_barrier")
    if cfg.e0: hu_post0(g, 0, RS + 7, 12, force=True)
    for h in range(4):
        for tl in range(2):
            for q in range(2): tr(g, V1 + 8 * h + 4 * tl + 2 * q, [aV, aVb][tl], (2 * h + 1) * 8192 + q * 4096)
    for h in range(4):
        A(f"s_waitcnt lgkmcnt({12-4*h})")
        for tl in range(2): mfma(g, AO + 4 * tl, V1 + 8 * h + 4 * tl, PFR + 8 * h + 4, False)
        if h == 0: A("v_pk_add_f32 v[32:33], v[32:33], v[34:35]")
        if h == 1: A(f"v_add_f32 v{RS+5}, v32, v33")
    A("s_cmp_lg_u32 s3, 0"); A("s_cbranch_scc1 L_nst")
    g.setexec(0xff)
    A(f"buffer_store_dwordx4 v[{RS+4}:{RS+7}], v{gL16}, {WS}, s11 offen sc1")
    g.full()
    g.lab("L_nst")
    g.nop(6)
    for e in range(4): A(f"v_cndmask_b32 v{40+e}, v{AO+e}, v{AO+4+e}, s[66:67]")
    pack24(g, RS, 40)
    A(f"buffer_store_dwordx4 v[{RS}:{RS+3}], v{gAP}, {WS}, s9 offen sc1")
    g.stamp(6)
    if not cfg.e0: hu_post0(g, 0, RS + 7, 12, force=True)
    if cfg.gate: hu_wait(g, 5, 7, 40, 41, 0, backoff=2)
    else: g.sleep(cfg.w2sl)
    for k in range(n2 // 4, 3): dma4(g, SB, 8 * 2048, P2, waits=[0 if 4 * k + jj < cfg.w2n else None for jj in range(4)])
    dma4(g, SB, 8 * 2048, P2, hi=2)
    A("v_mul_u32_u24 v22, 928, v19"); A(f"v_add_u32 v22, {CB}, v22"); A("v_lshrrev_b32 v27, 3, v0"); A(f"v_lshl_add_u32 v{aW}, v27, 3, v22"); A(f"v_lshl_add_u32 v{aF}, v3, 4, v22"); A("v_and_b32 v22, 8, v1"); A(f"v_lshl_add_u32 v{aF}, v22, 3, v{aF}")
    A("s_lshl_b32 s13, s3, 12"); A("v_lshlrev_b32 v22, 10, v3"); A(f"v_lshl_add_u32 v{gW}, v2, 4, v22"); A(f"v_add_u32 v{gW}, s13, v{gW}")
    A(f"s_mul_i32 {SO[0]}, s4, {112*128}"); A(f"s_add_u32 {SO[0]}, {SO[0]}, {W_AB}")
    for i in range(1, 3): A(f"s_add_u32 {SO[i]}, {SO[0]}, {i*4096}")
    A(f"s_add_u32 {SO[3]}, {SO[0]}, {3*4096}"); A("s_cmp_ge_u32 s3, 2"); A(f"s_cselect_b32 {SO[3]}, {SO[0]}, {SO[3]}")
    A("s_lshl_b32 s9, s7, 14"); A("s_lshl_b32 s10, s4, 7"); A("s_add_u32 s9, s9, s10"); A(f"s_add_u32 s9, s9, {W_FP}")
    A(f"v_mov_b32 v47, {TAG}")
    A("s_waitcnt vmcnt(0)")
    A("s_barrier")
    g.stamp(12)
    for k in range(14):
        for q in range(2): tr(g, 64 + 4 * k + 2 * q, aT, k * 4096 + q * 512)
    AD = 192
    al = [f"buffer_load_dwordx4 v[{AD+4*k}:{AD+4*k+3}], v{gT16}, {WS}, {SO[k]} offen sc1" for k in range(4)]
    g.sleep(cfg.d6)
    gather(g, al, [AD + 4 * k + 2 for k in range(4)] + [AD + 4 * k + 3 for k in range(4)], 5, toggle=SO, sleep=cfg.pl)
    for k in range(3): A(f"ds_write_b64 v{aW}, v[{AD+4*k}:{AD+4*k+1}] offset:{k*256}")
    A("s_cmp_ge_u32 s3, 2"); A("s_cbranch_scc1 L_a3"); A(f"ds_write_b64 v{aW}, v[{AD+12}:{AD+13}] offset:768"); g.lab("L_a3")
    g.stamp(13)
    if cfg.e2: hu_post0(g, 2, 47, 12, force=True)
    A("s_waitcnt lgkmcnt(0)")
    A("s_barrier")
    for m in range(7): A(f"ds_read_b128 v[{128+4*m}:{131+4*m}], v{aF} offset:{m*128}")
    for k in range(14):
        if k % 2 == 0: A(f"s_waitcnt lgkmcnt({6-k//2})")
        mfma(g, 32 + 4 * (k & 1), 64 + 4 * k, 128 + 4 * (k >> 1), k < 2)
    g.nop(8)
    for e in range(4): A(f"v_add_f32_dpp v{32+e}, v{36+e}, v{32+e} row_ror:8 row_mask:0xf bank_mask:0xf")
    g.setexec(0x00ff00ff00ff00ff)
    pack24(g, 44, 32)
    A(f"buffer_store_dwordx4 v[44:47], v{gW}, {WS}, s9 offen sc1")
    g.full()
    if not cfg.e2: hu_post0(g, 2, 47, 12, force=True)
    g.stamp(14)

def parse(argv=None):
    ap = argparse.ArgumentParser()
    ap.add_argument("-o", default="sequential_preLN__sliding_block_cached__dense_activation_relu__decode.s")
    D = dict(stamps=0, nt=1, pref=1, local=1, wc=1, wr=2, fb=300, early=1, nopoll=0, hu=1, hun=400, dumpo=0, huearly=1, swap=0, outst=0, qf24=1, vg=2, vi=2, dsplit=5, rd=8, acc2=0, e0=0, e1=0, e2=0,
             gate=0, gmask=15, g3=16, g4=32,
             nk0=8, kwin=2, kw=8, vw=8, qpos=1, qw=8, w2e=0, w2sl=0, w2n=4,
             osl=0, on1=4, ow1=2, ow2=10, fsl=0, fn1=5, fw1=1, fw2=10,
             d2=3, d4=12, d6=0, d7=60, dt=12, da=0, db=0, dc=0, ps=4, pl=1)
    for k, d in D.items(): ap.add_argument(f"--{k}", type=int, default=d)
    return ap.parse_args(argv)

if __name__ == "__main__":
    cfg = parse()
    open(cfg.o, "w").write(gen(cfg))
```
